```python
import torch

def _softmax(x, axis=-1):
    return torch.softmax(x, dim=axis)
def _gelu(x):
    return torch.nn.functional.gelu(x, approximate="tanh")
def _silu(x):
    return torch.nn.functional.silu(x)
def _sigmoid(x):
    return torch.sigmoid(x)
def _layernorm(x, axis=-1, eps=1e-5):
    m = x.mean(dim=axis, keepdim=True)
    v = x.var(dim=axis, keepdim=True, unbiased=False)
    return (x - m) / torch.sqrt(v + eps)
def _scatter_add(tgt, idx, src, axis=0):
    return tgt.clone().index_add_(axis, idx, src)
def _segment_sum(src, seg, n):
    out = torch.zeros((n,) + src.shape[1:], dtype=src.dtype)
    return out.index_add_(0, seg, src)
def _pad(x, pw):
    flat = tuple(v for pair in reversed(pw) for v in pair)
    return torch.nn.functional.pad(x, flat)

kernel_name = 'gated_mix__grouped_kv_mqa__ssm_conv_s4__prompt'

def setup_inputs():

    _w = (lambda a: (lambda t: t.to(torch.bfloat16) if t.is_floating_point() else t)(torch.as_tensor(a)))
    def _A_setup():
        B, S, D, H = 1, 2048, 448, 16
        Dh = D // H
        return {
            "x": _w((lambda *s: torch.randn(*s, dtype=torch.bfloat16) * 0.05)(B, S, D)),
            "wq": _w((lambda *s: torch.randn(*s, dtype=torch.bfloat16) * 1.6)(D, H * Dh)),
            "wk": _w((lambda *s: torch.randn(*s, dtype=torch.bfloat16) * 1.6)(D, Dh)),
            "wv": _w((lambda *s: torch.randn(*s, dtype=torch.bfloat16) * 0.05)(D, Dh)),
            "wo": _w((lambda *s: torch.randn(*s, dtype=torch.bfloat16) * 0.05)(H * Dh, D)),
        }
    _A_in = _A_setup()

    def _B_setup():
        B, L, D, N = 1, 2048, 448, 256
        A_re = -(lambda _x: torch.exp(torch.as_tensor(_x)))((lambda *s: torch.randn(*s, dtype=torch.bfloat16) * 3.2)(D, N))
        A_im = torch.pi * (lambda *s: torch.randn(*s, dtype=torch.bfloat16) * 0.05)(D, N)
        B_re = (lambda *s: torch.randn(*s, dtype=torch.bfloat16) * 0.2)(D, N)
        B_im = (lambda *s: torch.randn(*s, dtype=torch.bfloat16) * 0.2)(D, N)
        C_re = (lambda *s: torch.randn(*s, dtype=torch.bfloat16) * 0.2)(D, N)
        C_im = (lambda *s: torch.randn(*s, dtype=torch.bfloat16) * 0.2)(D, N)
        log_dt = (lambda *s: torch.randn(*s, dtype=torch.bfloat16) * 0.05)(D) * 0.5 - 4.0
        Dskip = (lambda *s: torch.randn(*s, dtype=torch.bfloat16) * 0.1)(D)
        return {
            "u": _w((lambda *s: torch.randn(*s, dtype=torch.bfloat16) * 0.05)(B, L, D)),
            "A_re": _w(A_re),
            "A_im": _w(A_im),
            "B_re": _w(B_re),
            "B_im": _w(B_im),
            "C_re": _w(C_re),
            "C_im": _w(C_im),
            "log_dt": _w(log_dt),
            "Dskip": _w(Dskip),
        }
    _B_in = _B_setup()

    return {
        "A_x": _A_in["x"],
        "A_wq": _A_in["wq"],
        "A_wk": _A_in["wk"],
        "A_wv": _A_in["wv"],
        "A_wo": _A_in["wo"],
        "B_u": _B_in["u"],
        "B_A_re": _B_in["A_re"],
        "B_A_im": _B_in["A_im"],
        "B_B_re": _B_in["B_re"],
        "B_B_im": _B_in["B_im"],
        "B_C_re": _B_in["C_re"],
        "B_C_im": _B_in["C_im"],
        "B_log_dt": _B_in["log_dt"],
        "B_Dskip": _B_in["Dskip"],
        "gate_w": _w((lambda *s: torch.randn(*s, dtype=torch.bfloat16) * 0.05)(448) * 16.0),
    }

def reference(A_x, A_wq, A_wk, A_wv, A_wo, B_u, B_A_re, B_A_im, B_B_re, B_B_im, B_C_re, B_C_im, B_log_dt, B_Dskip, gate_w):
    def _A_ref(x, wq, wk, wv, wo):
        B, S, D = x.shape
        H = 16
        Dh = D // H
        q = (lambda x, *d: x.permute(*d))((x @ wq).reshape(B, S, H, Dh), 0, 2, 1, 3)
        k = x @ wk
        v = x @ wv
        scores = torch.einsum("bhqd,bkd->bhqk", q, k) * (Dh ** -0.5)
        p = _softmax(scores, axis=-1)
        o = torch.einsum("bhqk,bkd->bhqd", p, v)
        return (lambda x, *d: x.permute(*d))(o, 0, 2, 1, 3).reshape(B, S, H * Dh) @ wo

    def _B_ref(u, A_re, A_im, B_re, B_im, C_re, C_im, log_dt, Dskip):
        Bsz, L, D = u.shape
        dt = torch.exp(log_dt)[:, None]
        A = A_re + 1j * A_im
        Bc = B_re + 1j * B_im
        Cc = C_re + 1j * C_im
        logdA = dt * A
        dB = dt * Bc
        l = (lambda x, dt: x.to(dt))(torch.arange(L), A_re.dtype)
        P = torch.exp(logdA[:, :, None] * l[None, None, :])
        K = torch.einsum("dn,dnl,dn->dl", Cc, P, dB).real
        L2 = 2 * L
        Kp = _pad(K, ((0, 0), (0, L)))
        up = (lambda x, *d: x.permute(*d))(u, 0, 2, 1)
        up = _pad(up, ((0, 0), (0, 0), (0, L)))
        Kf = (lambda x, axes=(-2,-1): torch.fft.rfft2(x.float(), dim=axes))(Kp[:, None, :], axes=(-2, -1))
        Uf = (lambda x, axes=(-2,-1): torch.fft.rfft2(x.float(), dim=axes))(up[:, :, None, :], axes=(-2, -1))
        Yf = Uf * Kf[None, :, :, :]
        y = (lambda x, s, axes=(-2,-1): torch.fft.irfft2(x, s=s, dim=axes).to(torch.bfloat16))(Yf, (1, L2), axes=(-2, -1))[:, :, 0, :L]
        y = (lambda x, *d: x.permute(*d))(y, 0, 2, 1) + u * Dskip[None, None, :]
        return y

    x = A_x
    g = _sigmoid((x * gate_w).sum(-1, keepdims=True))
    a = _A_ref(x, A_wq, A_wk, A_wv, A_wo)
    b = _B_ref(x, B_A_re, B_A_im, B_B_re, B_B_im, B_C_re, B_C_im, B_log_dt, B_Dskip)
    return g * a + (1 - g) * b
```

```python
import math, struct, sys

def f2u(x): return struct.unpack("<I", struct.pack("<f", x))[0]
LOG2E = 1.4426950408889634
QSCALE = (28 ** -0.5) * LOG2E

QF   = 0x000000
KVF  = 0x200000
KN   = 0x240000
GT   = 0x241000
OMG  = 0x243000
XT   = 0x280000
KR   = 0x480000
KRS  = 8448
KRO  = 4176
OF   = 0x900000
BT   = 0xB00000
WSSZ = 0xD00000

class A:
    def __init__(self): self.l = []
    def __call__(self, s=""):
        for line in s.split("\n"):
            line = line.strip()
            if not line: continue
            if line.endswith(":") or line.startswith("."): self.l.append(line)
            else: self.l.append("    " + line)
    def text(self): return "\n".join(self.l) + "\n"

def vr(a, n): return f"v[{a}:{a+n-1}]"
def ar(a, n): return f"a[{a}:{a+n-1}]"
def sr(a, n): return f"s[{a}:{a+n-1}]"

def srd(e, d, base, nbytes):
    e(f"s_mov_b32 s{d}, s{base}\ns_mov_b32 s{d+1}, s{base+1}\ns_mov_b32 s{d+2}, {nbytes}\ns_mov_b32 s{d+3}, 0x00020000")

def kstart(e, name):
    e(f".globl {name}\n.p2align 8\n.type {name},@function\n{name}:")

def kdesc(name, vgpr, accum, sgpr=102):
    return f""".amdhsa_kernel {name}
  .amdhsa_next_free_vgpr {vgpr}
  .amdhsa_next_free_sgpr {sgpr}
  .amdhsa_accum_offset {accum}
  .amdhsa_group_segment_fixed_size 0
  .amdhsa_kernarg_size 144
  .amdhsa_user_sgpr_count 2
  .amdhsa_user_sgpr_kernarg_segment_ptr 1
  .amdhsa_system_sgpr_workgroup_id_x 1
.end_amdhsa_kernel
"""

def gemm_loop(e, nsteps, reads, mfma, depth, nper, extra=None):
    for s in range(min(depth, nsteps)):
        for r in reads(s): e(r)
    for s in range(nsteps):
        if s + depth < nsteps:
            for r in reads(s + depth): e(r)
            out = depth * nper
        else:
            out = (nsteps - 1 - s) * nper
        e(f"s_waitcnt lgkmcnt({out})")
        e(mfma(s))
        if extra:
            for x in extra(s): e(x)

def w_dma(e, wsl, srdw, vofs, s_wave, s_cb, st0, st1):
    e(f"""
    v_lshrrev_b32 v4, 3, v1
    v_mul_u32_u24 v5, 896, v4
    v_and_b32 v6, 7, v1
    v_lshrrev_b32 v4, 2, v1
    v_and_b32 v4, 4, v4
    v_xor_b32 v6, v6, v4
    v_lshl_add_u32 v{vofs}, v6, 4, v5
    s_mul_i32 s{st0}, s{s_wave}, {14*1024}
    s_add_u32 m0, s{st0}, {wsl}
    s_mul_i32 s{st1}, s{s_wave}, {14*7168}
    s_lshl_b32 s{st0}, s{s_cb}, 7
    s_add_u32 s{st1}, s{st1}, s{st0}
    """)
    for i in range(14):
        e(f"buffer_load_dwordx4 v{vofs}, {sr(srdw,4)}, s{st1} offen lds")
        if i < 13:
            e(f"s_add_u32 m0, m0, 1024\ns_add_u32 s{st1}, s{st1}, 7168")

def w_tr_addr(e, vdst, wsl, s_wr, st):
    e(f"""
    v_lshrrev_b32 v4, 5, v1
    v_lshlrev_b32 v4, 3, v4
    v_bfe_u32 v5, v1, 2, 2
    v_add_u32 v4, v4, v5
    v_lshlrev_b32 v4, 7, v4
    v_bfe_u32 v5, v1, 4, 1
    v_lshlrev_b32 v5, 5, v5
    v_and_b32 v6, 3, v1
    v_lshl_add_u32 v5, v6, 3, v5
    s_lshl_b32 s{st}, s{s_wr}, 6
    v_add_u32 v5, s{st}, v5
    v_bfe_u32 v6, v1, 3, 1
    v_lshlrev_b32 v6, 6, v6
    v_xor_b32 v5, v5, v6
    v_add_u32 v4, v4, v5
    v_add_u32 v{vdst}, {wsl}, v4
    """)

K1_KG, K1_KGS = 0, 4608
K1_XS = 36864
K1_WSL = K1_XS + 64 * 912
K1_LDS = K1_WSL + 57344

def cmul(e, z, x, y, t, conj=False):
    e(f"v_pk_mul_f32 {vr(t,2)}, {vr(x,2)}, {vr(y,2)} op_sel:[0,0] op_sel_hi:[1,0]")
    neg = "neg_hi:[1,0,0]" if conj else "neg_lo:[1,0,0]"
    e(f"v_pk_fma_f32 {vr(z,2)}, {vr(x,2)}, {vr(y,2)}, {vr(t,2)} op_sel:[1,1,0] op_sel_hi:[0,1,1] {neg}")

def kernel1(e):
    kstart(e, "proj_kernel")
    e("""
    s_cmp_ge_u32 s2, 256
    s_cbranch_scc1 K1_END
    s_load_dwordx8 s[8:15], s[0:1], 0
    s_load_dwordx2 s[16:17], s[0:1], 112
    s_load_dwordx2 s[18:19], s[0:1], 136
    s_load_dwordx16 s[24:39], s[0:1], 48
    v_lshrrev_b32 v2, 6, v0
    v_and_b32 v1, 63, v0
    v_readfirstlane_b32 s3, v2
    s_and_b32 s4, s2, 7
    s_lshl_b32 s4, s4, 2
    s_bfe_u32 s5, s2, 0x20003
    s_add_u32 s4, s4, s5
    s_lshr_b32 s5, s2, 5
    s_waitcnt lgkmcnt(0)
    """)
    srd(e, 56, 18, WSSZ)
    e("""
    s_cmp_ge_u32 s3, 4
    s_cbranch_scc1 K1_KGEN
    """)
    srd(e, 40, 8, 2048 * 896)
    e(f"""
    v_lshlrev_b32 v2, 4, v1
    s_mul_i32 s20, s3, {16*912}
    s_add_u32 m0, s20, {K1_XS}
    s_lshl_b32 s21, s4, 6
    s_lshl_b32 s22, s3, 4
    s_add_u32 s21, s21, s22
    s_mul_i32 s21, s21, 896
    s_mov_b32 exec_hi, 0x00ffffff
    """)
    for i in range(16):
        e(f"buffer_load_dwordx4 v2, s[40:43], s21 offen lds")
        if i < 15: e("s_add_u32 m0, m0, 912\ns_add_u32 s21, s21, 896")
    e("""
    s_mov_b32 exec_hi, -1
    s_and_b32 s6, s3, 1
    s_lshr_b32 s7, s3, 1
    """)
    XB = 8
    e(f"""
    v_and_b32 v4, 31, v1
    s_lshl_b32 s20, s7, 5
    v_add_u32 v4, s20, v4
    v_mul_u32_u24 v4, 912, v4
    v_lshrrev_b32 v5, 5, v1
    v_lshl_add_u32 v4, v5, 4, v4
    v_add_u32 v{XB}, {K1_XS}, v4
    s_cmp_eq_u32 s5, 7
    s_cbranch_scc1 K1_KV
    """)
    srd(e, 44, 10, 448 * 896)
    w_dma(e, K1_WSL, 44, 3, 3, 5, 20, 21)
    WA = 9
    w_tr_addr(e, WA, K1_WSL, 6, 20)
    e(f"""
    v_lshrrev_b32 v4, 5, v1
    v_lshlrev_b32 v4, 3, v4
    v_bfe_u32 v5, v1, 2, 2
    v_add_u32 v4, v4, v5
    s_lshl_b32 s20, s7, 5
    v_add_u32 v4, s20, v4
    v_mul_u32_u24 v4, 912, v4
    v_bfe_u32 v5, v1, 4, 1
    v_lshlrev_b32 v5, 5, v5
    v_and_b32 v6, 3, v1
    v_lshl_add_u32 v5, v6, 3, v5
    v_add_u32 v4, v4, v5
    s_lshl_b32 s20, s5, 7
    s_lshl_b32 s21, s6, 6
    s_add_u32 s20, s20, s21
    s_add_u32 s21, s20, {K1_XS}
    v_add_u32 v10, s21, v4
    v_and_b32 v4, 31, v1
    v_lshlrev_b32 v4, 12, v4
    v_lshrrev_b32 v5, 5, v1
    v_lshl_add_u32 v11, v5, 4, v4
    s_lshl_b32 s20, s20, 11
    s_lshl_b32 s21, s4, 7
    s_lshl_b32 s22, s7, 6
    s_add_u32 s20, s20, s21
    s_add_u32 s20, s20, s22
    s_add_u32 s23, s20, {XT}
    """)
    e(f"""
    s_lshl_b32 s20, s5, 4
    s_lshl_b32 s21, s6, 3
    s_add_u32 s20, s20, s21
    v_lshrrev_b32 v5, 5, v1
    v_add_u32 v5, s20, v5
    v_and_b32 v6, 31, v1
    v_lshlrev_b32 v6, 4, v6
    """)
    for q4 in range(4):
        e(f"""
        v_add_u32 v4, {2*q4}, v5
        v_mul_u32_u24 v7, 147, v4
        v_lshrrev_b32 v7, 10, v7
        v_mul_u32_u24 v16, 7, v7
        v_sub_u32 v4, v4, v16
        v_lshl_add_u32 v7, v7, 11, v6
        v_lshrrev_b32 v16, 1, v4
        v_lshl_add_u32 v7, v16, 9, v7
        v_and_b32 v4, 1, v4
        v_lshl_add_u32 v{12+q4}, v4, 3, v7
        """)
    e(f"""
    s_lshl_b32 s20, s4, 1
    s_add_u32 s20, s20, s7
    s_lshl_b32 s22, s20, 15
    s_mov_b32 s60, {f2u(QSCALE)}
    s_waitcnt vmcnt(0)
    s_barrier
    """)
    e(f"""
    ds_read_b64_tr_b16 v[80:81], v10
    ds_read_b64_tr_b16 v[82:83], v10 offset:{4*912}
    ds_read_b64_tr_b16 v[84:85], v10 offset:{16*912}
    ds_read_b64_tr_b16 v[86:87], v10 offset:{20*912}
    s_waitcnt lgkmcnt(0)
    buffer_store_dwordx4 v[80:83], v11, s[56:59], s23 offen
    buffer_store_dwordx4 v[84:87], v11, s[56:59], s23 offen offset:32
    """)
    ACC, FB = 16, 32
    def rd_q(s):
        b = FB + 8 * (s % 5)
        return [f"ds_read_b64_tr_b16 {vr(b,2)}, v{WA} offset:{s*2048}",
                f"ds_read_b64_tr_b16 {vr(b+2,2)}, v{WA} offset:{s*2048+512}",
                f"ds_read_b128 {vr(b+4,4)}, v{XB} offset:{32*s}"]
    def mf_q(s):
        b = FB + 8 * (s % 5)
        return f"v_mfma_f32_32x32x16_bf16 {vr(ACC,16)}, {vr(b,4)}, {vr(b+4,4)}, " + ("0" if s == 0 else vr(ACC,16))
    gemm_loop(e, 28, rd_q, mf_q, 4, 3)
    e("s_nop 11")
    for r in range(16): e(f"v_mul_f32 v{ACC+r}, s60, v{ACC+r}")
    for i in range(8): e(f"v_cvt_pk_bf16_f32 v{FB+i}, v{ACC+2*i}, v{ACC+2*i+1}")
    for q4 in range(4): e(f"buffer_store_dwordx2 {vr(FB+2*q4,2)}, v{12+q4}, s[56:59], s22 offen")
    e("s_endpgm")
    e("K1_KV:")
    srd(e, 44, 12, 448 * 56)
    srd(e, 48, 14, 448 * 56)
    srd(e, 52, 16, 896)
    e(f"""
    s_lshl_b32 s21, s3, 10
    s_add_u32 m0, s21, {K1_WSL}
    s_nop 0
    """)
    for i in range(7):
        e(f"buffer_load_dwordx4 v2, s[44:47], s21 offen lds")
        e(f"s_add_u32 m0, m0, 28672\ns_nop 0")
        e(f"buffer_load_dwordx4 v2, s[48:51], s21 offen lds")
        if i < 6: e(f"s_sub_u32 m0, m0, {28672-4096}\ns_add_u32 s21, s21, 4096")
    e(f"""
    s_mov_b32 m0, 0
    s_nop 0
    buffer_load_dwordx4 v2, s[52:55], 0 offen lds
    v_lshrrev_b32 v4, 5, v1
    v_lshlrev_b32 v10, 4, v4
    v_lshlrev_b32 v4, 3, v4
    v_bfe_u32 v5, v1, 2, 2
    v_add_u32 v4, v4, v5
    v_mul_u32_u24 v4, 56, v4
    v_bfe_u32 v5, v1, 4, 1
    v_lshlrev_b32 v5, 5, v5
    v_and_b32 v6, 3, v1
    v_lshl_add_u32 v5, v6, 3, v5
    v_add_u32 v4, v4, v5
    s_mul_i32 s20, s6, 28672
    s_add_u32 s20, s20, {K1_WSL}
    v_add_u32 v{WA}, s20, v4
    s_lshl_b32 s20, s4, 1
    s_add_u32 s20, s20, s7
    s_lshl_b32 s22, s20, 12
    s_add_u32 s22, s22, {KVF}
    s_mov_b32 s62, 0
    s_mov_b32 s63, -1
    s_cmp_eq_u32 s6, 1
    s_cbranch_scc1 K1_V
    v_mov_b32 v11, 0
    s_waitcnt vmcnt(0)
    s_barrier
    """)
    def rd_k(s):
        b = FB + 12 * (s % 4)
        return [f"ds_read_b64_tr_b16 {vr(b,2)}, v{WA} offset:{s*896}",
                f"ds_read_b64_tr_b16 {vr(b+2,2)}, v{WA} offset:{s*896+224}",
                f"ds_read_b128 {vr(b+4,4)}, v{XB} offset:{32*s}",
                f"ds_read_b128 {vr(b+8,4)}, v10 offset:{32*s}"]
    def mf_k(s):
        b = FB + 12 * (s % 4)
        return f"v_mfma_f32_32x32x16_bf16 {vr(ACC,16)}, {vr(b,4)}, {vr(b+4,4)}, " + ("0" if s == 0 else vr(ACC,16))
    def ex_k(s):
        b = FB + 12 * (s % 4)
        return [f"v_dot2c_f32_bf16 v11, v{b+4+i}, v{b+8+i}" for i in range(4)]
    gemm_loop(e, 28, rd_k, mf_k, 3, 4, ex_k)
    e("s_nop 7")
    e(f"""
    v_mov_b32 v12, v11
    s_nop 1
    v_permlane32_swap_b32 v11, v12
    s_nop 1
    v_add_f32 v11, v11, v12
    v_mul_f32 v11, {f2u(-LOG2E)}, v11
    v_exp_f32 v11, v11
    s_nop 0
    v_add_f32 v11, 1.0, v11
    v_rcp_f32 v11, v11
    v_and_b32 v4, 31, v1
    v_lshlrev_b32 v13, 2, v4
    v_sub_f32 v12, 1.0, v11
    s_lshl_b32 s21, s20, 7
    s_add_u32 s21, s21, {GT}
    buffer_store_dword v11, v13, s[56:59], s21 offen
    s_add_u32 s21, s21, {OMG-GT}
    buffer_store_dword v12, v13, s[56:59], s21 offen
    """)
    for r in range(12, 16): e(f"v_cndmask_b32 v{ACC+r}, v{ACC+r}, 0, s[62:63]")
    e(f"v_mul_f32 v14, v{ACC}, v{ACC}")
    for r in range(1, 16): e(f"v_fmac_f32 v14, v{ACC+r}, v{ACC+r}")
    for i in range(8): e(f"v_cvt_pk_bf16_f32 v{FB+i}, v{ACC+2*i}, v{ACC+2*i+1}")
    e(f"""
    v_mov_b32 v15, v14
    v_mov_b32 v5, 0x3f803f80
    v_mov_b32 v6, 0x00003f80
    v_permlane32_swap_b32 v14, v15
    v_cndmask_b32 v{FB+6}, v{FB+6}, v5, s[62:63]
    v_cndmask_b32 v{FB+7}, v{FB+7}, v6, s[62:63]
    v_add_f32 v14, v14, v15
    v_lshlrev_b32 v4, 4, v4
    v_lshrrev_b32 v5, 5, v1
    v_lshl_add_u32 v4, v5, 3, v4
    """)
    for q4 in range(4): e(f"buffer_store_dwordx2 {vr(FB+2*q4,2)}, v4, s[56:59], s22 offen offset:{512*q4}")
    for ctl in ("row_shr:1", "row_shr:2", "row_shr:4", "row_shr:8"):
        e(f"v_max_f32_dpp v14, v14, v14 {ctl} row_mask:0xf bank_mask:0xf\ns_nop 1")
    e(f"""
    v_max_f32_dpp v14, v14, v14 row_bcast:15 row_mask:0xa bank_mask:0xf
    s_lshl_b32 s21, s20, 2
    s_add_u32 s21, s21, {KN}
    v_mov_b32 v5, 0
    s_mov_b32 exec_lo, 0x80000000
    s_mov_b32 exec_hi, 0
    buffer_store_dword v14, v5, s[56:59], s21 offen
    s_endpgm
    K1_V:
    s_waitcnt vmcnt(0)
    s_barrier
    """)
    def rd_v(s):
        b = FB + 8 * (s % 5)
        return [f"ds_read_b64_tr_b16 {vr(b,2)}, v{WA} offset:{s*896}",
                f"ds_read_b64_tr_b16 {vr(b+2,2)}, v{WA} offset:{s*896+224}",
                f"ds_read_b128 {vr(b+4,4)}, v{XB} offset:{32*s}"]
    def mf_v(s):
        b = FB + 8 * (s % 5)
        return f"v_mfma_f32_32x32x16_bf16 {vr(ACC,16)}, {vr(b+4,4)}, {vr(b,4)}, " + ("0" if s == 0 else vr(ACC,16))
    gemm_loop(e, 28, rd_v, mf_v, 4, 3)
    e(f"""
    v_and_b32 v4, 31, v1
    v_cmp_eq_u32 vcc, 28, v4
    v_mov_b32 v5, 0x3f803f80
    s_nop 8
    """)
    for i in range(8): e(f"v_cvt_pk_bf16_f32 v{FB+i}, v{ACC+2*i}, v{ACC+2*i+1}")
    for i in range(8): e(f"v_cndmask_b32 v{FB+i}, v{FB+i}, v5, vcc")
    e(f"""
    buffer_store_dwordx4 {vr(FB,4)}, v2, s[56:59], s22 offen offset:2048
    buffer_store_dwordx4 {vr(FB+4,4)}, v2, s[56:59], s22 offen offset:3072
    s_endpgm
    """)
    e(f"""
    K1_KGEN:
    s_cmp_ge_u32 s2, 224
    s_cbranch_scc1 K1_END
    s_sub_u32 s3, s3, 4
    s_lshr_b32 s6, s3, 2
    s_and_b32 s7, s3, 3
    s_lshl_b32 s4, s2, 1
    s_add_u32 s4, s4, s6
    s_lshl_b32 s20, s2, 2
    s_load_dword s21, s[36:37], s20
    s_load_dword s22, s[38:39], s20
    s_lshl_b32 s20, s4, 9
    s_lshl_b32 s23, s7, 7
    s_add_u32 s20, s20, s23
    v_lshl_add_u32 v8, v1, 1, s20
    """)
    for i in range(6): e(f"v_mov_b32 v{2+i}, 0")
    for i in range(6): e(f"global_load_short_d16_hi v{2+i}, v8, s[{24+2*i}:{25+2*i}]")
    e(f"""
    s_mul_i32 s23, s3, {K1_KGS}
    s_mov_b32 m0, s23
    v_and_b32 v9, 15, v1
    v_lshrrev_b32 v10, 4, v1
    v_mul_u32_u24 v11, 288, v9
    v_lshl_add_u32 v11, v10, 4, v11
    v_add_u32 v11, s23, v11
    v_mul_u32_u24 v12, 1088, v10
    v_lshl_add_u32 v12, v9, 2, v12
    v_add_u32 v12, s23, v12
    s_lshl_b32 s20, s6, 4
    s_waitcnt lgkmcnt(0)
    s_lshr_b32 s21, s21, s20
    s_lshl_b32 s21, s21, 16
    s_lshr_b32 s22, s22, s20
    s_lshl_b32 s22, s22, 16
    v_mov_b32 v13, s21
    v_mul_f32 v13, {f2u(LOG2E)}, v13
    v_exp_f32 v13, v13
    s_nop 0
    v_cvt_pk_bf16_f32 v13, v13, v13
    v_and_b32 v13, 0xffff0000, v13
    """)
    P1, P8, P256, P32 = 14, 16, 18, 20
    Y = [22, 24, 26, 28]
    X0, X2, X4, X6, XC = 30, 32, 34, 36, 38
    T0, T1 = 40, 42
    C = 44
    YF, XF, D = 48, 80, 112
    e(f"""
    s_waitcnt vmcnt(0)
    v_mul_f32 v2, v13, v2
    v_mul_f32 v3, v13, v3
    v_mul_f32 v2, {f2u(LOG2E)}, v2
    v_mul_f32 v3, 0.15915494, v3
    v_mul_f32 v4, v13, v4
    v_mul_f32 v5, v13, v5
    """)
    def anchor(dst, l, t):
        if l == 1:
            e(f"v_fract_f32 v{t+1}, v3\nv_exp_f32 v{t}, v2")
        else:
            e(f"v_mul_f32 v{t+1}, {f2u(float(l))}, v3\nv_mul_f32 v{t}, {f2u(float(l))}, v2\nv_fract_f32 v{t+1}, v{t+1}\nv_exp_f32 v{t}, v{t}")
        e(f"v_cos_f32 v{dst}, v{t+1}\nv_sin_f32 v{dst+1}, v{t+1}\ns_nop 0")
        e(f"v_pk_mul_f32 {vr(dst,2)}, {vr(dst,2)}, {vr(t,2)} op_sel:[0,0] op_sel_hi:[1,0]")
    anchor(P8, 8, T0)
    anchor(P1, 1, T1)
    anchor(P256, 256, T0)
    cmul(e, X0, 6, 4, T1)
    e(f"v_xor_b32 v{X0+1}, 0x80000000, v{X0+1}")
    cnt = [0]
    def put(src, row):
        c = C + (cnt[0] % 4); cnt[0] += 1
        e(f"v_cvt_pk_bf16_f32 v{c}, v{src}, v{src+1}")
        e(f"ds_write_addtid_b32 v{c} offset:{row*288}")
    tt = [0]
    def mul(z, x, y, conj=False):
        t = (T0, T1)[tt[0] % 2]; tt[0] += 1
        cmul(e, z, x, y, t, conj)
    def frags(dst):
        for ks in range(4): e(f"ds_read_b128 {vr(dst+4*ks,4)}, v11 offset:{64*ks}")
    e(f"v_mov_b32 v{C+3}, 0x3f80\nds_write_addtid_b32 v{C+3} offset:0")
    put(P8, 1)
    mul(Y[2], P8, P8); put(Y[2], 2)
    mul(Y[3], Y[2], P8); mul(P32, Y[2], Y[2]); put(Y[3], 3); put(P32, 4)
    mul(Y[1], P8, P32); put(Y[1], 5)
    mul(Y[2], Y[2], P32); put(Y[2], 6)
    mul(Y[3], Y[3], P32); put(Y[3], 7)
    mul(Y[0], P32, P32); put(Y[0], 8)
    for c in range(9, 32):
        if c == 16: frags(YF)
        mul(Y[c % 4], Y[c % 4], P32); put(Y[c % 4], c % 16)
    frags(YF + 16)
    put(X0, 4)
    mul(XC, X0, P1, True); put(XC, 5)
    mul(X2, XC, P1, True); put(X2, 6)
    mul(XC, X2, P1, True); put(XC, 7)
    mul(X4, XC, P1, True); put(X4, 8)
    mul(XC, X4, P1, True); put(XC, 9)
    mul(X6, XC, P1, True); put(X6, 10)
    mul(XC, X6, P1, True); put(XC, 11)
    mul(X0, X0, P256, True); put(X0, 0)
    mul(X2, X2, P256, True); put(X2, 12)
    mul(X4, X4, P256, True); put(X4, 13)
    mul(X6, X6, P256, True); put(X6, 14)
    mul(X0, X0, P256, True); put(X0, 1)
    mul(X4, X4, P256, True); put(X4, 15)
    mul(X0, X0, P256, True); put(X0, 2)
    mul(X4, X4, P256, True)
    mul(X0, X0, P256, True); put(X0, 3)
    frags(XF)
    put(X4, 12)
    for r in range(4):
        mul(X0, X0, P256, True); put(X0, r)
    frags(XF + 16)
    e("s_waitcnt lgkmcnt(4)")
    def mm(rt, ct, ks):
        d = D + 4 * (2 * rt + ct)
        e(f"v_mfma_f32_16x16x32_bf16 {vr(d,4)}, {vr(XF+16*rt+4*ks,4)}, {vr(YF+16*ct+4*ks,4)}, " + ("0" if ks == 0 else vr(d,4)))
    for ks in range(4):
        for ct in range(2): mm(0, ct, ks)
    e("s_waitcnt lgkmcnt(0)")
    for ks in range(4):
        for ct in range(2): mm(1, ct, ks)
    e("s_nop 1")
    for rt in range(2):
        if rt == 1: e("s_nop 3")
        for ct in range(2):
            for r in range(4):
                e(f"ds_write_b32 v12, v{D+4*(2*rt+ct)+r} offset:{(4*rt+r)*128+ct*64}")
    e(f"""
    s_mul_i32 s23, s6, {4*K1_KGS}
    s_mul_i32 s20, s4, {KRS}
    s_add_u32 s20, s20, {KR+64}
    s_lshl_b32 s21, s7, 6
    v_add_u32 v2, s21, v1
    v_sub_u32 v3, 255, v2
    v_lshlrev_b32 v3, 4, v3
    v_add_u32 v10, {KRO-2}, v3
    s_waitcnt lgkmcnt(0)
    s_barrier
    s_cmp_eq_u32 s7, 0
    s_cbranch_scc1 K1_T0
    v_lshlrev_b32 v4, 2, v2
    v_add_u32 v4, s23, v4
    v_subrev_u32 v4, 128, v4
    """)
    e(f"""
    ds_read2st64_b32 v[16:17], v4 offset0:0 offset1:18
    ds_read2st64_b32 v[18:19], v4 offset0:36 offset1:54
    v_add_u32 v5, 4, v4
    ds_read2st64_b32 v[20:21], v5 offset0:0 offset1:18
    ds_read2st64_b32 v[22:23], v5 offset0:36 offset1:54
    s_cmp_eq_u32 s7, 1
    s_cbranch_scc0 K1_T2
    v_add_u32 v5, {3648-128}, v4
    ds_read2st64_b32 v[24:25], v5 offset0:0 offset1:18
    ds_read2st64_b32 v[26:27], v5 offset0:36 offset1:54
    s_waitcnt lgkmcnt(0)
    v_add_f32 v16, v16, v17
    v_add_f32 v18, v18, v19
    v_add_f32 v20, v20, v21
    v_add_f32 v22, v22, v23
    v_add_f32 v24, v24, v25
    v_add_f32 v26, v26, v27
    v_add_f32 v16, v16, v18
    v_add_f32 v20, v20, v22
    v_add_f32 v24, v24, v26
    v_cvt_pk_bf16_f32 v28, v20, v20
    v_cvt_pk_bf16_f32 v29, v24, v24
    v_cvt_pk_bf16_f32 v30, v24, v16
    v_cvt_pk_bf16_f32 v31, v16, v16
    s_branch K1_TST
    K1_T2:
    v_and_b32 v5, 1, v1
    v_cmp_eq_u32 vcc, 1, v5
    v_mov_b32 v32, 0
    v_mov_b32 v33, 0
    v_mov_b32 v34, 0
    v_mov_b32 v35, 0
    v_lshlrev_b32 v5, 4, v1
    v_add_u32 v6, {KRO+4094-64}, v5
    v_add_u32 v5, 4096, v5
    v_cmp_gt_u32 s[62:63], 4, v1
    s_nop 1
    v_cndmask_b32 v5, v6, v5, s[62:63]
    s_mov_b64 exec, 0xff
    buffer_store_dwordx4 v[32:35], v5, s[56:59], s20 offen
    s_mov_b64 exec, -1
    s_waitcnt lgkmcnt(0)
    v_add_f32 v16, v16, v17
    v_add_f32 v18, v18, v19
    v_add_f32 v20, v20, v21
    v_add_f32 v22, v22, v23
    v_add_f32 v16, v16, v18
    v_add_f32 v20, v20, v22
    v_cndmask_b32 v24, v16, v20, vcc
    v_cvt_pk_bf16_f32 v28, v20, v20
    v_cvt_pk_bf16_f32 v29, v20, v24
    v_cvt_pk_bf16_f32 v30, v16, v16
    v_cvt_pk_bf16_f32 v31, v16, v16
    s_branch K1_TST
    K1_T0:
    v_and_b32 v4, 31, v1
    v_lshlrev_b32 v4, 2, v4
    v_add_u32 v4, s23, v4
    v_lshrrev_b32 v5, 5, v1
    """)
    A0 = [1088, 1216, 1344, 1472, 2176, 2304, 2432, 2560]
    A1 = [0, 0, 3264, 3392, 3392, 3392, 3520, 4]
    for j in range(8):
        e(f"""
        s_movk_i32 s21, {A1[j]-A0[j]}
        v_add_u32 v6, {A0[j]}, v4
        v_mad_i32_i24 v6, v5, s21, v6
        ds_read2st64_b32 {vr(32+4*j,2)}, v6 offset0:0 offset1:18
        ds_read2st64_b32 {vr(34+4*j,2)}, v6 offset0:36 offset1:54
        """)
        if j == 6: e("s_waitcnt lgkmcnt(8)")
    e(f"""
    v_cmp_eq_u32 vcc, 0, v1
    v_mov_b32 v7, s22
    s_nop 0
    v_cndmask_b32 v7, 0, v7, vcc
    s_waitcnt lgkmcnt(0)
    """)
    for j in range(8):
        e(f"v_add_f32 v{32+4*j}, v{32+4*j}, v{33+4*j}\nv_add_f32 v{34+4*j}, v{34+4*j}, v{35+4*j}")
    e("v_add_f32 v32, v32, v7")
    for j in range(8):
        e(f"v_add_f32 v{32+4*j}, v{32+4*j}, v{34+4*j}")
    for i in range(4):
        e(f"v_cvt_pk_bf16_f32 v{28+i}, v{32+4*(7-2*i)}, v{32+4*(6-2*i)}")
    e(f"""
    K1_TST:
    buffer_store_dwordx4 v[28:31], v3, s[56:59], s20 offen
    buffer_store_dwordx4 v[28:31], v10, s[56:59], s20 offen
    K1_END:
    s_endpgm
    """)

K2_WR = 27648
K2_U = 19456
K2_MX = 4 * K2_WR
K2_LDS = K2_MX + 4096
SAFE_BOUND = 80.0
SHIFT = 64.0

def kernel2(e):
    Q, S, P, KV, CF, OM, M = 16, (48, 64), (80, 88), (96, 112), (128, 144), 160, 176
    O, CA = 0, 64
    kstart(e, "attn_kernel")
    e(f"""
    s_cmp_ge_u32 s2, 256
    s_cbranch_scc1 K2_END
    s_load_dwordx2 s[4:5], s[0:1], 136
    v_lshrrev_b32 v2, 6, v0
    v_and_b32 v1, 63, v0
    v_readfirstlane_b32 s3, v2
    v_lshlrev_b32 v2, 4, v1
    s_lshr_b32 s6, s2, 2
    s_and_b32 s7, s2, 3
    s_waitcnt lgkmcnt(0)
    """)
    srd(e, 8, 4, WSSZ)
    e(f"""
    s_add_u32 s16, s4, {KN}
    s_addc_u32 s17, s5, 0
    s_load_dwordx16 s[36:51], s[16:17], 0
    s_load_dwordx16 s[52:67], s[16:17], 64
    s_load_dwordx16 s[68:83], s[16:17], 128
    s_load_dwordx16 s[84:99], s[16:17], 192
    """)
    e(f"""
    s_lshl_b32 s18, s6, 4
    s_lshl_b32 s19, s7, 2
    s_add_u32 s18, s18, s19
    s_lshl_b32 s18, s18, 11
    """)
    for j in range(4):
        e(f"""
        s_add_u32 s19, s3, {j}
        s_and_b32 s19, s19, 3
        s_lshl_b32 s19, s19, 11
        s_add_u32 s19, s19, s18
        buffer_load_dwordx4 {vr(Q+8*j,4)}, v2, s[8:11], s19 offen
        buffer_load_dwordx4 {vr(Q+8*j+4,4)}, v2, s[8:11], s19 offen offset:1024
        """)
    e(f"""
    s_lshl_b32 s20, s3, 16
    s_add_u32 s20, s20, {KVF}
    buffer_load_dwordx4 {vr(KV[0],4)}, v2, s[8:11], s20 offen
    buffer_load_dwordx4 {vr(KV[0]+4,4)}, v2, s[8:11], s20 offen offset:1024
    buffer_load_dwordx4 {vr(KV[0]+8,4)}, v2, s[8:11], s20 offen offset:2048
    buffer_load_dwordx4 {vr(KV[0]+12,4)}, v2, s[8:11], s20 offen offset:3072
    s_add_u32 s20, s20, 4096
    """)
    e(f"""
    s_lshr_b32 s21, s3, 1
    s_lshl_b32 s22, s2, 1
    s_add_u32 s21, s21, s22
    s_min_u32 s21, s21, 447
    s_and_b32 s22, s3, 1
    s_lshl_b32 s23, s21, 12
    s_add_u32 s23, s23, {XT}
    s_add_u32 s12, s4, s23
    s_addc_u32 s13, s5, 0
    s_mov_b32 s14, 4096
    s_mov_b32 s15, 0x00020000
    s_mul_i32 s24, s3, {K2_WR}
    v_lshlrev_b32 v3, 6, v1
    v_add_u32 v4, 2048, v3
    v_subrev_u32 v3, 2048, v3
    s_add_u32 m0, s24, {K2_U}
    """)
    for j in range(8):
        e(f"s_movk_i32 s25, {16*(j>>1)}")
        e(f"buffer_load_dwordx4 v{3+(j&1)}, s[12:15], s25 offen lds")
        if j < 7: e("s_add_u32 m0, m0, 1024")
    e(f"""
    v_sub_u32 v6, 63, v1
    v_and_b32 v7, 1, v6
    v_mul_u32_u24 v7, {KRO}, v7
    v_lshrrev_b32 v6, 1, v6
    v_lshl_add_u32 v5, v6, 2, v7
    s_mul_i32 s26, s21, {KRS}
    s_add_u32 s26, s26, {KR+64+2*(1984+32)}
    s_lshl_b32 s25, s22, 10
    s_sub_u32 s26, s26, s25
    s_sub_u32 s27, s26, 2048
    s_mov_b32 s28, s24
    """)
    def f_dma():
        e(f"""
        s_mov_b32 m0, s28
        s_add_u32 s25, s28, 9216
        buffer_load_dwordx4 v5, s[8:11], s26 offen lds
        s_mov_b32 m0, s25
        s_sub_u32 s26, s26, 128
        buffer_load_dwordx4 v5, s[8:11], s27 offen lds
        s_sub_u32 s27, s27, 128
        s_add_u32 s28, s28, 1024
        """)
    f_dma(); f_dma()
    e(f"""
    buffer_load_dwordx4 {vr(KV[1],4)}, v2, s[8:11], s20 offen
    buffer_load_dwordx4 {vr(KV[1]+4,4)}, v2, s[8:11], s20 offen offset:1024
    v_and_b32 v6, 31, v1
    v_lshrrev_b32 v7, 5, v1
    v_lshlrev_b32 v8, 2, v6
    s_lshl_b32 s25, s6, 7
    s_add_u32 s25, s25, {GT}
    buffer_load_dword v{M}, v8, s[8:11], s25 offen
    v_lshlrev_b32 v8, 7, v6
    v_lshl_add_u32 v8, v7, 4, v8
    s_lshl_b32 s25, s22, 12
    s_add_u32 s25, s25, {OMG}
    """)
    for q4 in range(4): e(f"buffer_load_dwordx4 {vr(OM+4*q4,4)}, v8, s[8:11], s25 offen offset:{32*q4}")
    e(f"""
    v_lshlrev_b32 v8, 3, v7
    v_sub_u32 v8, v6, v8
    v_add_u32 v8, 16, v8
    v_lshl_add_u32 v9, v8, 4, s24
    v_lshlrev_b32 v8, 4, v6
    v_lshl_add_u32 v8, v7, 11, v8
    s_lshl_b32 s25, s22, 8
    s_sub_u32 s25, s24, s25
    s_add_u32 s25, s25, {K2_U+16*31}
    v_add_u32 v10, s25, v8
    s_mov_b32 s30, 0
    s_mov_b32 s31, -1
    """)
    for i in range(96): e(f"v_accvgpr_write_b32 a{i}, 0")
    for i in range(8): e(f"v_mov_b32 v{P[1]+i}, 0")
    for i in range(8): e(f"v_mov_b32 v{KV[1]+8+i}, 0")
    e("s_waitcnt lgkmcnt(0)")
    n = 64
    while n > 1:
        n //= 2
        for i in range(n): e(f"s_max_u32 s{36+i}, s{36+i}, s{36+n+i}")
    e("s_waitcnt vmcnt(23)")
    for j in range(4):
        e(f"v_cndmask_b32 v{Q+8*j+6}, v{Q+8*j+6}, 0, s[30:31]\nv_cndmask_b32 v{Q+8*j+7}, v{Q+8*j+7}, 0, s[30:31]\nv_mov_b32 v{M+2+j}, 0")
    for i in range(8):
        for j in range(4): e(f"v_dot2c_f32_bf16 v{M+2+j}, v{Q+8*j+i}, v{Q+8*j+i}")
    e("s_nop 2")
    for j in range(4): e(f"v_mov_b32 v{M+6+j}, v{M+2+j}")
    e("s_nop 0")
    for j in range(4): e(f"v_permlane32_swap_b32 v{M+2+j}, v{M+6+j}")
    e("s_nop 0")
    for j in range(4): e(f"v_add_f32 v{M+2+j}, v{M+2+j}, v{M+6+j}")
    for j in range(4): e(f"v_mul_f32 v{M+2+j}, s36, v{M+2+j}")
    for j in range(4): e(f"v_sqrt_f32 v{M+2+j}, v{M+2+j}")
    e(f"""
    s_mov_b32 s32, {f2u(SAFE_BOUND)}
    v_max_f32 v{M+6}, v{M+2}, v{M+3}
    v_max3_f32 v{M+6}, v{M+6}, v{M+4}, v{M+5}
    v_cmp_nle_f32 vcc, v{M+6}, s32
    """)
    for j in range(4): e(f"v_sub_f32 v{M+2+j}, {f2u(SHIFT)}, v{M+2+j}")
    e("s_cbranch_vccnz K2_FALLBACK")
    for j in range(4): e(f"v_cvt_pk_bf16_f32 v{M+2+j}, v{M+2+j}, 0")
    for j in range(4): e(f"v_cndmask_b32 v{Q+8*j+6}, v{Q+8*j+6}, v{M+2+j}, s[30:31]")
    e("K2_MAIN:")
    def qk(i, tile):
        kb = KV[(tile >> 2) & 1]; s = S[tile & 1]; q = Q + 8 * (tile & 3)
        return f"v_mfma_f32_32x32x16_bf16 {vr(s,16)}, {vr(kb+4*i,4)}, {vr(q+4*i,4)}, " + ("0" if i == 0 else vr(s,16))
    def pv(i, tile):
        vb = KV[(tile >> 2) & 1] + 8; p = P[tile & 1]; o = O + 16 * (tile & 3)
        return f"v_mfma_f32_32x32x16_bf16 {ar(o,16)}, {vr(vb+4*i,4)}, {vr(p+4*i,4)}, {ar(o,16)}"
    def cread(k):
        c = CF[k & 1]; sp = (k >> 1) & 1; h = k & 1
        fo = 512 * sp + 256 * (1 - h); uo = 4096 * h + 16 * (1 - sp)
        return [f"ds_read_b128 {vr(c,4)}, v9 offset:{fo}", f"ds_read_b128 {vr(c+8,4)}, v10 offset:{uo}",
                f"ds_read_b128 {vr(c+4,4)}, v9 offset:{fo+9216}", f"ds_read_b128 {vr(c+12,4)}, v10 offset:{uo+512}"]
    def cm(k, i):
        c = CF[k & 1]
        a, b, d = ((c, c + 8, CA), (c + 4, c + 8, CA + 16), (c, c + 12, CA + 16))[i]
        return f"v_mfma_f32_32x32x16_bf16 {ar(d,16)}, {vr(a,4)}, {vr(b,4)}, {ar(d,16)}"
    e("s_waitcnt vmcnt(5)")
    e(qk(0, 0)); e(qk(1, 0))
    for r in cread(0): e(r)
    e("s_mov_b32 s29, 8\ns_nop 7\ns_nop 1")
    e(".p2align 6\nK2_LOOP:")
    for j in range(8):
        s = S[j & 1]; p = P[j & 1]
        k = j >> 1
        pre = []
        if j == 1: pre.append("s_waitcnt vmcnt(2)")
        if j == 3: pre.append("s_waitcnt vmcnt(4)")
        if j == 5: pre.append("s_waitcnt vmcnt(4)")
        if j == 7: pre.append("s_waitcnt vmcnt(2)")
        if j % 2 == 0: pre.append("s_waitcnt lgkmcnt(0)")
        mf = [qk(0, j + 1), qk(1, j + 1)]
        if j % 2 == 0: mf += [cm(k, 0), pv(0, (j - 1) & 7), cm(k, 1), pv(1, (j - 1) & 7)]
        else: mf += [pv(0, j - 1), cm(k, 2), pv(1, j - 1)]
        va = []
        for i in range(16):
            va.append(("e", f"v_exp_f32 v{s+i}, v{s+i}"))
            if i >= 2 and i % 2 == 0: va.append(("c", f"v_cvt_pk_bf16_f32 v{p+(i-2)//2}, v{s+i-2}, v{s+i-1}"))
        va.append(("n", "s_nop 0"))
        va.append(("c", f"v_cvt_pk_bf16_f32 v{p+7}, v{s+14}, v{s+15}"))
        cost = {"e": 8, "c": 4, "n": 0}
        tot = sum(cost[t] for t, _ in va)
        side = {i: [] for i in range(len(mf))}
        rd = cread(k + 1)
        if j % 2 == 0:
            if j == 6: side[0] += ["v_add_u32 v9, 1024, v9", "v_subrev_u32 v10, 32, v10"]
            side[4] += rd[0:1]; side[5] += rd[1:2]
        else:
            side[0] += rd[2:3]; side[1] += rd[3:4]
        def ld(reg, off): return f"buffer_load_dwordx4 {vr(reg,4)}, v2, s[8:11], s20 offen offset:{off}"
        if j == 1: side[2] += [ld(KV[1] + 8, 2048)]; side[3] += [ld(KV[1] + 12, 3072), "s_add_u32 s20, s20, 4096"]
        if j == 3: side[2] += [ld(KV[0], 0)]; side[3] += [ld(KV[0] + 4, 1024)]
        if j == 5: side[2] += [ld(KV[0] + 8, 2048)]; side[3] += [ld(KV[0] + 12, 3072), "s_add_u32 s20, s20, 4096"]
        if j == 7: side[2] += [ld(KV[1], 0)]; side[3] += [ld(KV[1] + 4, 1024)]
        if j == 2:
            side[1] += ["s_mov_b32 m0, s28", "s_add_u32 s25, s28, 9216", "buffer_load_dwordx4 v5, s[8:11], s26 offen lds"]
            side[3] += ["s_mov_b32 m0, s25", "s_sub_u32 s26, s26, 128", "buffer_load_dwordx4 v5, s[8:11], s27 offen lds",
                        "s_sub_u32 s27, s27, 128", "s_add_u32 s28, s28, 1024"]
        if j == 7: side[4] += ["s_sub_u32 s29, s29, 1", "s_cmp_lg_u32 s29, 0"]
        for x in pre: e(x)
        vi = 0; acc = 0
        for mi, m in enumerate(mf):
            e(m)
            for x in side[mi]: e(x)
            target = tot * (mi + 1) / len(mf)
            while vi < len(va) and (acc + cost[va[vi][0]] / 2 <= target or mi == len(mf) - 1):
                e(va[vi][1]); acc += cost[va[vi][0]]; vi += 1
    e("s_cbranch_scc1 K2_LOOP")
    e("s_nop 0")
    e(pv(0, 7)); e(pv(1, 7))
    e(f"""
    s_waitcnt lgkmcnt(0) vmcnt(0)
    v_add_u32 v8, s24, v2
    s_cmp_eq_u32 s22, 0
    s_cbranch_scc1 K2_C0
    """)
    for i in range(4): e(f"ds_write_b128 v8, {ar(CA+4*i,4)} offset:{1024*i}")
    for i in range(16): e(f"v_accvgpr_read_b32 v{S[1]+i}, a{CA+16+i}")
    e("s_branch K2_C1\nK2_C0:")
    for i in range(4): e(f"ds_write_b128 v8, {ar(CA+16+4*i,4)} offset:{1024*i}")
    for i in range(16): e(f"v_accvgpr_read_b32 v{S[1]+i}, a{CA+i}")
    e("K2_C1:")
    for d in range(1, 4):
        for i in range(4): e(f"ds_write_b128 v8, {ar(O+16*d+4*i,4)} offset:{4096*d+1024*i}")
    for i in range(16): e(f"v_accvgpr_read_b32 v{S[0]+i}, a{O+i}")
    for d in range(1, 4):
        e(f"s_sub_u32 s25, s3, {d}\ns_and_b32 s25, s25, 3\ns_mul_i32 s25, s25, {K2_WR}\nv_add_u32 v{M+2+d}, s25, v2")
    e(f"""
    s_xor_b32 s25, s3, 1
    s_mul_i32 s25, s25, {K2_WR}
    v_add_u32 v{M+2}, s25, v2
    s_waitcnt lgkmcnt(0)
    s_barrier
    """)
    R = 96
    for d in range(1, 4):
        for i in range(4): e(f"ds_read_b128 {vr(R+16*d+4*i,4)}, v{M+2+d} offset:{4096*d+1024*i}")
    e("s_waitcnt lgkmcnt(8)")
    for i in range(4): e(f"ds_read_b128 {vr(R+4*i,4)}, v{M+2} offset:{1024*i}")
    for i in range(16): e(f"v_add_f32 v{S[0]+i}, v{S[0]+i}, v{R+16+i}")
    e("s_waitcnt lgkmcnt(8)")
    for i in range(16): e(f"v_add_f32 v{S[0]+i}, v{S[0]+i}, v{R+32+i}")
    e("s_waitcnt lgkmcnt(4)")
    for i in range(16): e(f"v_add_f32 v{S[0]+i}, v{S[0]+i}, v{R+48+i}")
    e(f"""
    v_mov_b32 v{M+6}, v{S[0]+12}
    v_mov_b32 v{M+7}, v{S[0]+12}
    s_lshl_b32 s25, s7, 2
    s_add_u32 s25, s25, s3
    s_mul_i32 s25, s25, 7
    v_permlane32_swap_b32 v{M+6}, v{M+7}
    v_add_u32 v8, s25, v7
    v_rcp_f32 v{M+7}, v{M+7}
    v_lshrrev_b32 v11, 1, v8
    v_and_b32 v8, 1, v8
    v_lshlrev_b32 v11, 9, v11
    v_lshl_add_u32 v11, v8, 3, v11
    v_lshl_add_u32 v11, v6, 4, v11
    v_mul_f32 v{M+7}, v{M+7}, v{M}
    s_mul_i32 s25, s6, 28672
    s_add_u32 s25, s25, {OF}
    """)
    for i in range(16): e(f"v_mul_f32 v{S[0]+i}, v{S[0]+i}, v{M+7}")
    for i in range(8): e(f"v_cvt_pk_bf16_f32 v{P[0]+i}, v{S[0]+2*i}, v{S[0]+2*i+1}")
    for q4 in range(3): e(f"buffer_store_dwordx2 {vr(P[0]+2*q4,2)}, v11, s[8:11], s25 offen offset:{512*q4}")
    e(f"""
    s_mov_b32 exec_hi, 0
    buffer_store_dwordx2 {vr(P[0]+6,2)}, v11, s[8:11], s25 offen offset:1536
    s_mov_b32 exec_hi, -1
    s_cmp_ge_u32 s2, 224
    s_cbranch_scc1 K2_END
    s_waitcnt lgkmcnt(0)
    """)
    for i in range(16): e(f"v_add_f32 v{S[1]+i}, v{S[1]+i}, v{R+i}")
    for i in range(16): e(f"v_mul_f32 v{S[1]+i}, v{S[1]+i}, v{OM+i}")
    for i in range(8): e(f"v_cvt_pk_bf16_f32 v{P[1]+i}, v{S[1]+2*i}, v{S[1]+2*i+1}")
    e(f"""
    v_lshlrev_b32 v8, 6, v6
    v_lshl_add_u32 v8, v7, 4, v8
    v_permlane32_swap_b32 v{P[1]}, v{P[1]+2}
    v_permlane32_swap_b32 v{P[1]+1}, v{P[1]+3}
    v_permlane32_swap_b32 v{P[1]+4}, v{P[1]+6}
    v_permlane32_swap_b32 v{P[1]+5}, v{P[1]+7}
    s_lshl_b32 s25, s21, 12
    s_lshl_b32 s26, s22, 11
    s_add_u32 s25, s25, s26
    s_add_u32 s25, s25, {BT}
    buffer_store_dwordx4 {vr(P[1],4)}, v8, s[8:11], s25 offen
    buffer_store_dwordx4 {vr(P[1]+4,4)}, v8, s[8:11], s25 offen offset:32
    K2_END:
    s_endpgm
    """)
    T = CF[0]
    e(f"""
    K2_FALLBACK:
    s_lshl_b32 s33, s3, 16
    s_add_u32 s33, s33, {KVF}
    s_mov_b32 s34, 16
    """)
    for j in range(4): e(f"v_mov_b32 v{M+2+j}, 0xff800000")
    e(f"""
    K2_FB_LOOP:
    buffer_load_dwordx4 {vr(T,4)}, v2, s[8:11], s33 offen
    buffer_load_dwordx4 {vr(T+4,4)}, v2, s[8:11], s33 offen offset:1024
    s_add_u32 s33, s33, 4096
    s_waitcnt vmcnt(0)
    """)
    for j in range(4):
        s = S[j & 1]
        e(f"v_mfma_f32_32x32x16_bf16 {vr(s,16)}, {vr(T,4)}, {vr(Q+8*j,4)}, 0")
        e(f"v_mfma_f32_32x32x16_bf16 {vr(s,16)}, {vr(T+4,4)}, {vr(Q+8*j+4,4)}, {vr(s,16)}")
        e("s_nop 11")
        for i in range(8): e(f"v_max3_f32 v{M+2+j}, v{M+2+j}, v{s+2*i}, v{s+2*i+1}")
    e(f"""
    s_sub_u32 s34, s34, 1
    s_cmp_lg_u32 s34, 0
    s_cbranch_scc1 K2_FB_LOOP
    """)
    for j in range(4): e(f"v_mov_b32 v{M+6+j}, v{M+2+j}")
    e("s_nop 0")
    for j in range(4): e(f"v_permlane32_swap_b32 v{M+2+j}, v{M+6+j}")
    e("s_nop 0")
    for j in range(4): e(f"v_max_f32 v{M+2+j}, v{M+2+j}, v{M+6+j}")
    e("v_lshlrev_b32 v8, 2, v1")
    for j in range(4):
        e(f"""
        s_add_u32 s33, s3, {j}
        s_and_b32 s33, s33, 3
        s_lshl_b32 s33, s33, 10
        s_add_u32 s33, s33, {K2_MX}
        v_add_u32 v{M+6+j}, s33, v8
        s_lshl_b32 s34, s3, 8
        v_add_u32 v11, s34, v{M+6+j}
        ds_write_b32 v11, v{M+2+j}
        """)
    e("s_waitcnt lgkmcnt(0)\ns_barrier")
    for j in range(4):
        e(f"ds_read2st64_b32 {vr(T+4*j,2)}, v{M+6+j} offset0:0 offset1:1\nds_read2st64_b32 {vr(T+4*j+2,2)}, v{M+6+j} offset0:2 offset1:3")
    e("s_waitcnt lgkmcnt(0)")
    for j in range(4):
        m = M + 2 + j; t = T + 4 * j
        e(f"""
        v_max_f32 v{m}, v{t}, v{t+1}
        v_max3_f32 v{m}, v{m}, v{t+2}, v{t+3}
        v_sub_f32 v{m}, 0, v{m}
        v_cvt_pk_bf16_f32 v{t}, v{m}, v{m}
        v_and_b32 v{t+1}, 0xffff0000, v{t}
        v_sub_f32 v{m}, v{m}, v{t+1}
        v_cvt_pk_bf16_f32 v{t+2}, v{m}, v{m}
        v_and_b32 v{t+1}, 0xffff0000, v{t+2}
        v_sub_f32 v{m}, v{m}, v{t+1}
        v_cvt_pk_bf16_f32 v{t+3}, v{m}, 0
        v_and_b32 v{t}, 0xffff, v{t}
        v_or_b32 v{t}, v{t}, v{t+1}
        v_cndmask_b32 v{Q+8*j+6}, v{Q+8*j+6}, v{t}, s[30:31]
        v_cndmask_b32 v{Q+8*j+7}, v{Q+8*j+7}, v{t+3}, s[30:31]
        """)
    e("s_nop 1\ns_branch K2_MAIN")

K3_WSL = 57344
K3_LDS = 2 * 57344

def kernel3(e):
    kstart(e, "out_kernel")
    e(f"""
    s_cmp_ge_u32 s2, 224
    s_cbranch_scc1 K3_END
    s_load_dwordx2 s[8:9], s[0:1], 32
    s_load_dwordx2 s[10:11], s[0:1], 120
    s_load_dwordx2 s[12:13], s[0:1], 136
    v_lshrrev_b32 v2, 6, v0
    v_and_b32 v1, 63, v0
    v_readfirstlane_b32 s3, v2
    s_and_b32 s4, s2, 7
    s_lshl_b32 s4, s4, 2
    s_bfe_u32 s5, s2, 0x20003
    s_add_u32 s4, s4, s5
    s_lshr_b32 s5, s2, 5
    v_lshlrev_b32 v2, 4, v1
    s_waitcnt lgkmcnt(0)
    """)
    srd(e, 44, 8, 448 * 896)
    srd(e, 48, 10, 2048 * 896)
    srd(e, 56, 12, WSSZ)
    w_dma(e, K3_WSL, 44, 3, 3, 5, 20, 21)
    e(f"""
    s_mul_i32 s20, s3, {14*1024}
    s_mov_b32 m0, s20
    s_mul_i32 s21, s4, 57344
    s_add_u32 s21, s21, s20
    s_add_u32 s21, s21, {OF}
    """)
    for i in range(14):
        e("buffer_load_dwordx4 v2, s[56:59], s21 offen lds")
        if i < 13: e("s_add_u32 m0, m0, 1024\ns_add_u32 s21, s21, 1024")
    BF, ID, ACC, FB = 80, 88, 16, 32
    e(f"""
    s_and_b32 s6, s3, 1
    s_lshr_b32 s7, s3, 1
    v_and_b32 v10, 31, v1
    v_lshrrev_b32 v11, 5, v1
    v_lshlrev_b32 v4, 12, v10
    v_lshl_add_u32 v4, v11, 4, v4
    s_lshl_b32 s20, s5, 1
    s_add_u32 s20, s20, s6
    s_lshl_b32 s21, s4, 1
    s_add_u32 s21, s21, s7
    s_lshl_b32 s22, s20, 17
    s_lshl_b32 s23, s21, 6
    s_add_u32 s22, s22, s23
    s_add_u32 s22, s22, {BT}
    buffer_load_dwordx4 {vr(BF,4)}, v4, s[56:59], s22 offen
    buffer_load_dwordx4 {vr(BF+4,4)}, v4, s[56:59], s22 offen offset:32
    s_mul_i32 s22, s21, {32*896}
    s_lshl_b32 s23, s20, 6
    s_add_u32 s22, s22, s23
    v_mul_u32_u24 v12, 896, v10
    v_lshl_add_u32 v12, v11, 4, v12
    s_mul_i32 s23, s7, 28672
    v_add_u32 v8, s23, v2
    """)
    w_tr_addr(e, 9, K3_WSL, 6, 20)
    e(f"""
    v_and_b32 v4, 1, v10
    v_lshlrev_b32 v4, 4, v4
    v_mov_b32 v5, 0x3f80
    v_lshlrev_b32 v5, v4, v5
    v_lshrrev_b32 v6, 1, v10
    v_lshlrev_b32 v7, 2, v11
    v_sub_u32 v6, v6, v7
    """)
    for s in range(2):
        for w in range(4):
            e(f"v_cmp_eq_u32 vcc, {8*s+w}, v6\ns_nop 1\nv_cndmask_b32 v{ID+4*s+w}, 0, v5, vcc")
    e("s_waitcnt vmcnt(0)\ns_barrier")
    e(f"v_mfma_f32_32x32x16_bf16 {vr(ACC,16)}, {vr(BF,4)}, {vr(ID,4)}, 0")
    e(f"v_mfma_f32_32x32x16_bf16 {vr(ACC,16)}, {vr(BF+4,4)}, {vr(ID+4,4)}, {vr(ACC,16)}")
    def rd(s):
        b = FB + 8 * (s % 5)
        return [f"ds_read_b64_tr_b16 {vr(b,2)}, v9 offset:{s*2048}",
                f"ds_read_b64_tr_b16 {vr(b+2,2)}, v9 offset:{s*2048+512}",
                f"ds_read_b128 {vr(b+4,4)}, v8 offset:{1024*s}"]
    def mf(s):
        b = FB + 8 * (s % 5)
        return f"v_mfma_f32_32x32x16_bf16 {vr(ACC,16)}, {vr(b,4)}, {vr(b+4,4)}, {vr(ACC,16)}"
    gemm_loop(e, 28, rd, mf, 4, 3)
    e("s_nop 11")
    for i in range(8): e(f"v_cvt_pk_bf16_f32 v{FB+i}, v{ACC+2*i}, v{ACC+2*i+1}")
    e(f"""
    s_nop 1
    v_permlane32_swap_b32 v{FB}, v{FB+2}
    v_permlane32_swap_b32 v{FB+1}, v{FB+3}
    v_permlane32_swap_b32 v{FB+4}, v{FB+6}
    v_permlane32_swap_b32 v{FB+5}, v{FB+7}
    buffer_store_dwordx4 {vr(FB,4)}, v12, s[48:51], s22 offen
    buffer_store_dwordx4 {vr(FB+4,4)}, v12, s[48:51], s22 offen offset:32
    K3_END:
    s_endpgm
    """)

def main(out):
    e = A()
    hdr = f"""; gated mix of MQA attention and an S4 convolution: three launches
; @launch kernel=proj_kernel grid=(256,1,1) block=(768,1,1) lds={K1_LDS}
; @launch kernel=attn_kernel grid=(256,1,1) block=(256,1,1) lds={K2_LDS}
; @launch kernel=out_kernel grid=(224,1,1) block=(256,1,1) lds={K3_LDS}
.amdgcn_target "amdgcn-amd-amdhsa--gfx950"
.text
"""
    kernel1(e); kernel2(e); kernel3(e)
    tail = '.section .rodata,"a"\n.p2align 6\n' + kdesc("proj_kernel", 128, 128) + ".p2align 6\n" + kdesc("attn_kernel", 288, 192) + ".p2align 6\n" + kdesc("out_kernel", 96, 96)
    open(out, "w").write(hdr + e.text() + tail)

if __name__ == "__main__":
    main(sys.argv[1] if len(sys.argv) > 1 else "gated_mix__grouped_kv_mqa__ssm_conv_s4__prompt.s")
```

```python
s = open('gated_mix__grouped_kv_mqa__ssm_conv_s4__prompt.s').read()
def variant(body, path, grid=256, block=256, pos=0):
    lines = s.split("\n")
    L = [i for i, l in enumerate(lines) if l.startswith("; @launch")]
    idx = L[0] + pos
    add = [f"; @launch kernel=warm_kernel grid=({grid},1,1) block=({block},1,1) lds=0"]
    lines = lines[:idx] + add + lines[idx:]
    t = "\n".join(lines)
    t = t.replace('.section .rodata,"a"', 'CODE_END:\n.globl warm_kernel\n.p2align 8\n.type warm_kernel,@function\nwarm_kernel:\n' + body + '\nWK_END:\n    s_endpgm\n.section .rodata,"a"')
    t += """.p2align 6
.amdhsa_kernel warm_kernel
  .amdhsa_next_free_vgpr 128
  .amdhsa_next_free_sgpr 96
  .amdhsa_accum_offset 128
  .amdhsa_group_segment_fixed_size 0
  .amdhsa_kernarg_size 144
  .amdhsa_user_sgpr_count 2
  .amdhsa_user_sgpr_kernarg_segment_ptr 1
  .amdhsa_system_sgpr_workgroup_id_x 1
.end_amdhsa_kernel
"""
    open(path, "w").write(t)
guard = "    s_cmp_ge_u32 s2, 256\n    s_cbranch_scc1 WK_END\n"
code = """
    s_getpc_b64 s[4:5]
WK_PC:
    s_sub_u32 s4, s4, WK_PC - proj_kernel
    s_subb_u32 s5, s5, 0
    v_lshlrev_b32 v1, 4, v0
""" + "".join(f"    global_load_dwordx4 v[{4+4*i}:{7+4*i}], v1, s[4:5] offset:0\n    v_add_u32 v1, 4096, v1\n" for i in range(5))
sizes = [(0, 1835008), (8, 401408), (16, 25088), (24, 25088), (32, 401408), (48, 229376), (56, 229376), (64, 229376), (72, 229376), (80, 229376), (88, 229376)]
inp = "    s_lshr_b32 s3, s2, 3\n    v_lshlrev_b32 v2, 4, v0\n"
r = 8
for off, n in sizes:
    inp += f"    s_load_dwordx2 s[{r}:{r+1}], s[0:1], {off}\n"; r += 4
inp += "    s_waitcnt lgkmcnt(0)\n"
r = 8; v = 40
for off, n in sizes:
    per = (n // 32 + 4095) // 4096 * 4096
    inp += f"    s_mov_b32 s{r+2}, {n}\n    s_mov_b32 s{r+3}, 0x20000\n    s_mul_i32 s70, s3, {per}\n"
    for j in range(per // 4096):
        inp += f"    buffer_load_dwordx4 v[{v}:{v+3}], v2, s[{r}:{r+3}], s70 offen\n    s_add_u32 s70, s70, 4096\n"
        v += 4
        if v >= 124: v = 40
    r += 4
wsp = """
    s_load_dwordx2 s[72:73], s[0:1], 136
    s_load_dwordx2 s[76:77], s[0:1], 120
    s_lshr_b32 s3, s2, 3
    s_waitcnt lgkmcnt(0)
    s_mov_b32 s74, 0xD00000
    s_mov_b32 s75, 0x20000
    s_mov_b32 s78, 1835008
    s_mov_b32 s79, 0x20000
    s_lshl_b32 s70, s3, 19
    v_lshlrev_b32 v3, 11, v0
    buffer_load_dword v124, v3, s[72:75], s70 offen
    v_lshlrev_b32 v3, 13, v0
    buffer_load_dword v125, v3, s[76:79], 0 offen
"""
w = "    s_waitcnt vmcnt(0)\n"
variant("", "w_nop.s", grid=1, block=64)
variant(guard + code + w, "w_code.s")
variant(guard + inp + w, "w_inp.s")
variant(guard + wsp + w, "w_ws.s")
variant(guard + code + inp + wsp + w, "w_all.s")
```

```python
import sys
TSB = 0x1000000
def variant(src, path, a, b, mult=4):
    s = open(src).read()
    lines = s.split("\n")
    L = [i for i, l in enumerate(lines) if l.startswith("; @launch")]
    lines = lines[:L[-1]+1] + ["; @launch kernel=probe_kernel grid=(1,1,1) block=(256,1,1) lds=64"] + lines[L[-1]+1:]
    t = "\n".join(lines)
    def off(q):
        k, i, mm, n, w = q
        return TSB + k*0x100000 + w*64 + (0 if i == 7 else 8*(7-i))
    body = f"""
    s_cmp_ge_u32 s2, 1
    s_cbranch_scc1 PK_END
    s_load_dwordx2 s[4:5], s[0:1], 136
    v_min_u32 v1, {a[3]-1}, v0
    v_min_u32 v2, {b[3]-1}, v0
    v_lshlrev_b32 v1, 10, v1
    v_lshlrev_b32 v2, 10, v2
    v_add_u32 v1, {off(a)}, v1
    v_add_u32 v2, {off(b)}, v2
    v_mov_b32 v5, 0
    v_mov_b32 v6, {'-1' if a[2]=='min' else '0'}
    v_mov_b32 v7, {'-1' if b[2]=='min' else '0'}
    ds_write_b64 v5, v[6:7]
    s_waitcnt lgkmcnt(0)
    global_load_dword v3, v1, s[4:5]
    global_load_dword v4, v2, s[4:5]
    s_barrier
    s_waitcnt vmcnt(0)
    ds_{a[2]}_u32 v5, v3
    ds_{b[2]}_u32 v5, v4 offset:4
    s_waitcnt lgkmcnt(0)
    s_barrier
    ds_read_b64 v[6:7], v5
    s_memrealtime s[8:9]
    s_waitcnt lgkmcnt(0)
    v_sub_u32 v6, v7, v6
    s_nop 1
    v_readfirstlane_b32 s6, v6
    s_min_u32 s6, s6, 10000
    s_mul_i32 s6, s6, {mult}
    s_add_u32 s6, s6, s8
PK_SPIN:
    s_memrealtime s[8:9]
    s_waitcnt lgkmcnt(0)
    s_sub_u32 s10, s8, s6
    s_cmp_lt_i32 s10, 0
    s_cbranch_scc1 PK_SPIN
PK_END:
    s_endpgm
"""
    t = t.replace('.section .rodata,"a"', '.globl probe_kernel\n.p2align 8\n.type probe_kernel,@function\nprobe_kernel:\n' + body + '.section .rodata,"a"')
    t += """.p2align 6
.amdhsa_kernel probe_kernel
  .amdhsa_next_free_vgpr 16
  .amdhsa_next_free_sgpr 32
  .amdhsa_accum_offset 16
  .amdhsa_group_segment_fixed_size 0
  .amdhsa_kernarg_size 144
  .amdhsa_user_sgpr_count 2
  .amdhsa_user_sgpr_kernarg_segment_ptr 1
  .amdhsa_system_sgpr_workgroup_id_x 1
.end_amdhsa_kernel
"""
    open(path, "w").write(t)
if __name__ == "__main__":
    src = "st.s"
    s0 = (0, 0, 'min', 256, 0)
    variant(src, "p0.s", s0, s0)
    variant(src, "p1.s", s0, (0, 7, 'max', 224, 4))
    variant(src, "p2.s", s0, (1, 0, 'min', 256, 0))
    variant(src, "p3.s", s0, (1, 7, 'max', 256, 0))
    variant(src, "p4.s", s0, (2, 0, 'min', 224, 0))
    variant(src, "p5.s", s0, (2, 7, 'max', 224, 0))
```

```python
import math, struct, sys, os

def f2u(x): return struct.unpack("<I", struct.pack("<f", x))[0]
LOG2E = 1.4426950408889634
QSCALE = (28 ** -0.5) * LOG2E
NAME = "gated_mix__grouped_kv_mqa__ssm_conv_s4__prompt_kernel"

KVF = 0x000000
FLG = 0x040000
FX  = 0x044000
XT2 = 0x080000
OX  = 0x280000
BT2 = 0x480000
WSZ = 0x640000
KGS = 4608
SY = 18432
XB = 18944
WB = 48128
WEND = WB + 448 * 256
LDS = 163840
IMG = WB + 336 * 256
ECH, OOF, UB, UCH = 8384, 4224, XB + 16768, 6144
C1, C2, C3, C4, C5, KVD, P1, P2, P3, C6, C7, GOF = [SY + x for x in (0, 4, 8, 12, 16, 20, 24, 32, 40, 48, 52, 128)]
CX = WB + 49152
STG = WB + 53248
SAFE_BOUND = 80.0
SHIFT = 64.0

BUDGET = int(os.environ.get("BUDGET", "0x8000"), 0)
STAMP = int(os.environ.get("STAMP", "0"))
TSB = 0x1000000
def stamp(e, i):
    if STAMP: e(f"s_memrealtime s[{100-2*i}:{101-2*i}]\ns_waitcnt lgkmcnt(0)")
def stamp_end(e, kidx):
    if not STAMP: return
    e(f"""
    s_waitcnt vmcnt(0)
    s_memrealtime s[86:87]
    s_load_dwordx2 s[84:85], s[0:1], 136
    s_mov_b64 exec, 1
    v_lshrrev_b32 v2, 6, v0
    s_lshl_b32 s83, s2, 4
    v_add_u32 v2, s83, v2
    v_lshlrev_b32 v2, 6, v2
    v_add_u32 v2, {TSB + kidx*0x100000}, v2
    s_waitcnt lgkmcnt(0)
    """)
    for i in range(16): e(f"v_mov_b32 v{4+i}, s{86+i}")
    for i in range(4): e(f"global_store_dwordx4 v2, v[{4+4*i}:{7+4*i}], s[84:85] offset:{16*i}")

class A:
    def __init__(self): self.l = []; self.n = 0
    def __call__(self, s=""):
        for line in s.split("\n"):
            line = line.strip()
            if not line: continue
            if line.startswith("@S "):
                if STAMP == 1 or line == "@S 0": stamp(self, int(line[3:]))
                continue
            if line.startswith("@T "):
                if STAMP == 2: stamp(self, int(line[3:]))
                continue
            if line.startswith("@E "): stamp_end(self, int(line[3:])); continue
            if line.endswith(":") or line.startswith("."): self.l.append(line)
            else: self.l.append("    " + line)
    def lab(self, p="L"):
        self.n += 1; return f"{p}{self.n}"
    def text(self): return "\n".join(self.l) + "\n"

def vr(a, n): return f"v[{a}:{a+n-1}]"
def ar(a, n): return f"a[{a}:{a+n-1}]"
def sr(a, n): return f"s[{a}:{a+n-1}]"
def srd(e, d, base, nbytes):
    e(f"s_mov_b32 s{d}, s{base}\ns_mov_b32 s{d+1}, s{base+1}\ns_mov_b32 s{d+2}, {nbytes}\ns_mov_b32 s{d+3}, 0x00020000")

def signal(e, off, addr="v3", restore="s_mov_b64 exec, -1"):
    e(f"s_mov_b64 exec, 1\nds_add_u32 {addr}, v4 offset:{off}\n{restore}")
def wait(e, off, n, addr="v3"):
    l = e.lab("W"); d = e.lab("D")
    e(f"""
    {l}:
    ds_read_b32 v5, {addr} offset:{off}
    s_waitcnt lgkmcnt(0)
    v_readfirstlane_b32 s64, v5
    s_cmp_ge_u32 s64, {n}
    s_cbranch_scc1 {d}
    s_sub_u32 s61, s61, 1
    s_cbranch_scc1 BAIL
    s_sleep 1
    s_branch {l}
    {d}:
    """)
def nonce_issue(e, v): e(f"global_load_dword v{v}, v3, s[40:41] sc1")
def nonce_check(e, v):
    l = e.lab("N"); d = e.lab("D")
    e(f"""
    {l}:
    v_readfirstlane_b32 s60, v{v}
    s_cmp_lg_u32 s60, 0
    s_cbranch_scc1 {d}
    s_sub_u32 s61, s61, 1
    s_cbranch_scc1 BAIL
    global_load_dword v{v}, v3, s[40:41] sc1
    s_waitcnt vmcnt(0)
    s_branch {l}
    {d}:
    """)

def gemm_loop(e, nsteps, reads, mfma, depth, nper):
    for s in range(min(depth, nsteps)):
        for r in reads(s): e(r)
    for s in range(nsteps):
        if s + depth < nsteps:
            for r in reads(s + depth): e(r)
            out = depth * nper
        else:
            out = (nsteps - 1 - s) * nper
        e(f"s_waitcnt lgkmcnt({out})")
        e(mfma(s))

def cmul(e, z, x, y, t, conj=False):
    e(f"v_pk_mul_f32 {vr(t,2)}, {vr(x,2)}, {vr(y,2)} op_sel:[0,0] op_sel_hi:[1,0]")
    neg = "neg_hi:[1,0,0]" if conj else "neg_lo:[1,0,0]"
    e(f"v_pk_fma_f32 {vr(z,2)}, {vr(x,2)}, {vr(y,2)}, {vr(t,2)} op_sel:[1,1,0] op_sel_hi:[0,1,1] {neg}")

def wdma_voff(e, v):
    e(f"""
    v_lshrrev_b32 v8, 4, v1
    v_and_b32 v9, 15, v1
    v_lshlrev_b32 v10, 2, v8
    v_xor_b32 v9, v9, v10
    v_mul_u32_u24 v8, 896, v8
    v_lshl_add_u32 v{v}, v9, 4, v8
    """)

def prologue(e):
    e(f"""
    .globl {NAME}
    .p2align 8
    .type {NAME},@function
    {NAME}:
    s_cmp_ge_u32 s2, 256
    s_cbranch_scc1 BAIL
    @S 0
    s_load_dwordx16 s[8:23], s[0:1], 0
    s_load_dwordx16 s[24:39], s[0:1], 64
    s_load_dwordx4 s[40:43], s[0:1], 128
    v_lshrrev_b32 v2, 6, v0
    v_and_b32 v1, 63, v0
    v_readfirstlane_b32 s3, v2
    v_lshlrev_b32 v2, 4, v1
    v_mov_b32 v3, 0
    v_mov_b32 v4, 1
    s_and_b32 s4, s2, 7
    s_lshl_b32 s4, s4, 3
    s_bfe_u32 s5, s2, 0x30003
    s_add_u32 s4, s4, s5
    s_lshr_b32 s5, s2, 6
    s_mov_b32 s61, {BUDGET}
    s_mov_b32 s62, 0
    s_mov_b32 s63, -1
    s_waitcnt lgkmcnt(0)
    """)
    srd(e, 44, 42, WSZ)
    e("s_cmp_ge_u32 s3, 4\ns_cbranch_scc1 HELPER")

def attn_path(e):
    Q, S, P, KV, CR = 16, (48, 64), (80, 88), (96, 112), 8
    e("s_setprio 3")
    srd(e, 48, 8, 2048 * 896)
    e(f"""
    s_mul_i32 s64, s3, {8*912}
    s_add_u32 m0, s64, {XB}
    s_lshl_b32 s65, s4, 5
    s_lshl_b32 s66, s3, 3
    s_add_u32 s65, s65, s66
    s_mul_i32 s65, s65, 896
    s_mov_b32 exec_hi, 0x00ffffff
    """)
    for i in range(8):
        e("buffer_load_dwordx4 v2, s[48:51], s65 offen lds")
        if i < 7: e("s_add_u32 m0, m0, 912\ns_add_u32 s65, s65, 896")
    e(f"""
    s_mov_b32 exec_hi, -1
    s_cmp_ge_u32 s5, 2
    s_cbranch_scc1 A_NOIMG
    s_cmp_eq_u32 s5, 0
    s_cselect_b32 s52, s12, s14
    s_cselect_b32 s53, s13, s15
    s_mov_b32 s54, {448*56}
    s_mov_b32 s55, 0x00020000
    s_mul_i32 s65, s3, {7*1024}
    s_add_u32 m0, s65, {IMG}
    s_nop 0
    """)
    for i in range(7):
        e("buffer_load_dwordx4 v2, s[52:55], s65 offen lds")
        if i < 6: e("s_add_u32 m0, m0, 1024\ns_add_u32 s65, s65, 1024")
    e(f"""
    A_NOIMG:
    s_cmp_lg_u32 s3, 0
    s_cbranch_scc1 A_NOZERO
    v_mov_b32 v8, 0
    v_mov_b32 v9, 0
    v_mov_b32 v10, 0
    v_mov_b32 v11, 0
    v_lshlrev_b32 v6, 3, v1
    v_add_u32 v7, {WEND}, v2
    ds_write_b64 v6, v[8:9] offset:{SY}
    ds_write_b128 v7, v[8:11]
    s_waitcnt lgkmcnt(0)
    A_NOZERO:
    s_barrier
    @S 1
    s_cmp_ge_u32 s3, 2
    s_cbranch_scc1 A_DMAW
    """)
    srd(e, 56, 36, 896)
    GW = 12
    e(f"""
    buffer_load_dwordx4 {vr(GW,4)}, v2, s[56:59], 0 offen
    v_mov_b32 v8, -1
    v_mov_b32 v9, -1
    v_mov_b32 v10, -1
    v_mov_b32 v11, -1
    s_mul_i32 s65, s4, 28672
    s_mul_i32 s66, s5, 7168
    s_add_u32 s65, s65, s66
    s_lshl_b32 s66, s3, 12
    s_add_u32 s65, s65, s66
    s_add_u32 s65, s65, {BT2}
    s_lshl_b32 s67, s3, 10
    s_sub_u32 s67, s65, s67
    buffer_store_dwordx4 v[8:11], v2, s[44:47], s65 offen sc1
    buffer_store_dwordx4 v[8:11], v2, s[44:47], s65 offen offset:1024 sc1
    buffer_store_dwordx4 v[8:11], v2, s[44:47], s65 offen offset:2048 sc1
    buffer_store_dwordx4 v[8:11], v2, s[44:47], s67 offen offset:3072 sc1
    s_lshl_b32 s65, s4, 2
    s_add_u32 s65, s65, s5
    s_lshl_b32 s65, s65, 13
    s_add_u32 s65, s65, s66
    s_add_u32 s65, s65, {OX}
    """)
    for i in range(4): e(f"buffer_store_dwordx4 v[8:11], v2, s[44:47], s65 offen offset:{1024*i} sc1")
    XA, WA, ST = 6, 7, 16
    e(f"""
    v_and_b32 v16, 15, v1
    v_lshrrev_b32 v17, 4, v1
    s_lshl_b32 s65, s3, 4
    v_add_u32 v18, s65, v16
    v_mul_u32_u24 v18, 912, v18
    v_lshl_add_u32 v18, v17, 4, v18
    v_add_u32 v{XA}, {XB}, v18
    v_bfe_u32 v18, v1, 2, 2
    v_lshl_add_u32 v18, v17, 3, v18
    v_and_b32 v19, 3, v1
    v_lshlrev_b32 v19, 3, v19
    v_mad_u32_u24 v20, v18, 56, v19
    v_add_u32 v{WA}, {IMG}, v20
    v_mul_u32_u24 v18, 912, v18
    v_add_u32 v10, v18, v19
    s_mul_i32 s65, s5, 224
    s_lshl_b32 s66, s3, 7
    s_add_u32 s65, s65, s66
    s_add_u32 s65, s65, {XB}
    v_add_u32 v10, s65, v10
    v_and_b32 v18, 1, v17
    v_lshl_add_u32 v18, v18, 5, v16
    v_lshrrev_b32 v19, 1, v17
    v_lshlrev_b32 v19, 3, v19
    v_lshl_add_u32 v9, v18, 4, v19
    v_lshrrev_b32 v18, 1, v16
    v_lshlrev_b32 v18, 13, v18
    v_and_b32 v19, 1, v1
    v_lshl_add_u32 v18, v19, 6, v18
    v_lshl_add_u32 v11, v17, 4, v18
    """)
    for i in range(64): e(f"v_accvgpr_write_b32 a{i}, 0")
    e("s_waitcnt vmcnt(9)")
    signal(e, C1)
    wait(e, C1, 4)
    e(f"""
    @S 2
    s_cmp_ge_u32 s5, 2
    s_cbranch_scc1 A_XT
    s_lshl_b32 s68, s4, 12
    s_cmp_eq_u32 s5, 1
    s_cbranch_scc1 A_V
    """)
    D, FB = 16, 32
    def rd(s):
        b = FB + 12 * (s % 3)
        return [f"ds_read_b128 {vr(b+8,4)}, v{XA} offset:{64*s}"] + \
               [f"ds_read_b64_tr_b16 {vr(b+4*dt+2*i,2)}, v{WA} offset:{1792*s+224*i+32*dt}" for dt in range(2) for i in range(2)]
    def mfk(s):
        b = FB + 12 * (s % 3)
        return "\n".join(f"v_mfma_f32_16x16x32_bf16 {vr(D+4*dt,4)}, {vr(b+4*dt,4)}, {vr(b+8,4)}, " + ("0" if s == 0 else vr(D+4*dt,4)) for dt in range(2))
    def mfv(s):
        b = FB + 12 * (s % 3)
        return "\n".join(f"v_mfma_f32_16x16x32_bf16 {vr(D+4*dt,4)}, {vr(b+8,4)}, {vr(b+4*dt,4)}, " + ("0" if s == 0 else vr(D+4*dt,4)) for dt in range(2))
    gemm_loop(e, 14, rd, mfk, 2, 5)
    signal(e, KVD)
    nonce_issue(e, 30)
    e(f"""
    s_mov_b32 s66, 0
    s_mov_b32 s67, 0xffff0000
    s_lshl_b32 s65, s3, 8
    s_add_u32 s68, s68, s65
    v_mov_b32 v28, 0x3f803f80
    v_mov_b32 v29, 0x00003f80
    s_nop 0
    v_cvt_pk_bf16_f32 v24, v16, v17
    v_cvt_pk_bf16_f32 v25, v18, v19
    v_cvt_pk_bf16_f32 v26, v20, v21
    v_cvt_pk_bf16_f32 v27, v22, v23
    v_cndmask_b32 v26, v26, v28, s[66:67]
    v_cndmask_b32 v27, v27, v29, s[66:67]
    buffer_store_dwordx2 v[24:25], v9, s[44:47], s68 offen sc1
    buffer_store_dwordx2 v[26:27], v9, s[44:47], s68 offen offset:1024 sc1
    v_mul_f32 v28, v20, v20
    v_fmac_f32 v28, v21, v21
    v_fmac_f32 v28, v22, v22
    v_fmac_f32 v28, v23, v23
    v_cndmask_b32 v28, v28, 0, s[66:67]
    v_fmac_f32 v28, v16, v16
    v_fmac_f32 v28, v17, v17
    v_fmac_f32 v28, v18, v18
    v_fmac_f32 v28, v19, v19
    v_mov_b32 v29, v28
    s_nop 1
    v_permlane16_swap_b32 v28, v29
    s_nop 1
    v_add_f32 v28, v28, v29
    v_mov_b32 v29, v28
    s_nop 1
    v_permlane32_swap_b32 v28, v29
    s_nop 1
    v_add_f32 v31, v28, v29
    """)
    for c in (1, 2, 4, 8): e(f"s_nop 1\nv_max_f32_dpp v31, v31, v31 row_ror:{c} row_mask:0xf bank_mask:0xf")
    e("s_branch A_KVFLAG\nA_V:")
    gemm_loop(e, 14, rd, mfv, 2, 5)
    signal(e, KVD)
    nonce_issue(e, 30)
    e(f"""
    v_and_b32 v28, 15, v1
    v_cmp_eq_u32 vcc, 12, v28
    s_lshl_b32 s65, s3, 10
    s_add_u32 s68, s68, s65
    v_mov_b32 v28, 0x3f803f80
    v_mov_b32 v31, 0
    s_nop 0
    v_cvt_pk_bf16_f32 v24, v16, v17
    v_cvt_pk_bf16_f32 v25, v18, v19
    v_cvt_pk_bf16_f32 v26, v20, v21
    v_cvt_pk_bf16_f32 v27, v22, v23
    v_cndmask_b32 v26, v26, v28, vcc
    v_cndmask_b32 v27, v27, v28, vcc
    buffer_store_dwordx2 v[24:25], v9, s[44:47], s68 offen offset:2048 sc1
    buffer_store_dwordx2 v[26:27], v9, s[44:47], s68 offen offset:2304 sc1
    A_KVFLAG:
    s_lshl_b32 s65, s4, 2
    s_lshl_b32 s66, s5, 1
    s_add_u32 s65, s65, s66
    s_add_u32 s65, s65, s3
    s_lshl_b32 s65, s65, 6
    s_add_u32 s65, s65, {FLG}
    s_waitcnt vmcnt(0)
    """)
    nonce_check(e, 30)
    e(f"""
    s_mov_b64 exec, 1
    buffer_store_dwordx2 v[30:31], v3, s[44:47], s65 offen sc1
    s_mov_b64 exec, -1
    A_XT:
    @S 3
    """)
    for g in range(4):
        e(f"ds_read_b64_tr_b16 {vr(32+4*g,2)}, v10 offset:{32*g}\nds_read_b64_tr_b16 {vr(34+4*g,2)}, v10 offset:{32*g+4*912}")
    nonce_issue(e, 30)
    e(f"""
    s_mul_i32 s65, s5, 56
    s_lshl_b32 s66, s3, 5
    s_add_u32 s65, s65, s66
    s_lshl_b32 s65, s65, 13
    s_lshl_b32 s66, s4, 7
    s_add_u32 s65, s65, s66
    s_add_u32 s65, s65, {XT2}
    s_waitcnt lgkmcnt(0)
    """)
    for g in range(3):
        e(f"buffer_store_dwordx4 {vr(32+4*g,4)}, v11, s[44:47], s65 offen sc1\ns_add_u32 s65, s65, 65536")
    e(f"""
    s_cmp_eq_u32 s3, 1
    s_cbranch_scc1 A_GATE
    buffer_store_dwordx4 {vr(44,4)}, v11, s[44:47], s65 offen sc1
    s_branch A_XFLAG
    A_GATE:
    s_cmp_ge_u32 s5, 2
    s_cbranch_scc1 A_GATE2
    """)
    wait(e, KVD, 2)
    e(f"""
    A_GATE2:
    v_lshlrev_b32 v8, 11, v1
    v_add_u32 v8, {WB}, v8
    s_waitcnt vmcnt(4)
    s_mov_b32 exec_hi, 0x00ffffff
    """)
    for j in range(8):
        op = "ds_write_b16_d16_hi" if j & 1 else "ds_write_b16"
        e(f"{op} v8, v{GW + j//2} offset:{256*j + (224 ^ (64*(j&3)))}")
    e(f"""
    s_mov_b32 exec_hi, -1
    A_XFLAG:
    s_lshl_b32 s65, s5, 1
    s_add_u32 s65, s65, s3
    s_lshl_b32 s65, s65, 6
    s_add_u32 s65, s65, s4
    s_lshl_b32 s65, s65, 6
    s_add_u32 s65, s65, {FX}
    s_waitcnt vmcnt(0)
    """)
    nonce_check(e, 30)
    e(f"""
    s_mov_b64 exec, 1
    buffer_store_dword v30, v3, s[44:47], s65 offen sc1
    s_mov_b64 exec, -1
    s_branch A_QSYNC
    A_DMAW:
    """)
    srd(e, 56, 10, 448 * 896)
    wdma_voff(e, 6)
    MASK = "s_mov_b32 exec_lo, 0xf3ff3fff\ns_mov_b32 exec_hi, 0xfff3ff3f"
    e(f"""
    s_sub_u32 s65, s3, 2
    s_lshl_b32 s66, s65, 10
    s_add_u32 m0, s66, {WB}
    s_mul_i32 s65, s65, 3584
    s_mul_i32 s66, s5, 224
    s_add_u32 s65, s65, s66
    {MASK}
    """)
    def dma_loop(n, lab):
        e(f"""
        s_mov_b32 s66, {n//2}
        {lab}:
        buffer_load_dwordx4 v6, s[56:59], s65 offen lds
        s_add_u32 m0, m0, 2048
        s_add_u32 s65, s65, 7168
        buffer_load_dwordx4 v6, s[56:59], s65 offen lds
        s_add_u32 m0, m0, 2048
        s_add_u32 s65, s65, 7168
        s_sub_u32 s66, s66, 1
        s_cmp_lg_u32 s66, 0
        s_cbranch_scc1 {lab}
        """)
    dma_loop(8, "A_DL1")
    e("s_waitcnt vmcnt(8)")
    signal(e, C1, restore=MASK)
    e("@S 2")
    dma_loop(34, "A_DL2")
    e("s_cmp_ge_u32 s5, 2\ns_cbranch_scc1 A_DL3P")
    wait(e, KVD, 2)
    e("A_DL3P:")
    dma_loop(14, "A_DL3")
    e("s_mov_b64 exec, -1\n@S 3")
    nonce_issue(e, 30)
    for i in range(64): e(f"v_accvgpr_write_b32 a{i}, 0")
    e("s_waitcnt vmcnt(0)")
    nonce_check(e, 30)
    e("A_QSYNC:")
    signal(e, C2)
    e(f"""
    v_lshrrev_b32 v12, 5, v1
    v_bfe_u32 v13, v1, 2, 2
    v_lshl_add_u32 v14, v12, 3, v13
    v_lshlrev_b32 v14, 8, v14
    v_bfe_u32 v15, v1, 4, 1
    v_lshlrev_b32 v15, 5, v15
    v_and_b32 v16, 3, v1
    v_lshl_add_u32 v15, v16, 3, v15
    s_mul_i32 s65, s3, 56
    v_add_u32 v15, s65, v15
    v_lshlrev_b32 v13, 6, v13
    v_xor_b32 v15, v15, v13
    v_add_u32 v14, v14, v15
    v_add_u32 v7, {WB}, v14
    v_add_u32 v8, {WB + 65536}, v14
    v_and_b32 v13, 31, v1
    v_mul_u32_u24 v14, 912, v13
    v_lshl_add_u32 v14, v12, 4, v14
    v_add_u32 v6, {XB}, v14
    s_mov_b32 s68, {f2u(QSCALE)}
    """)
    wait(e, C2, 4)
    e("@S 4")
    ACC, FB = 48, 64
    def rq(s):
        b = FB + 8 * (s % 5); w = 7 if s < 16 else 8; o = 4096 * (s % 16)
        return [f"ds_read_b64_tr_b16 {vr(b,2)}, v{w} offset:{o}", f"ds_read_b64_tr_b16 {vr(b+2,2)}, v{w} offset:{o+1024}",
                f"ds_read_b128 {vr(b+4,4)}, v6 offset:{32*s}"]
    def mq(s):
        b = FB + 8 * (s % 5)
        return f"v_mfma_f32_32x32x16_bf16 {vr(ACC,16)}, {vr(b,4)}, {vr(b+4,4)}, " + ("0" if s == 0 else vr(ACC,16))
    gemm_loop(e, 28, rq, mq, 4, 3)
    signal(e, C3)
    e(f"""
    v_lshlrev_b32 v9, 6, v1
    s_lshl_b32 s69, s3, 12
    s_add_u32 s69, s69, {FLG}
    s_lshl_b32 s65, s3, 11
    s_add_u32 s65, s65, {WB}
    v_add_u32 v10, s65, v2
    v_lshlrev_b32 v11, 2, v1
    s_lshl_b32 s65, s3, 8
    s_add_u32 s65, s65, {WB + 8192}
    v_add_u32 v12, s65, v11
    s_cmp_lg_u32 s3, 3
    s_cbranch_scc1 A_NOG
    v_mul_f32 v13, {f2u(-LOG2E)}, v{ACC+12}
    v_exp_f32 v13, v13
    s_nop 0
    v_add_f32 v13, 1.0, v13
    v_rcp_f32 v13, v13
    s_mov_b32 exec_lo, 0
    ds_write_b32 v11, v13 offset:{GOF - 128}
    s_mov_b32 exec_lo, -1
    A_NOG:
    """)
    for r in range(16): e(f"v_mul_f32 v{ACC+r}, s68, v{ACC+r}")
    for i in range(8): e(f"v_cvt_pk_bf16_f32 v{FB+i}, v{ACC+2*i}, v{ACC+2*i+1}")
    e(f"""
    v_cndmask_b32 v{FB+6}, v{FB+6}, 0, s[62:63]
    v_cndmask_b32 v{FB+7}, v{FB+7}, 0, s[62:63]
    v_mov_b32 v13, 0
    """)
    for i in range(8): e(f"v_dot2c_f32_bf16 v13, v{FB+i}, v{FB+i}")
    e("""
    s_nop 2
    v_mov_b32 v14, v13
    s_nop 1
    v_permlane32_swap_b32 v13, v14
    s_nop 1
    v_add_f32 v13, v13, v14
    """)
    wait(e, C3, 4)
    e(f"""
    ds_write_b128 v10, {vr(FB,4)}
    ds_write_b128 v10, {vr(FB+4,4)} offset:1024
    ds_write_b32 v12, v13
    """)
    signal(e, C4)
    e("buffer_load_dwordx2 v[14:15], v9, s[44:47], s69 offen sc1")
    wait(e, C4, 4)
    for j in range(4):
        e(f"""
        s_add_u32 s65, s3, {j}
        s_and_b32 s65, s65, 3
        s_lshl_b32 s66, s65, 11
        s_add_u32 s66, s66, {WB}
        v_add_u32 v10, s66, v2
        s_lshl_b32 s66, s65, 8
        s_add_u32 s66, s66, {WB + 8192}
        v_add_u32 v12, s66, v11
        ds_read_b128 {vr(Q+8*j,4)}, v10
        ds_read_b128 {vr(Q+8*j+4,4)}, v10 offset:1024
        ds_read_b32 v{48+j}, v12
        """)
    signal(e, C5)
    e(f"""
    @S 5
    s_lshl_b32 s70, s3, 16
    A_POLL:
    s_waitcnt vmcnt(0)
    v_cmp_ne_u32 vcc, s60, v14
    s_cbranch_vccz A_GOT
    s_sub_u32 s61, s61, 1
    s_cbranch_scc1 BAIL
    buffer_load_dwordx2 v[14:15], v9, s[44:47], s69 offen sc1
    s_branch A_POLL
    A_GOT:
    buffer_load_dwordx4 {vr(KV[0],4)}, v2, s[44:47], s70 offen sc1
    buffer_load_dwordx4 {vr(KV[0]+4,4)}, v2, s[44:47], s70 offen offset:1024 sc1
    buffer_load_dwordx4 {vr(KV[0]+8,4)}, v2, s[44:47], s70 offen offset:2048 sc1
    buffer_load_dwordx4 {vr(KV[0]+12,4)}, v2, s[44:47], s70 offen offset:3072 sc1
    s_add_u32 s70, s70, 4096
    v_and_b32 v13, 7, v1
    v_lshlrev_b32 v13, 12, v13
    s_lshl_b32 s71, s4, 6
    s_add_u32 s71, s71, {FX}
    buffer_load_dword v12, v13, s[44:47], s71 offen sc1
    buffer_load_dwordx4 {vr(KV[1],4)}, v2, s[44:47], s70 offen sc1
    buffer_load_dwordx4 {vr(KV[1]+4,4)}, v2, s[44:47], s70 offen offset:1024 sc1
    """)
    for c in (1, 2, 4, 8): e(f"v_max_f32_dpp v15, v15, v15 row_ror:{c} row_mask:0xf bank_mask:0xf\ns_nop 1")
    e(f"""
    v_mov_b32 v14, v15
    s_nop 1
    v_permlane16_swap_b32 v15, v14
    s_nop 1
    v_max_f32 v15, v15, v14
    v_mov_b32 v14, v15
    s_nop 1
    v_permlane32_swap_b32 v15, v14
    s_nop 1
    v_max_f32 v15, v15, v14
    s_mov_b32 s72, {f2u(SAFE_BOUND)}
    s_waitcnt lgkmcnt(0)
    """)
    for j in range(4): e(f"v_mul_f32 v{48+j}, v15, v{48+j}")
    for j in range(4): e(f"v_sqrt_f32 v{48+j}, v{48+j}")
    for i in range(8): e(f"v_mov_b32 v{P[1]+i}, 0")
    e(f"""
    v_max_f32 v52, v48, v49
    v_max3_f32 v52, v52, v50, v51
    v_cmp_nle_f32 vcc, v52, s72
    """)
    for j in range(4): e(f"v_sub_f32 v{48+j}, {f2u(SHIFT)}, v{48+j}")
    for i in range(8): e(f"v_mov_b32 v{KV[1]+8+i}, 0")
    e("s_cbranch_vccnz A_FALLBACK")
    for j in range(4): e(f"v_cvt_pk_bf16_f32 v{48+j}, v{48+j}, 0")
    for j in range(4): e(f"v_cndmask_b32 v{Q+8*j+6}, v{Q+8*j+6}, v{48+j}, s[62:63]")
    for j in range(4): e(f"v_lshlrev_b32 v{CR+j}, 16, v{48+j}")
    e(f"""
    A_MAIN:
    s_waitcnt vmcnt(2)
    A_SIB:
    v_cmp_ne_u32 vcc, s60, v12
    s_cbranch_vccz A_SIBOK
    s_sub_u32 s61, s61, 1
    s_cbranch_scc1 BAIL
    buffer_load_dword v12, v13, s[44:47], s71 offen sc1
    s_waitcnt vmcnt(0)
    s_branch A_SIB
    A_SIBOK:
    @S 6
    """)
    def qk(i, tile):
        kb = KV[(tile >> 2) & 1]; s = S[tile & 1]; q = Q + 8 * (tile & 3)
        return f"v_mfma_f32_32x32x16_bf16 {vr(s,16)}, {vr(kb+4*i,4)}, {vr(q+4*i,4)}, " + ("0" if i == 0 else vr(s,16))
    def pv(i, tile):
        vb = KV[(tile >> 2) & 1] + 8; p = P[tile & 1]; o = 16 * (tile & 3)
        return f"v_mfma_f32_32x32x16_bf16 {ar(o,16)}, {vr(vb+4*i,4)}, {vr(p+4*i,4)}, {ar(o,16)}"
    def ld(reg, off): return f"buffer_load_dwordx4 {vr(reg,4)}, v2, s[44:47], s70 offen offset:{off} sc1"
    e(qk(0, 0)); e(qk(1, 0))
    e(f"v_mov_b32 v{S[1]+14}, 0\nv_mov_b32 v{S[1]+15}, 0\ns_mov_b32 s73, 8\ns_nop 6")
    e(".p2align 6\nA_LOOP:")
    pat = "pCeeee" "qceecee" "Qceeceec" "Peeceec"
    for j in range(8):
        s = S[j & 1]; p = P[j & 1]; sp = S[(j + 1) & 1]; pp = P[(j + 1) & 1]
        ex = [f"v_exp_f32 v{s+i}, v{s+i}" for i in range(16)]
        cv = [f"v_cvt_pk_bf16_f32 v{p+i}, v{s+2*i}, v{s+2*i+1}" for i in range(7)]
        side = {"p": [], "q": [], "Q": [], "P": []}
        pre = {"p": [], "q": []}
        if j == 1: pre["p"] = ["s_waitcnt vmcnt(2)"]; side["q"] = [ld(KV[1] + 8, 2048)]; side["Q"] = [ld(KV[1] + 12, 3072)]; side["P"] = ["s_add_u32 s70, s70, 4096"]
        if j == 3: side["p"] = ["s_waitcnt vmcnt(2)"]; side["Q"] = [ld(KV[0], 0)]; side["P"] = [ld(KV[0] + 4, 1024)]
        if j == 5: pre["p"] = ["s_waitcnt vmcnt(2)"]; side["q"] = [ld(KV[0] + 8, 2048)]; side["Q"] = [ld(KV[0] + 12, 3072)]; side["P"] = ["s_add_u32 s70, s70, 4096"]
        if j == 7: side["p"] = ["s_waitcnt vmcnt(2)"]; side["Q"] = [ld(KV[1], 0), "s_sub_u32 s73, s73, 1"]; side["P"] = [ld(KV[1] + 4, 1024), "s_cmp_lg_u32 s73, 0"]
        for ch in pat:
            if ch == "p":
                for x in pre["p"]: e(x)
                e(pv(0, (j - 1) & 7))
            elif ch == "P": e(pv(1, (j - 1) & 7))
            elif ch == "q": e(qk(0, j + 1))
            elif ch == "Q": e(qk(1, j + 1))
            elif ch == "C": e(f"v_cvt_pk_bf16_f32 v{pp+7}, v{sp+14}, v{sp+15}")
            elif ch == "e": e(ex.pop(0))
            elif ch == "c": e(cv.pop(0))
            if ch in side:
                for x in side[ch]: e(x)
        assert not ex and not cv
    e("s_cbranch_scc1 A_LOOP")
    e(pv(0, 7))
    e(f"v_cvt_pk_bf16_f32 v{P[1]+7}, v{S[1]+14}, v{S[1]+15}\ns_nop 1")
    e(pv(1, 7))
    e(f"""
    s_mul_i32 s65, s3, 12288
    s_add_u32 s65, s65, {WB}
    v_add_u32 v6, s65, v2
    v_lshlrev_b32 v15, 2, v1
    @T 1
    """)
    wait(e, C7, 4)
    e("@T 2")
    for j in range(4):
        e(f"""
        s_add_u32 s65, s3, {j}
        s_and_b32 s65, s65, 3
        s_lshl_b32 s65, s65, 10
        s_add_u32 s65, s65, {CX + 256*j}
        v_add_u32 v7, s65, v15
        ds_write_b32 v7, v{CR+j}
        """)
    for d in range(1, 4):
        for i in range(4): e(f"ds_write_b128 v6, {ar(16*d+4*i,4)} offset:{4096*(d-1)+1024*i}")
    for i in range(16): e(f"v_accvgpr_read_b32 v{16+i}, a{i}")
    for d in range(1, 4):
        e(f"s_sub_u32 s65, s3, {d}\ns_and_b32 s65, s65, 3\ns_mul_i32 s65, s65, 12288\ns_add_u32 s65, s65, {WB + 4096*(d-1)}\nv_add_u32 v{11+d}, s65, v2")
    e(f"""
    s_lshl_b32 s65, s3, 10
    s_add_u32 s65, s65, {CX}
    v_add_u32 v7, s65, v15
    s_waitcnt lgkmcnt(0) vmcnt(0)
    s_barrier
    @T 3
    ds_read2st64_b32 v[32:33], v7 offset0:0 offset1:1
    ds_read2st64_b32 v[34:35], v7 offset0:2 offset1:3
    """)
    R = 48
    for d in range(1, 4):
        for i in range(4): e(f"ds_read_b128 {vr(R+16*(d-1)+4*i,4)}, v{11+d} offset:{1024*i}")
    e(f"""
    s_lshl_b32 s65, s4, 2
    s_add_u32 s65, s65, s5
    s_lshl_b32 s65, s65, 13
    s_lshl_b32 s66, s3, 11
    s_add_u32 s74, s65, s66
    s_add_u32 s74, s74, {OX}
    s_lshl_b32 s65, s5, 13
    s_add_u32 s65, s65, s66
    s_add_u32 s65, s65, {STG}
    v_add_u32 v6, s65, v2
    s_waitcnt lgkmcnt(12)
    v_min_f32 v36, v32, v33
    v_min3_f32 v36, v36, v34, v35
    """)
    for d in range(4): e(f"v_sub_f32 v{32+d}, v36, v{32+d}")
    for d in range(4): e(f"v_exp_f32 v{32+d}, v{32+d}")
    for i in range(16): e(f"v_mul_f32 v{16+i}, v32, v{16+i}")
    for d in range(1, 4):
        e(f"s_waitcnt lgkmcnt({4*(3-d)})")
        for i in range(16): e(f"v_fmac_f32 v{16+i}, v{32+d}, v{R+16*(d-1)+i}")
    e(f"""
    v_mov_b32 v36, v28
    v_mov_b32 v37, v28
    s_mov_b32 s75, 0xfffffffe
    s_nop 0
    v_permlane32_swap_b32 v36, v37
    s_nop 1
    v_rcp_f32 v37, v37
    s_nop 0
    """)
    for i in range(16): e(f"v_mul_f32 v{16+i}, v{16+i}, v37")
    for i in range(8): e(f"v_cvt_pk_bf16_f32 v{40+i}, v{16+2*i}, v{17+2*i}")
    e(f"v_cndmask_b32 v46, v46, 0, s[62:63]\nv_cndmask_b32 v47, v47, 0, s[62:63]")
    for i in range(8): e(f"v_min_u32 v{40+i}, s75, v{40+i}")
    e(f"""
    buffer_store_dwordx4 v[40:43], v2, s[44:47], s74 offen sc1
    buffer_store_dwordx4 v[44:47], v2, s[44:47], s74 offen offset:1024 sc1
    ds_write_b128 v6, v[40:43]
    ds_write_b128 v6, v[44:47] offset:1024
    @T 4
    """)
    for d in range(1, 4):
        e(f"""
        s_add_u32 s65, s5, {d}
        s_and_b32 s65, s65, 3
        s_lshl_b32 s65, s65, 13
        s_add_u32 s65, s65, s66
        s_lshl_b32 s{75+d}, s4, 15
        s_add_u32 s{75+d}, s{75+d}, s65
        s_add_u32 s{75+d}, s{75+d}, {OX}
        s_add_u32 s65, s65, {STG}
        v_add_u32 v{11+d}, s65, v2
        """)
    e("A_GATHER:")
    for d in range(1, 4):
        e(f"buffer_load_dwordx4 {vr(40+8*d,4)}, v2, s[44:47], s{75+d} offen sc1\nbuffer_load_dwordx4 {vr(44+8*d,4)}, v2, s[44:47], s{75+d} offen offset:1024 sc1")
    e("s_waitcnt vmcnt(0)\nv_max3_u32 v16, v48, v49, v50")
    for i in range(51, 71, 2): e(f"v_max3_u32 v16, v16, v{i}, v{i+1}")
    e(f"""
    v_max_u32 v16, v16, v71
    v_cmp_eq_u32 vcc, -1, v16
    s_cbranch_vccz A_GOK
    s_sub_u32 s61, s61, 1
    s_cbranch_scc1 BAIL
    s_branch A_GATHER
    A_GOK:
    """)
    for d in range(1, 4):
        e(f"ds_write_b128 v{11+d}, {vr(40+8*d,4)}\nds_write_b128 v{11+d}, {vr(44+8*d,4)} offset:1024")
    e("""
    s_waitcnt lgkmcnt(0)
    @T 5
    s_barrier
    @E 0
    s_endpgm
    """)
    T = 52
    e(f"""
    A_FALLBACK:
    s_lshl_b32 s74, s3, 16
    s_mov_b32 s75, 16
    """)
    for j in range(4): e(f"v_mov_b32 v{48+j}, 0xff800000")
    e(f"""
    A_FB_LOOP:
    buffer_load_dwordx4 {vr(T,4)}, v2, s[44:47], s74 offen sc1
    buffer_load_dwordx4 {vr(T+4,4)}, v2, s[44:47], s74 offen offset:1024 sc1
    s_add_u32 s74, s74, 4096
    s_waitcnt vmcnt(0)
    """)
    for j in range(4):
        e(f"v_mfma_f32_32x32x16_bf16 {vr(64,16)}, {vr(T,4)}, {vr(Q+8*j,4)}, 0")
        e(f"v_mfma_f32_32x32x16_bf16 {vr(64,16)}, {vr(T+4,4)}, {vr(Q+8*j+4,4)}, {vr(64,16)}")
        e("s_nop 11")
        for i in range(8): e(f"v_max3_f32 v{48+j}, v{48+j}, v{64+2*i}, v{65+2*i}")
    e(f"""
    s_sub_u32 s75, s75, 1
    s_cmp_lg_u32 s75, 0
    s_cbranch_scc1 A_FB_LOOP
    """)
    for j in range(4): e(f"v_mov_b32 v{52+j}, v{48+j}")
    e("s_nop 0")
    for j in range(4): e(f"v_permlane32_swap_b32 v{48+j}, v{52+j}")
    e("s_nop 0")
    for j in range(4):
        m = 48 + j; t = 56
        e(f"""
        v_max_f32 v{m}, v{m}, v{52+j}
        v_sub_f32 v{m}, 0, v{m}
        v_cvt_pk_bf16_f32 v{t}, v{m}, v{m}
        v_and_b32 v{t+4}, 0xffff0000, v{t}
        v_sub_f32 v{m}, v{m}, v{t+4}
        v_cvt_pk_bf16_f32 v{t+2}, v{m}, v{m}
        v_and_b32 v{t+1}, 0xffff0000, v{t+2}
        v_sub_f32 v{m}, v{m}, v{t+1}
        v_cvt_pk_bf16_f32 v{t+3}, v{m}, 0
        v_and_b32 v{t}, 0xffff, v{t}
        v_or_b32 v{t}, v{t}, v{t+1}
        v_cndmask_b32 v{Q+8*j+6}, v{Q+8*j+6}, v{t}, s[62:63]
        v_cndmask_b32 v{Q+8*j+7}, v{Q+8*j+7}, v{t+3}, s[62:63]
        v_lshlrev_b32 v{t+3}, 16, v{t+3}
        v_add_f32 v{t+1}, v{t+1}, v{t+3}
        v_add_f32 v{CR+j}, v{t+4}, v{t+1}
        """)
    e("s_branch A_MAIN")

def helper_path(e):
    e(f"""
    HELPER:
    s_sub_u32 s3, s3, 4
    s_lshr_b32 s6, s3, 1
    s_and_b32 s7, s3, 1
    s_min_u32 s76, s2, 223
    s_or_b32 s65, s2, s3
    s_cmp_lg_u32 s65, 0
    s_cbranch_scc1 H_NON
    s_memrealtime s[66:67]
    s_waitcnt lgkmcnt(0)
    s_or_b32 s66, s66, 1
    v_mov_b32 v5, s66
    global_store_dword v3, v5, s[40:41] sc0 sc1
    H_NON:
    s_lshl_b32 s65, s76, 2
    s_load_dword s66, s[32:33], s65
    s_load_dword s67, s[34:35], s65
    s_lshl_b32 s65, s76, 10
    s_lshl_b32 s68, s3, 8
    s_add_u32 s65, s65, s68
    v_lshl_add_u32 v8, v1, 2, s65
    """)
    for i in range(6): e(f"global_load_dword v{96+i}, v8, s[{20+2*i}:{21+2*i}]")
    e(f"""
    s_mul_i32 s77, s3, {KGS}
    s_mov_b32 m0, s77
    v_and_b32 v9, 15, v1
    v_lshrrev_b32 v10, 4, v1
    v_mul_u32_u24 v11, 288, v9
    v_lshl_add_u32 v11, v10, 4, v11
    v_add_u32 v11, s77, v11
    v_mul_u32_u24 v12, 1088, v10
    v_lshl_add_u32 v12, v9, 2, v12
    v_add_u32 v12, s77, v12
    s_lshl_b32 s68, s6, 4
    s_lshl_b32 s78, s6, 2
    v_mov_b32 v6, s78
    s_barrier
    @S 1
    s_waitcnt lgkmcnt(0)
    s_lshr_b32 s66, s66, s68
    s_lshl_b32 s66, s66, 16
    s_lshr_b32 s67, s67, s68
    s_lshl_b32 s67, s67, 16
    v_mov_b32 v13, s66
    v_mul_f32 v13, {f2u(LOG2E)}, v13
    v_exp_f32 v13, v13
    s_nop 0
    v_cvt_pk_bf16_f32 v13, v13, v13
    v_and_b32 v13, 0xffff0000, v13
    """)
    P1_, P8, P256, P32 = 14, 16, 18, 20
    Y = [22, 24, 26, 28]
    X0, X2, X4, X6, XC = 30, 32, 34, 36, 38
    T0, T1 = 40, 42
    C = 44
    YF, XF, D = 48, 80, 112
    PR = 2
    for i in range(16): e(f"v_mov_b32 v{D+i}, 0")
    e("s_waitcnt vmcnt(0)\n@S 2")
    for i in range(6): e(f"v_and_b32 v{102+i}, 0xffff0000, v{96+i}")
    for i in range(6): e(f"v_accvgpr_write_b32 a{i}, v{102+i}")
    for i in range(6): e(f"v_lshlrev_b32 v{96+i}, 16, v{96+i}")
    e("s_mov_b32 s79, 2\nH_UNIT:")
    AR, AI, BR, BI, CRE, CIM = 96, 97, 98, 99, 100, 101
    e(f"""
    v_mul_f32 v{AR}, v13, v{AR}
    v_mul_f32 v{AI}, v13, v{AI}
    v_mul_f32 v{AR}, {f2u(LOG2E)}, v{AR}
    v_mul_f32 v{AI}, 0.15915494, v{AI}
    v_mul_f32 v{BR}, v13, v{BR}
    v_mul_f32 v{BI}, v13, v{BI}
    """)
    def anchor(dst, l, t):
        if l == 1:
            e(f"v_fract_f32 v{t+1}, v{AI}\nv_exp_f32 v{t}, v{AR}")
        else:
            e(f"v_mul_f32 v{t+1}, {f2u(float(l))}, v{AI}\nv_mul_f32 v{t}, {f2u(float(l))}, v{AR}\nv_fract_f32 v{t+1}, v{t+1}\nv_exp_f32 v{t}, v{t}")
        e(f"v_cos_f32 v{dst}, v{t+1}\nv_sin_f32 v{dst+1}, v{t+1}\ns_nop 0")
        e(f"v_pk_mul_f32 {vr(dst,2)}, {vr(dst,2)}, {vr(t,2)} op_sel:[0,0] op_sel_hi:[1,0]")
    anchor(P8, 8, T0)
    anchor(P1_, 1, T1)
    anchor(P256, 256, T0)
    cmul(e, X0, CRE, BR, T1)
    e(f"v_xor_b32 v{X0+1}, 0x80000000, v{X0+1}")
    cnt = [0]
    def put(src, row):
        c = C + (cnt[0] % 4); cnt[0] += 1
        e(f"v_cvt_pk_bf16_f32 v{c}, v{src}, v{src+1}")
        e(f"ds_write_addtid_b32 v{c} offset:{row*288}")
    tt = [0]
    def mul(z, x, y, conj=False):
        t = (T0, T1)[tt[0] % 2]; tt[0] += 1
        cmul(e, z, x, y, t, conj)
    def frags(dst):
        for ks in range(4): e(f"ds_read_b128 {vr(dst+4*ks,4)}, v11 offset:{64*ks}")
    e(f"v_mov_b32 v{C+3}, 0x3f80\nds_write_addtid_b32 v{C+3} offset:0")
    put(P8, 1)
    mul(Y[2], P8, P8); put(Y[2], 2)
    mul(Y[3], Y[2], P8); mul(P32, Y[2], Y[2]); put(Y[3], 3); put(P32, 4)
    mul(Y[1], P8, P32); put(Y[1], 5)
    mul(Y[2], Y[2], P32); put(Y[2], 6)
    mul(Y[3], Y[3], P32); put(Y[3], 7)
    mul(Y[0], P32, P32); put(Y[0], 8)
    for c in range(9, 32):
        if c == 16: frags(YF)
        mul(Y[c % 4], Y[c % 4], P32); put(Y[c % 4], c % 16)
    frags(YF + 16)
    put(X0, 4)
    mul(XC, X0, P1_, True); put(XC, 5)
    mul(X2, XC, P1_, True); put(X2, 6)
    mul(XC, X2, P1_, True); put(XC, 7)
    mul(X4, XC, P1_, True); put(X4, 8)
    mul(XC, X4, P1_, True); put(XC, 9)
    mul(X6, XC, P1_, True); put(X6, 10)
    mul(XC, X6, P1_, True); put(XC, 11)
    mul(X0, X0, P256, True); put(X0, 0)
    mul(X2, X2, P256, True); put(X2, 12)
    mul(X4, X4, P256, True); put(X4, 13)
    mul(X6, X6, P256, True); put(X6, 14)
    mul(X0, X0, P256, True); put(X0, 1)
    mul(X4, X4, P256, True); put(X4, 15)
    mul(X0, X0, P256, True); put(X0, 2)
    mul(X4, X4, P256, True)
    mul(X0, X0, P256, True); put(X0, 3)
    frags(XF)
    put(X4, 12)
    for r in range(4):
        mul(X0, X0, P256, True); put(X0, r)
    frags(XF + 16)
    e("s_waitcnt lgkmcnt(4)")
    def mm(rt, ct, ks):
        d = D + 4 * (2 * rt + ct)
        e(f"v_mfma_f32_16x16x32_bf16 {vr(d,4)}, {vr(XF+16*rt+4*ks,4)}, {vr(YF+16*ct+4*ks,4)}, {vr(d,4)}")
    for ks in range(4):
        for ct in range(2): mm(0, ct, ks)
    e("s_waitcnt lgkmcnt(0)")
    for ks in range(4):
        for ct in range(2): mm(1, ct, ks)
    for i in range(6): e(f"v_accvgpr_read_b32 v{96+i}, a{i}")
    e("s_sub_u32 s79, s79, 1\ns_cmp_lg_u32 s79, 0\ns_cbranch_scc1 H_UNIT")
    nonce_issue(e, 8)
    for rt in range(2):
        for ct in range(2):
            for r in range(4):
                e(f"ds_write_b32 v12, v{D+4*(2*rt+ct)+r} offset:{(4*rt+r)*128+ct*64}")
    signal(e, P1, "v6")
    e(f"""
    @S 3
    s_mul_i32 s80, s76, 1171
    s_lshr_b32 s80, s80, 16
    s_mul_i32 s65, s80, 56
    s_sub_u32 s65, s76, s65
    s_lshr_b32 s65, s65, 5
    s_lshl_b32 s66, s80, 1
    s_add_u32 s65, s65, s66
    s_lshl_b32 s65, s65, 12
    s_add_u32 s81, s65, {FX}
    v_lshlrev_b32 v9, 6, v1
    s_mul_i32 s77, s6, {2*KGS}
    s_waitcnt vmcnt(0)
    """)
    nonce_check(e, 8)
    e("buffer_load_dword v10, v9, s[44:47], s81 offen sc1")
    wait(e, P1, 2, "v6")
    e(f"""
    s_lshl_b32 s65, s7, 6
    v_add_u32 v14, s65, v1
    v_lshlrev_b32 v15, 2, v14
    v_add_u32 v15, s77, v15
    ds_read2st64_b32 v[16:17], v15 offset0:{(512-128)//256} offset1:{(512-128)//256+18}
    """)
    e.l.pop()
    e(f"""
    v_add_u32 v18, 384, v15
    v_add_u32 v19, 388, v15
    ds_read2st64_b32 v[16:17], v18 offset0:0 offset1:18
    ds_read2st64_b32 v[20:21], v19 offset0:0 offset1:18
    v_and_b32 v22, 1, v1
    v_cmp_eq_u32 vcc, 1, v22
    s_cmp_eq_u32 s7, 0
    s_cbranch_scc1 H_T0
    v_subrev_u32 v18, 128, v15
    v_subrev_u32 v19, 124, v15
    v_add_u32 v22, {3648-256}, v15
    ds_read2st64_b32 v[24:25], v18 offset0:0 offset1:18
    ds_read2st64_b32 v[26:27], v19 offset0:0 offset1:18
    ds_read2st64_b32 v[28:29], v22 offset0:0 offset1:18
    s_waitcnt lgkmcnt(0)
    v_add_f32 v24, v24, v25
    v_add_f32 v26, v26, v27
    v_add_f32 v28, v28, v29
    v_cvt_pk_bf16_f32 v48, v26, v26
    v_cvt_pk_bf16_f32 v49, v28, v28
    v_cvt_pk_bf16_f32 v50, v28, v24
    v_cvt_pk_bf16_f32 v51, v24, v24
    v_mov_b32 v30, v51
    s_branch H_T2
    H_T0:
    v_and_b32 v18, 31, v1
    v_lshlrev_b32 v18, 2, v18
    v_add_u32 v18, s77, v18
    v_lshrrev_b32 v19, 5, v1
    """)
    A0 = [1088, 1216, 1344, 1472, 2176, 2304, 2432, 2560]
    A1 = [0, 0, 3264, 3392, 3392, 3392, 3520, 4]
    for j in range(8):
        e(f"""
        s_movk_i32 s65, {A1[j]-A0[j]}
        v_add_u32 v22, {A0[j]}, v18
        v_mad_i32_i24 v22, v19, s65, v22
        ds_read2st64_b32 {vr(32+2*j,2)}, v22 offset0:0 offset1:18
        """)
    e(f"""
    v_cmp_eq_u32 s[68:69], 0, v1
    v_mov_b32 v23, s67
    s_nop 0
    v_cndmask_b32 v23, 0, v23, s[68:69]
    s_waitcnt lgkmcnt(0)
    """)
    for j in range(8): e(f"v_add_f32 v{32+2*j}, v{32+2*j}, v{33+2*j}")
    e("v_add_f32 v32, v32, v23\nv_mov_b32 v30, 0")
    for i in range(4): e(f"v_cvt_pk_bf16_f32 v{48+i}, v{32+2*(7-2*i)}, v{32+2*(6-2*i)}")
    e(f"""
    s_nop 1
    v_mov_b32_dpp v30, v48 wave_shr:1 row_mask:0xf bank_mask:0xf
    H_T2:
    v_add_f32 v16, v16, v17
    v_add_f32 v20, v20, v21
    v_cndmask_b32 v24, v16, v20, vcc
    v_cvt_pk_bf16_f32 v56, v20, v20
    v_cvt_pk_bf16_f32 v57, v20, v24
    v_cvt_pk_bf16_f32 v58, v16, v16
    v_cvt_pk_bf16_f32 v59, v16, v16
    v_alignbit_b32 v52, v49, v48, 16
    v_alignbit_b32 v53, v50, v49, 16
    v_alignbit_b32 v54, v51, v50, 16
    v_alignbit_b32 v55, v30, v51, 16
    v_alignbit_b32 v60, v57, v56, 16
    v_alignbit_b32 v61, v58, v57, 16
    v_mov_b32 v62, v58
    v_mov_b32 v63, v58
    v_sub_u32 v14, 127, v14
    v_lshlrev_b32 v14, 4, v14
    s_mul_i32 s77, s6, {ECH}
    s_add_u32 s77, s77, {XB}
    v_add_u32 v14, s77, v14
    H_XPOLL:
    s_waitcnt vmcnt(0)
    v_cmp_ne_u32 vcc, s60, v10
    s_cbranch_vccz H_XOK
    s_sub_u32 s61, s61, 1
    s_cbranch_scc1 BAIL
    s_sleep 2
    buffer_load_dword v10, v9, s[44:47], s81 offen sc1
    s_branch H_XPOLL
    H_XOK:
    v_lshrrev_b32 v16, 2, v1
    v_and_b32 v17, 3, v1
    v_lshlrev_b32 v18, 7, v16
    v_lshl_add_u32 v18, v17, 4, v18
    s_lshl_b32 s65, s76, 13
    s_lshl_b32 s66, s7, 12
    s_add_u32 s65, s65, s66
    s_lshl_b32 s66, s6, 6
    s_add_u32 s65, s65, s66
    s_add_u32 s65, s65, {XT2}
    buffer_load_dwordx4 v[64:67], v18, s[44:47], s65 offen sc1
    buffer_load_dwordx4 v[68:71], v18, s[44:47], s65 offen offset:2048 sc1
    v_mul_u32_u24 v17, 1536, v17
    v_lshl_add_u32 v17, v16, 4, v17
    s_mul_i32 s82, s6, {UCH}
    s_add_u32 s82, s82, {UB}
    s_lshl_b32 s65, s7, 8
    s_add_u32 s65, s65, s82
    v_add_u32 v19, s65, v17
    s_lshl_b32 s65, s7, 9
    s_add_u32 s65, s65, s82
    v_add_u32 v17, s65, v17
    v_mov_b32 v72, 0
    v_mov_b32 v73, 0
    v_mov_b32 v74, 0
    v_mov_b32 v75, 0
    s_mul_i32 s65, s7, {OOF}
    s_add_u32 s65, s65, s77
    v_add_u32 v20, s65, v2
    """)
    wait(e, C3, 4)
    e(f"""
    ds_write_b128 v14, v[56:59]
    ds_write_b128 v14, v[60:63] offset:{OOF}
    ds_write_b128 v14, v[48:51] offset:2048
    ds_write_b128 v14, v[52:55] offset:{2048+OOF}
    ds_write_b128 v19, v[72:75]
    s_mov_b64 exec, 15
    ds_write_b128 v20, v[72:75] offset:4096
    s_mov_b64 exec, -1
    s_waitcnt vmcnt(0)
    ds_write_b128 v17, v[64:67] offset:512
    ds_write_b128 v17, v[68:71] offset:768
    """)
    signal(e, P2, "v6")
    srd(e, 48, 16, 448 * 896)
    wdma_voff(e, 7)
    e(f"""
    v_and_b32 v21, 31, v1
    v_lshrrev_b32 v22, 5, v1
    v_lshlrev_b32 v8, 3, v22
    v_sub_u32 v8, v8, v21
    v_add_u32 v8, 2047, v8
    v_and_b32 v9, 1, v8
    v_lshrrev_b32 v8, 1, v8
    v_mul_u32_u24 v9, {OOF}, v9
    v_lshl_add_u32 v8, v8, 2, v9
    s_lshl_b32 s65, s7, 10
    s_sub_u32 s65, s77, s65
    v_add_u32 v14, s65, v8
    v_subrev_u32 v15, 2048, v14
    v_mul_u32_u24 v8, 1536, v22
    v_lshl_add_u32 v8, v21, 4, v8
    s_lshl_b32 s65, s7, 8
    s_sub_u32 s65, s82, s65
    s_add_u32 s65, s65, 512
    v_add_u32 v16, s65, v8
    s_lshl_b32 s65, s3, 10
    s_add_u32 s69, s65, {WB}
    s_mul_i32 s68, s3, 3584
    s_mul_i32 s66, s5, 224
    s_add_u32 s68, s68, s66
    """)
    AC, CF = 64, (32, 48)
    for i in range(32): e(f"v_mov_b32 v{AC+i}, 0")
    wait(e, C5, 4)
    wait(e, P2, 2, "v6")
    e("@S 4")
    def cread(h):
        c = CF[h]
        return [f"ds_read2_b32 {vr(c,2)}, v14 offset0:{8*h} offset1:{8*h+1}", f"ds_read2_b32 {vr(c+2,2)}, v14 offset0:{8*h+2} offset1:{8*h+3}",
                f"ds_read_b128 {vr(c+8,4)}, v16 offset:{3072*h}",
                f"ds_read2_b32 {vr(c+4,2)}, v15 offset0:{8*h} offset1:{8*h+1}", f"ds_read2_b32 {vr(c+6,2)}, v15 offset0:{8*h+2} offset1:{8*h+3}",
                f"ds_read_b128 {vr(c+12,4)}, v16 offset:{3072*h+512}"]
    def cm(h):
        c = CF[h]
        return [f"v_mfma_f32_32x32x16_bf16 {vr(AC,16)}, {vr(c,4)}, {vr(c+8,4)}, {vr(AC,16)}",
                f"v_mfma_f32_32x32x16_bf16 {vr(AC+16,16)}, {vr(c+4,4)}, {vr(c+8,4)}, {vr(AC+16,16)}",
                f"v_mfma_f32_32x32x16_bf16 {vr(AC+16,16)}, {vr(c,4)}, {vr(c+12,4)}, {vr(AC+16,16)}"]
    for r in cread(0): e(r)
    e("s_mov_b32 s79, 16\nH_CONV:")
    for r in cread(1): e(r)
    e(f"""
    v_subrev_u32 v14, 64, v14
    v_subrev_u32 v15, 64, v15
    v_subrev_u32 v16, 16, v16
    s_cmp_le_u32 s79, 2
    s_cbranch_scc1 H_NODMA
    s_mov_b32 m0, s69
    s_add_u32 s69, s69, 4096
    buffer_load_dwordx4 v7, s[48:51], s68 offen lds
    s_mov_b32 m0, s69
    s_add_u32 s68, s68, 14336
    s_add_u32 s69, s69, 4096
    buffer_load_dwordx4 v7, s[48:51], s68 offen lds
    s_add_u32 s68, s68, 14336
    H_NODMA:
    s_waitcnt lgkmcnt(6)
    """)
    for m in cm(0): e(m)
    for r in cread(0): e(r)
    e("s_waitcnt lgkmcnt(6)")
    for m in cm(1): e(m)
    e(f"""
    s_sub_u32 s79, s79, 1
    s_cmp_lg_u32 s79, 0
    s_cbranch_scc1 H_CONV
    s_mul_i32 s65, s3, {KGS}
    v_add_u32 v8, s65, v2
    s_xor_b32 s65, s3, 1
    s_mul_i32 s65, s65, {KGS}
    v_add_u32 v9, s65, v2
    s_waitcnt lgkmcnt(0)
    s_nop 7
    s_cmp_eq_u32 s7, 0
    s_cbranch_scc1 H_C0
    """)
    for i in range(4): e(f"ds_write_b128 v8, {vr(AC+4*i,4)} offset:{1024*i}")
    for i in range(16): e(f"v_mov_b32 v{AC+i}, v{AC+16+i}")
    e("s_branch H_C1\nH_C0:")
    for i in range(4): e(f"ds_write_b128 v8, {vr(AC+16+4*i,4)} offset:{1024*i}")
    e("H_C1:")
    signal(e, P3, "v6")
    e("s_waitcnt vmcnt(0)")
    signal(e, C6)
    wait(e, P3, 2, "v6")
    for i in range(4): e(f"ds_read_b128 {vr(32+4*i,4)}, v9 offset:{1024*i}")
    e(f"""
    v_mul_u32_u24 v8, 28672, v21
    v_lshl_add_u32 v8, v22, 4, v8
    s_lshl_b32 s65, s76, 1
    s_add_u32 s65, s65, s6
    s_lshl_b32 s65, s65, 6
    s_mul_i32 s66, s7, {32*28672}
    s_add_u32 s65, s65, s66
    s_add_u32 s65, s65, {BT2}
    s_mov_b32 s75, 0xfffffffe
    s_waitcnt lgkmcnt(0)
    """)
    for i in range(16): e(f"v_add_f32 v{AC+i}, v{AC+i}, v{32+i}")
    for i in range(8): e(f"v_cvt_pk_bf16_f32 v{32+i}, v{AC+2*i}, v{AC+2*i+1}")
    for i in range(8): e(f"v_min_u32 v{32+i}, s75, v{32+i}")
    e(f"""
    s_cmp_ge_u32 s2, 224
    v_permlane32_swap_b32 v32, v34
    v_permlane32_swap_b32 v33, v35
    v_permlane32_swap_b32 v36, v38
    v_permlane32_swap_b32 v37, v39
    s_cbranch_scc1 H_NOBT
    buffer_store_dwordx4 v[32:35], v8, s[44:47], s65 offen sc1
    buffer_store_dwordx4 v[36:39], v8, s[44:47], s65 offen offset:32 sc1
    H_NOBT:
    @S 5
    @T 1
    v_bfe_u32 v8, v1, 2, 2
    v_lshl_add_u32 v9, v22, 2, v8
    v_lshlrev_b32 v9, 8, v9
    v_bfe_u32 v10, v1, 4, 1
    v_lshlrev_b32 v10, 5, v10
    v_and_b32 v11, 3, v1
    v_lshl_add_u32 v10, v11, 3, v10
    s_lshl_b32 s65, s3, 6
    v_add_u32 v10, s65, v10
    v_lshlrev_b32 v8, 6, v8
    v_xor_b32 v10, v10, v8
    v_add_u32 v9, v9, v10
    v_add_u32 v10, {WB + 57344}, v9
    v_add_u32 v9, {WB}, v9
    """)
    wait(e, C6, 4)
    for h in range(16):
        for s in range(2):
            for i in range(2):
                e(f"ds_read_b64_tr_b16 {ar(8*h+4*s+2*i,2)}, v{9 if h < 8 else 10} offset:{7168*(h%8)+4096*s+2048*i}")
    ID, BF, YA, OA = 40, 48, 64, 80
    e(f"""
    v_and_b32 v8, 1, v21
    v_lshlrev_b32 v8, 4, v8
    v_mov_b32 v9, 0x3f80
    v_lshlrev_b32 v9, v8, v9
    v_lshrrev_b32 v10, 1, v21
    v_lshlrev_b32 v11, 2, v22
    v_sub_u32 v10, v10, v11
    """)
    for s in range(2):
        for w in range(4):
            e(f"v_cmp_eq_u32 vcc, {8*s+w}, v10\ns_nop 1\nv_cndmask_b32 v{ID+4*s+w}, 0, v9, vcc")
    e(f"""
    v_lshlrev_b32 v8, 6, v21
    v_lshl_add_u32 v8, v22, 4, v8
    s_mul_i32 s65, s4, 28672
    s_mul_i32 s66, s5, 7168
    s_add_u32 s65, s65, s66
    s_lshl_b32 s66, s3, 11
    s_add_u32 s65, s65, s66
    s_add_u32 s65, s65, {BT2}
    v_mul_u32_u24 v12, 896, v21
    v_lshl_add_u32 v12, v22, 4, v12
    s_mul_i32 s66, s4, {32*896}
    s_mul_i32 s67, s5, 224
    s_add_u32 s66, s66, s67
    s_lshl_b32 s67, s3, 6
    s_add_u32 s66, s66, s67
    v_lshlrev_b32 v13, 2, v21
    v_add_u32 v14, {STG}, v2
    s_cmp_eq_u32 s3, 3
    s_cselect_b32 s70, 0xffff, -1
    s_mov_b32 s71, s70
    s_waitcnt lgkmcnt(0)
    """)
    signal(e, C7)
    srd(e, 48, 38, 2048 * 896)
    e(f"""
    ds_read_b32 v15, v13 offset:{GOF}
    @S 6
    @T 2
    s_barrier
    @T 3
    H_YPOLL:
    buffer_load_dwordx4 {vr(BF,4)}, v8, s[44:47], s65 offen sc1
    buffer_load_dwordx4 {vr(BF+4,4)}, v8, s[44:47], s65 offen offset:32 sc1
    s_waitcnt vmcnt(0)
    v_max3_u32 v16, v{BF}, v{BF+1}, v{BF+2}
    v_max3_u32 v16, v16, v{BF+3}, v{BF+4}
    v_max3_u32 v16, v16, v{BF+5}, v{BF+6}
    v_max_u32 v16, v16, v{BF+7}
    v_cmp_eq_u32 vcc, -1, v16
    s_and_b64 vcc, vcc, s[70:71]
    s_cbranch_vccz H_YOK
    s_sub_u32 s61, s61, 1
    s_cbranch_scc1 BAIL
    s_branch H_YPOLL
    H_YOK:
    v_mfma_f32_32x32x16_bf16 {vr(YA,16)}, {vr(BF,4)}, {vr(ID,4)}, 0
    v_mfma_f32_32x32x16_bf16 {vr(YA,16)}, {vr(BF+4,4)}, {vr(ID+4,4)}, {vr(YA,16)}
    s_waitcnt lgkmcnt(0)
    v_sub_f32 v16, 1.0, v15
    s_nop 10
    """)
    for i in range(16): e(f"v_mul_f32 v{YA+i}, v16, v{YA+i}")
    e("@T 4\ns_barrier\n@T 5")
    FB = 96
    def rd(s): return [f"ds_read_b128 {vr(FB+4*(s%8),4)}, v14 offset:{1024*s}"]
    def mf(s): return f"v_mfma_f32_32x32x16_bf16 {vr(OA,16)}, {ar(4*s,4)}, {vr(FB+4*(s%8),4)}, " + ("0" if s == 0 else vr(OA,16))
    gemm_loop(e, 32, rd, mf, 7, 1)
    e("s_nop 11")
    for i in range(16): e(f"v_fmac_f32 v{YA+i}, v15, v{OA+i}")
    for i in range(8): e(f"v_cvt_pk_bf16_f32 v{32+i}, v{YA+2*i}, v{YA+2*i+1}")
    e(f"""
    s_cmp_eq_u32 s3, 3
    s_nop 0
    v_permlane32_swap_b32 v32, v34
    v_permlane32_swap_b32 v33, v35
    v_permlane32_swap_b32 v36, v38
    v_permlane32_swap_b32 v37, v39
    buffer_store_dwordx4 v[32:35], v12, s[48:51], s66 offen
    s_cbranch_scc1 H_END
    buffer_store_dwordx4 v[36:39], v12, s[48:51], s66 offen offset:32
    H_END:
    @E 0
    BAIL:
    s_endpgm
    """)

def main(out):
    e = A()
    hdr = f"""; gated mix of MQA attention and an S4 convolution: one launch, workgroups hand data over through d_ws
; @launch grid=(256,1,1) block=(512,1,1) lds={LDS}
.amdgcn_target "amdgcn-amd-amdhsa--gfx950"
.text
"""
    prologue(e); attn_path(e); helper_path(e)
    tail = f""".section .rodata,"a"
.p2align 6
.amdhsa_kernel {NAME}
  .amdhsa_next_free_vgpr 256
  .amdhsa_next_free_sgpr 102
  .amdhsa_accum_offset 128
  .amdhsa_group_segment_fixed_size 0
  .amdhsa_kernarg_size 144
  .amdhsa_user_sgpr_count 2
  .amdhsa_user_sgpr_kernarg_segment_ptr 1
  .amdhsa_system_sgpr_workgroup_id_x 1
.end_amdhsa_kernel
"""
    open(out, "w").write(hdr + e.text() + tail)

if __name__ == "__main__":
    main(sys.argv[1] if len(sys.argv) > 1 else "f2.s")
```

```python
import math, struct, sys, os

def f2u(x): return struct.unpack("<I", struct.pack("<f", x))[0]
LOG2E = 1.4426950408889634
QSCALE = (28 ** -0.5) * LOG2E
NAME = "gated_mix__grouped_kv_mqa__ssm_conv_s4__prompt_kernel"

KVF = 0x000000
FLG = 0x040000
FX  = 0x044000
XT2 = 0x080000
OX  = 0x280000
BT2 = 0x480000
WSZ = 0x640000
KGS = 4608
SY = 18432
XB = 18944
WB = 48128
WEND = WB + 448 * 256
LDS = 163840
IMG = WB + 336 * 256
ECH, OOF, UB, UCH = 8384, 4224, XB + 16768, 6144
C1, CA, C3, C4, C5, KVD, P1, P2, P3, C6, C7, CI, XF_, CB, G0, GOF = [SY + x for x in (0, 4, 8, 12, 16, 20, 24, 32, 40, 48, 52, 56, 60, 64, 80, 128)]
CX = WB + 49152
STG = WB + 53248
SAFE_BOUND = 80.0
SHIFT = 64.0

BUDGET = int(os.environ.get("BUDGET", "0x8000"), 0)
ABL = os.environ.get("ABL", "")
NPRE = int(os.environ.get("NPRE", "8"))
PREF = int(os.environ.get("PREF", "1"))
PSH = int(os.environ.get("PSH", "7"))
HPRIO = int(os.environ.get("HPRIO", "1"))
LPRIO = int(os.environ.get("LPRIO", "0"))
ROT = int(os.environ.get("ROT", "1"))
APRIO = int(os.environ.get("APRIO", "3"))
STAMP = int(os.environ.get("STAMP", "0"))
TSB = 0x1000000
def stamp(e, i):
    if STAMP: e(f"s_memrealtime s[{100-2*i}:{101-2*i}]\ns_waitcnt lgkmcnt(0)")
def stamp_end(e, kidx):
    if not STAMP: return
    e(f"""
    s_waitcnt vmcnt(0)
    s_memrealtime s[86:87]
    s_load_dwordx2 s[84:85], s[0:1], 136
    s_mov_b64 exec, 1
    v_lshrrev_b32 v2, 6, v0
    s_lshl_b32 s83, s2, 4
    v_add_u32 v2, s83, v2
    v_lshlrev_b32 v2, 6, v2
    v_add_u32 v2, {TSB + kidx*0x100000}, v2
    s_waitcnt lgkmcnt(0)
    """)
    for i in range(16): e(f"v_mov_b32 v{4+i}, s{86+i}")
    for i in range(4): e(f"global_store_dwordx4 v2, v[{4+4*i}:{7+4*i}], s[84:85] offset:{16*i}")

class A:
    def __init__(self): self.l = []; self.n = 0
    def __call__(self, s=""):
        for line in s.split("\n"):
            line = line.strip()
            if not line: continue
            if line.startswith("@S "):
                if STAMP == 1 or line == "@S 0": stamp(self, int(line[3:]))
                continue
            if line.startswith("@T "):
                if STAMP == 2: stamp(self, int(line[3:]))
                continue
            if line.startswith("@E "): stamp_end(self, int(line[3:])); continue
            if line.endswith(":") or line.startswith("."): self.l.append(line)
            else: self.l.append("    " + line)
    def lab(self, p="L"):
        self.n += 1; return f"{p}{self.n}"
    def text(self): return "\n".join(self.l) + "\n"

def vr(a, n): return f"v[{a}:{a+n-1}]"
def ar(a, n): return f"a[{a}:{a+n-1}]"
def sr(a, n): return f"s[{a}:{a+n-1}]"
def srd(e, d, base, nbytes):
    e(f"s_mov_b32 s{d}, s{base}\ns_mov_b32 s{d+1}, s{base+1}\ns_mov_b32 s{d+2}, {nbytes}\ns_mov_b32 s{d+3}, 0x00020000")

def signal(e, off, addr="v3", restore="s_mov_b64 exec, -1"):
    e(f"s_mov_b64 exec, 1\nds_add_u32 {addr}, v4 offset:{off}\n{restore}")
def wait(e, off, n, addr="v3", sleep=1):
    l = e.lab("W"); d = e.lab("D")
    e(f"""
    {l}:
    ds_read_b32 v5, {addr} offset:{off}
    s_waitcnt lgkmcnt(0)
    v_readfirstlane_b32 s64, v5
    s_cmp_ge_u32 s64, {n}
    s_cbranch_scc1 {d}
    s_sub_u32 s61, s61, 1
    s_cbranch_scc1 BAIL
    s_sleep {sleep}
    s_branch {l}
    {d}:
    """)
def nonce_issue(e, v): e(f"global_load_dword v{v}, v3, s[40:41] sc1")
def nonce_check(e, v):
    l = e.lab("N"); d = e.lab("D")
    e(f"""
    {l}:
    v_readfirstlane_b32 s60, v{v}
    s_cmp_lg_u32 s60, 0
    s_cbranch_scc1 {d}
    s_sub_u32 s61, s61, 1
    s_cbranch_scc1 BAIL
    global_load_dword v{v}, v3, s[40:41] sc1
    s_waitcnt vmcnt(0)
    s_branch {l}
    {d}:
    """)

def gemm_loop(e, nsteps, reads, mfma, depth, nper):
    for s in range(min(depth, nsteps)):
        for r in reads(s): e(r)
    for s in range(nsteps):
        if s + depth < nsteps:
            for r in reads(s + depth): e(r)
            out = depth * nper
        else:
            out = (nsteps - 1 - s) * nper
        e(f"s_waitcnt lgkmcnt({out})")
        e(mfma(s))

def cmul(e, z, x, y, t, conj=False):
    e(f"v_pk_mul_f32 {vr(t,2)}, {vr(x,2)}, {vr(y,2)} op_sel:[0,0] op_sel_hi:[1,0]")
    neg = "neg_hi:[1,0,0]" if conj else "neg_lo:[1,0,0]"
    e(f"v_pk_fma_f32 {vr(z,2)}, {vr(x,2)}, {vr(y,2)}, {vr(t,2)} op_sel:[1,1,0] op_sel_hi:[0,1,1] {neg}")

def wdma_voff(e, v):
    e(f"""
    v_lshrrev_b32 v8, 4, v1
    v_and_b32 v9, 15, v1
    v_lshlrev_b32 v10, 2, v8
    v_xor_b32 v9, v9, v10
    v_mul_u32_u24 v8, 896, v8
    v_lshl_add_u32 v{v}, v9, 4, v8
    """)

def prologue(e):
    e(f"""
    .globl {NAME}
    .p2align 8
    .type {NAME},@function
    {NAME}:
    s_cmp_ge_u32 s2, 256
    s_cbranch_scc1 BAIL
    @S 0
    s_load_dwordx16 s[8:23], s[0:1], 0
    s_load_dwordx16 s[24:39], s[0:1], 64
    s_load_dwordx4 s[40:43], s[0:1], 128
    v_lshrrev_b32 v2, 6, v0
    v_and_b32 v1, 63, v0
    v_readfirstlane_b32 s3, v2
    v_lshlrev_b32 v2, 4, v1
    v_mov_b32 v3, 0
    v_mov_b32 v4, 1
    s_and_b32 s4, s2, 7
    s_lshl_b32 s4, s4, 3
    s_bfe_u32 s5, s2, 0x30003
    s_add_u32 s4, s4, s5
    s_lshr_b32 s5, s2, 6
    s_mov_b32 s61, {BUDGET}
    s_mov_b32 s62, 0
    s_mov_b32 s63, -1
    s_cmp_lg_u32 s3, 0
    s_cbranch_scc1 NOZERO
    v_mov_b32 v8, 0
    v_mov_b32 v9, 0
    v_mov_b32 v10, 0
    v_mov_b32 v11, 0
    v_lshlrev_b32 v6, 3, v1
    v_add_u32 v7, {WEND}, v2
    ds_write_b64 v6, v[8:9] offset:{SY}
    ds_write_b128 v7, v[8:11]
    NOZERO:
    s_waitcnt lgkmcnt(0)
    """)
    srd(e, 44, 42, WSZ)
    e("s_cmp_ge_u32 s3, 4\ns_cbranch_scc1 HELPER")

class Lds:
    def __init__(self, e): self.e = e; self.n = 0; self.mark = {}
    def op(self, text, tag=None):
        self.e(text); self.n += 1
        if tag is not None: self.mark[tag] = self.n
    def wait(self, tag):
        self.e(f"s_waitcnt lgkmcnt({min(15, self.n - self.mark[tag])})")

def xfrag(s): return ar(64 + 4*s, 4) if s < 16 else vr(80 + 4*(s-16), 4)
def xfrag_addr(e, v):
    e(f"""
    v_lshrrev_b32 v12, 5, v1
    v_and_b32 v13, 31, v1
    v_mul_u32_u24 v14, 912, v13
    v_lshl_add_u32 v14, v12, 4, v14
    v_add_u32 v{v}, {XB}, v14
    """)
def xfrag_reads(e, v):
    if 'noxf' in ABL: return
    for s in range(28): e(f"ds_read_b128 {xfrag(s)}, v{v} offset:{32*s}")

def attn_path(e):
    Q, S, P, KV, CR = 16, (48, 64), (80, 88), (96, 112), 8
    e(f"s_setprio {APRIO}")
    if PREF:
        e(f"""
        s_lshr_b32 s64, s2, 3
        v_lshlrev_b32 v8, {PSH}, v1
        s_mov_b32 s55, 0x00020000
        s_cmp_lg_u32 s3, 0
        s_cbranch_scc1 A_P1
        s_mov_b32 s52, s8
        s_mov_b32 s53, s9
        s_lshl_b32 s65, s4, 2
        s_add_u32 s65, s65, s5
        s_mul_i32 s65, s65, 7168
        s_add_u32 s54, s65, 7168
        s_branch A_PGO
        A_P1:
        s_cmp_eq_u32 s3, 3
        s_cbranch_scc1 A_P3
        s_mov_b32 s52, s10
        s_mov_b32 s53, s11
        s_mul_i32 s65, s64, 12544
        s_add_u32 s54, s65, 12544
        s_cmp_eq_u32 s3, 1
        s_cselect_b32 s66, 0, 6272
        s_cselect_b32 s67, 6272, 0
        s_add_u32 s65, s65, s66
        s_sub_u32 s54, s54, s67
        s_branch A_PGO
        A_P3:
        s_cmp_lt_u32 s64, 16
        s_cselect_b32 s52, s12, s14
        s_cselect_b32 s53, s13, s15
        s_and_b32 s65, s64, 15
        s_mul_i32 s65, s65, 1664
        s_add_u32 s54, s65, 1664
        s_min_u32 s54, s54, {448*56}
        A_PGO:
        buffer_load_dword v100, v8, s[52:55], s65 offen
        """)
        if PSH == 6: e("v_add_u32 v8, 4096, v8\nbuffer_load_dword v100, v8, s[52:55], s65 offen")
    e("s_barrier")
    srd(e, 48, 8, 2048 * 896)
    e(f"""
    s_mul_i32 s64, s3, {8*912}
    s_add_u32 m0, s64, {XB}
    s_lshl_b32 s65, s4, 5
    s_lshl_b32 s66, s3, 3
    s_add_u32 s65, s65, s66
    s_mul_i32 s65, s65, 896
    s_mov_b32 exec_hi, 0x00ffffff
    """)
    for i in range(8):
        e("buffer_load_dwordx4 v2, s[48:51], s65 offen lds")
        if i < 7: e("s_add_u32 m0, m0, 912\ns_add_u32 s65, s65, 896")
    e(f"""
    s_mov_b32 exec_hi, -1
    s_cmp_ge_u32 s5, 2
    s_cbranch_scc1 A_NOIMG
    s_cmp_eq_u32 s5, 0
    s_cselect_b32 s52, s12, s14
    s_cselect_b32 s53, s13, s15
    s_mov_b32 s54, {448*56}
    s_mov_b32 s55, 0x00020000
    s_mul_i32 s65, s3, {7*1024}
    s_add_u32 m0, s65, {IMG}
    s_nop 0
    """)
    for i in range(7):
        e("buffer_load_dwordx4 v2, s[52:55], s65 offen lds")
        if i < 6: e("s_add_u32 m0, m0, 1024\ns_add_u32 s65, s65, 1024")
    e("A_NOIMG:\n@S 1")
    if ABL == "kgen": e("@E 0\ns_endpgm")
    if 'dmaonly' in ABL: e("s_cmp_lt_u32 s3, 2\ns_cbranch_scc1 BAIL")
    e("s_cmp_ge_u32 s3, 2\ns_cbranch_scc1 A_DMAW")
    srd(e, 56, 36, 896)
    GW = 12
    e(f"""
    buffer_load_dwordx4 {vr(GW,4)}, v2, s[56:59], 0 offen
    v_mov_b32 v8, -1
    v_mov_b32 v9, -1
    v_mov_b32 v10, -1
    v_mov_b32 v11, -1
    s_mul_i32 s65, s4, 28672
    s_mul_i32 s66, s5, 7168
    s_add_u32 s65, s65, s66
    s_lshl_b32 s66, s3, 12
    s_add_u32 s65, s65, s66
    s_add_u32 s65, s65, {BT2}
    s_lshl_b32 s67, s3, 10
    s_sub_u32 s67, s65, s67
    buffer_store_dwordx4 v[8:11], v2, s[44:47], s65 offen sc1
    buffer_store_dwordx4 v[8:11], v2, s[44:47], s65 offen offset:1024 sc1
    buffer_store_dwordx4 v[8:11], v2, s[44:47], s65 offen offset:2048 sc1
    buffer_store_dwordx4 v[8:11], v2, s[44:47], s67 offen offset:3072 sc1
    s_lshl_b32 s65, s4, 2
    s_add_u32 s65, s65, s5
    s_lshl_b32 s65, s65, 13
    s_add_u32 s65, s65, s66
    s_add_u32 s65, s65, {OX}
    """)
    for i in range(4): e(f"buffer_store_dwordx4 v[8:11], v2, s[44:47], s65 offen offset:{1024*i} sc1")
    XA, WA, XT = 6, 7, 60
    e(f"""
    v_and_b32 v16, 15, v1
    v_lshrrev_b32 v17, 4, v1
    s_lshl_b32 s65, s3, 4
    v_add_u32 v18, s65, v16
    v_mul_u32_u24 v18, 912, v18
    v_lshl_add_u32 v18, v17, 4, v18
    v_add_u32 v{XA}, {XB}, v18
    v_bfe_u32 v18, v1, 2, 2
    v_lshl_add_u32 v18, v17, 3, v18
    v_and_b32 v19, 3, v1
    v_lshlrev_b32 v19, 3, v19
    v_mad_u32_u24 v20, v18, 56, v19
    v_add_u32 v{WA}, {IMG}, v20
    v_mul_u32_u24 v18, 912, v18
    v_add_u32 v10, v18, v19
    s_mul_i32 s65, s5, 224
    s_lshl_b32 s66, s3, 7
    s_add_u32 s65, s65, s66
    s_add_u32 s65, s65, {XB}
    v_add_u32 v10, s65, v10
    v_and_b32 v18, 1, v17
    v_lshl_add_u32 v18, v18, 5, v16
    v_lshlrev_b32 v18, 4, v18
    v_lshrrev_b32 v19, 5, v1
    s_cmp_eq_u32 s5, 0
    s_cselect_b32 s65, 10, 8
    v_lshlrev_b32 v19, s65, v19
    v_add_u32 v9, v18, v19
    v_lshrrev_b32 v18, 1, v16
    v_lshlrev_b32 v18, 13, v18
    v_and_b32 v19, 1, v1
    v_lshl_add_u32 v18, v19, 6, v18
    v_lshl_add_u32 v11, v17, 4, v18
    v_lshrrev_b32 v18, 5, v1
    v_and_b32 v19, 31, v1
    v_mul_u32_u24 v19, 912, v19
    v_lshl_add_u32 v19, v18, 4, v19
    v_add_u32 v8, {XB}, v19
    s_mul_i32 s65, s5, 56
    s_lshl_b32 s66, s3, 5
    s_add_u32 s65, s65, s66
    s_lshl_b32 s65, s65, 13
    s_lshl_b32 s66, s4, 7
    s_add_u32 s65, s65, s66
    s_add_u32 s69, s65, {XT2}
    s_lshl_b32 s65, s5, 1
    s_add_u32 s65, s65, s3
    s_lshl_b32 s65, s65, 6
    s_add_u32 s65, s65, s4
    s_lshl_b32 s65, s65, 6
    s_add_u32 s70, s65, {FX}
    s_lshl_b32 s65, s4, 2
    s_lshl_b32 s66, s5, 1
    s_add_u32 s65, s65, s66
    s_add_u32 s65, s65, s3
    s_lshl_b32 s65, s65, 6
    s_add_u32 s71, s65, {FLG}
    s_lshl_b32 s68, s4, 12
    """)
    for i in range(64): e(f"v_accvgpr_write_b32 a{i}, 0")
    e("s_waitcnt vmcnt(9)")
    signal(e, C1)
    wait(e, C1, 4)
    e("@S 2")
    for g in range(4):
        e(f"ds_read_b64_tr_b16 {vr(XT+4*g,2)}, v10 offset:{32*g}\nds_read_b64_tr_b16 {vr(XT+2+4*g,2)}, v10 offset:{32*g+4*912}")
    e("s_waitcnt lgkmcnt(4)")
    for g in range(3):
        if g == 2: e("s_waitcnt lgkmcnt(0)")
        e(f"buffer_store_dwordx4 {vr(XT+4*g,4)}, v11, s[44:47], s69 offen sc1\ns_add_u32 s69, s69, 65536")
    e(f"""
    s_cmp_eq_u32 s3, 1
    s_cbranch_scc1 A_XT3
    buffer_store_dwordx4 {vr(XT+12,4)}, v11, s[44:47], s69 offen sc1
    A_XT3:
    """)
    nonce_issue(e, 30)
    e("s_cmp_ge_u32 s5, 2\ns_cbranch_scc1 A_NOKV")
    e("s_cmp_eq_u32 s5, 1\ns_cbranch_scc1 A_V")
    D, FB = 16, 32
    DD = 76
    def rd(s):
        b = 24 + 12 * (s % 3)
        if s % 3 == 0: b = 84
        return b
    def rds(s):
        b = rd(s)
        return [f"ds_read_b128 {vr(b+8,4)}, v{XA} offset:{64*s}"] + \
               [f"ds_read_b64_tr_b16 {vr(b+4*dt+2*i,2)}, v{WA} offset:{1792*s+224*i+32*dt}" for dt in range(2) for i in range(2)]
    def mfk(s):
        b = rd(s)
        return "\n".join(f"v_mfma_f32_16x16x32_bf16 {vr(D+4*dt,4)}, {vr(b+4*dt,4)}, {vr(b+8,4)}, " + ("0" if s == 0 else vr(D+4*dt,4)) for dt in range(2))
    def mfv(s):
        b = rd(s)
        return "\n".join(f"v_mfma_f32_16x16x32_bf16 {vr(D+4*dt,4)}, {vr(b+8,4)}, {vr(b+4*dt,4)}, " + ("0" if s == 0 else vr(D+4*dt,4)) for dt in range(2))
    gemm_loop(e, 14, rds, mfk, 2, 5)
    signal(e, KVD)
    e(f"""
    s_mov_b32 s66, 0
    s_mov_b32 s67, 0xffff0000
    s_lshl_b32 s65, s3, 8
    s_add_u32 s68, s68, s65
    v_mov_b32 v28, 0x3f803f80
    v_mov_b32 v29, 0x00003f80
    v_cvt_pk_bf16_f32 v24, v16, v17
    v_cvt_pk_bf16_f32 v25, v18, v19
    v_cvt_pk_bf16_f32 v26, v20, v21
    v_cvt_pk_bf16_f32 v27, v22, v23
    v_cndmask_b32 v26, v26, v28, s[66:67]
    v_cndmask_b32 v27, v27, v29, s[66:67]
    v_mul_f32 v28, v20, v20
    v_fmac_f32 v28, v21, v21
    v_permlane32_swap_b32 v24, v26
    v_permlane32_swap_b32 v25, v27
    v_fmac_f32 v28, v22, v22
    v_fmac_f32 v28, v23, v23
    buffer_store_dwordx4 v[24:27], v9, s[44:47], s68 offen sc1
    v_cndmask_b32 v28, v28, 0, s[66:67]
    v_fmac_f32 v28, v16, v16
    v_fmac_f32 v28, v17, v17
    v_fmac_f32 v28, v18, v18
    v_fmac_f32 v28, v19, v19
    v_mov_b32 v29, v28
    s_nop 1
    v_permlane16_swap_b32 v28, v29
    s_nop 1
    v_add_f32 v28, v28, v29
    v_mov_b32 v29, v28
    s_nop 1
    v_permlane32_swap_b32 v28, v29
    s_nop 1
    v_add_f32 v31, v28, v29
    """)
    for c in (1, 2, 4, 8): e(f"s_nop 1\nv_max_f32_dpp v31, v31, v31 row_ror:{c} row_mask:0xf bank_mask:0xf")
    e("s_branch A_KVFLAG\nA_V:")
    gemm_loop(e, 14, rds, mfv, 2, 5)
    signal(e, KVD)
    e(f"""
    v_and_b32 v28, 15, v1
    v_cmp_eq_u32 vcc, 12, v28
    s_lshl_b32 s65, s3, 10
    s_add_u32 s68, s68, s65
    v_mov_b32 v28, 0x3f803f80
    v_mov_b32 v31, 0
    v_cvt_pk_bf16_f32 v24, v16, v17
    v_cvt_pk_bf16_f32 v25, v18, v19
    v_cvt_pk_bf16_f32 v26, v20, v21
    v_cvt_pk_bf16_f32 v27, v22, v23
    v_cndmask_b32 v26, v26, v28, vcc
    v_cndmask_b32 v27, v27, v28, vcc
    s_nop 1
    v_permlane32_swap_b32 v24, v26
    v_permlane32_swap_b32 v25, v27
    s_nop 0
    buffer_store_dwordx4 v[24:27], v9, s[44:47], s68 offen offset:2048 sc1
    A_KVFLAG:
    s_waitcnt vmcnt(1)
    """)
    nonce_check(e, 30)
    e(f"""
    s_mov_b64 exec, 1
    buffer_store_dword v30, v3, s[44:47], s70 offen sc1
    s_mov_b64 exec, -1
    """)
    xfrag_reads(e, 8)
    e(f"""
    s_waitcnt vmcnt(1)
    s_mov_b64 exec, 1
    buffer_store_dwordx2 v[30:31], v3, s[44:47], s71 offen sc1
    s_mov_b64 exec, -1
    @S 3
    """)
    signal(e, XF_)
    e("s_cmp_eq_u32 s3, 0\ns_cbranch_scc1 A_QSYNC")
    wait(e, KVD, 2)
    e("s_branch A_GATE\nA_NOKV:")
    xfrag_reads(e, 8)
    signal(e, XF_)
    e("s_waitcnt vmcnt(0)")
    nonce_check(e, 30)
    e(f"""
    s_mov_b64 exec, 1
    buffer_store_dword v30, v3, s[44:47], s70 offen sc1
    s_mov_b64 exec, -1
    @S 3
    s_cmp_eq_u32 s3, 0
    s_cbranch_scc1 A_QSYNC
    A_GATE:
    v_lshlrev_b32 v8, 11, v1
    v_add_u32 v8, {WB}, v8
    s_mov_b32 exec_hi, 0x00ffffff
    """)
    for j in range(8):
        op = "ds_write_b16_d16_hi" if j & 1 else "ds_write_b16"
        e(f"{op} v8, v{GW + j//2} offset:{256*j + (224 ^ (64*(j&3)))}")
    e("s_mov_b32 exec_hi, -1")
    signal(e, CA)
    e("s_branch A_QSYNC\nA_DMAW:")
    srd(e, 56, 10, 448 * 896)
    wdma_voff(e, 6)
    xfrag_addr(e, 8)
    MASK = "s_mov_b32 exec_lo, 0xf3ff3fff\ns_mov_b32 exec_hi, 0xfff3ff3f"
    e(f"""
    s_sub_u32 s65, s3, 2
    s_lshl_b32 s66, s65, 10
    s_add_u32 m0, s66, {WB}
    s_mul_i32 s65, s65, 3584
    s_mul_i32 s66, s5, 224
    s_add_u32 s65, s65, s66
    {MASK}
    """)
    def dma_loop(n, lab):
        if 'nodma' in ABL: return
        e(f"""
        s_mov_b32 s66, {n//2}
        {lab}:
        buffer_load_dwordx4 v6, s[56:59], s65 offen lds
        s_add_u32 m0, m0, 2048
        s_add_u32 s65, s65, 7168
        buffer_load_dwordx4 v6, s[56:59], s65 offen lds
        s_add_u32 m0, m0, 2048
        s_add_u32 s65, s65, 7168
        s_sub_u32 s66, s66, 1
        s_cmp_lg_u32 s66, 0
        s_cbranch_scc1 {lab}
        """)
    dma_loop(NPRE, "A_DL1")
    e(f"s_waitcnt vmcnt({NPRE})")
    signal(e, C1)
    e("@S 2")
    if 'dmaonly' not in ABL: wait(e, C1, 4)
    xfrag_reads(e, 8)
    signal(e, XF_, restore=MASK)
    dma_loop(42 - NPRE, "A_DL2")
    e("s_cmp_ge_u32 s5, 2\ns_cbranch_scc1 A_DL3P")
    if 'dmaonly' not in ABL: wait(e, KVD, 2)
    e("A_DL3P:")
    dma_loop(14, "A_DL3")
    e("s_mov_b64 exec, -1\n@S 3")
    for i in range(64): e(f"v_accvgpr_write_b32 a{i}, 0")
    e("s_waitcnt vmcnt(14)")
    if 'dmaonly' in ABL: e("s_waitcnt vmcnt(0)\n@S 4\n@E 0\ns_endpgm")
    signal(e, CA)
    nonce_issue(e, 30)
    e("A_QSYNC:")
    e(f"""
    v_lshrrev_b32 v12, 5, v1
    v_bfe_u32 v13, v1, 2, 2
    v_lshl_add_u32 v14, v12, 3, v13
    v_lshlrev_b32 v14, 8, v14
    v_bfe_u32 v15, v1, 4, 1
    v_lshlrev_b32 v15, 5, v15
    v_and_b32 v16, 3, v1
    v_lshl_add_u32 v15, v16, 3, v15
    s_mul_i32 s65, s3, 56
    v_add_u32 v15, s65, v15
    v_lshlrev_b32 v13, 6, v13
    v_xor_b32 v15, v15, v13
    v_add_u32 v14, v14, v15
    v_add_u32 v7, {WB}, v14
    v_add_u32 v8, {WB + 65536}, v14
    s_mov_b32 s68, {f2u(QSCALE)}
    v_lshlrev_b32 v9, 6, v1
    s_lshl_b32 s69, s3, 12
    s_add_u32 s69, s69, {FLG}
    s_lshl_b32 s65, s3, 11
    s_add_u32 s65, s65, {WB}
    v_add_u32 v10, s65, v2
    v_lshlrev_b32 v11, 2, v1
    s_lshl_b32 s65, s3, 8
    s_add_u32 s65, s65, {WB + 8192}
    v_add_u32 v12, s65, v11
    """)
    wait(e, CA, 3)
    e("@S 4")
    ACC, FB = 48, 64
    WBUF = [16, 20, 24, 32, 36, 40]
    L = Lds(e); DEP = 5
    def rq(s):
        b = WBUF[s % 6]; w = 7 if s < 16 else 8; o = 4096 * (s % 16)
        L.op(f"ds_read_b64_tr_b16 {vr(b,2)}, v{w} offset:{o}")
        L.op(f"ds_read_b64_tr_b16 {vr(b+2,2)}, v{w} offset:{o+1024}", s)
    for s in range(DEP): rq(s)
    for s in range(28):
        if s == 11:
            e("s_cmp_lt_u32 s3, 2\ns_cbranch_scc1 A_NOCB\ns_waitcnt vmcnt(0)")
            signal(e, CB)
            e("A_NOCB:")
        if s == 14: L.op(f"ds_read_b32 v5, v3 offset:{CB}", "cb")
        if s + DEP == 21:
            L.wait("cb")
            e(f"""
            v_readfirstlane_b32 s64, v5
            s_cmp_ge_u32 s64, 2
            s_cbranch_scc1 A_CBOK
            """)
            wait(e, CB, 2)
            e("A_CBOK:")
        if s + DEP < 28: rq(s + DEP)
        L.wait(s)
        e(f"v_mfma_f32_32x32x16_bf16 {vr(ACC,16)}, {vr(WBUF[s%6],4)}, {xfrag(s)}, " + ("0" if s == 0 else vr(ACC,16)))
    signal(e, C3)
    e("s_waitcnt vmcnt(0)")
    nonce_check(e, 30)
    e(f"""
    buffer_load_dwordx2 v[14:15], v9, s[44:47], s69 offen sc1
    s_nop 3
    s_cmp_lg_u32 s3, 3
    s_cbranch_scc1 A_NOG
    v_mul_f32 v13, {f2u(-LOG2E)}, v{ACC+12}
    v_exp_f32 v13, v13
    s_nop 0
    v_add_f32 v13, 1.0, v13
    v_rcp_f32 v13, v13
    s_mov_b32 exec_lo, 0
    ds_write_b32 v11, v13 offset:{GOF - 128}
    s_mov_b32 exec_lo, -1
    A_NOG:
    """)
    for r in range(16): e(f"v_mul_f32 v{ACC+r}, s68, v{ACC+r}")
    for i in range(8): e(f"v_cvt_pk_bf16_f32 v{FB+i}, v{ACC+2*i}, v{ACC+2*i+1}")
    e(f"""
    v_cndmask_b32 v{FB+6}, v{FB+6}, 0, s[62:63]
    v_cndmask_b32 v{FB+7}, v{FB+7}, 0, s[62:63]
    v_mov_b32 v13, 0
    """)
    for i in range(8): e(f"v_dot2c_f32_bf16 v13, v{FB+i}, v{FB+i}")
    e("""
    s_nop 2
    v_mov_b32 v6, v13
    s_nop 1
    v_permlane32_swap_b32 v13, v6
    s_nop 1
    v_add_f32 v13, v13, v6
    """)
    wait(e, C3, 4)
    e(f"""
    ds_write_b128 v10, {vr(FB,4)}
    ds_write_b128 v10, {vr(FB+4,4)} offset:1024
    ds_write_b32 v12, v13
    """)
    signal(e, C4)
    wait(e, C4, 4)
    for j in range(4):
        e(f"""
        s_add_u32 s65, s3, {j+1}
        s_and_b32 s65, s65, 3
        s_lshl_b32 s66, s65, 11
        s_add_u32 s66, s66, {WB}
        v_add_u32 v10, s66, v2
        s_lshl_b32 s66, s65, 8
        s_add_u32 s66, s66, {WB + 8192}
        v_add_u32 v12, s66, v11
        ds_read_b128 {vr(Q+8*j,4)}, v10
        ds_read_b128 {vr(Q+8*j+4,4)}, v10 offset:1024
        ds_read_b32 v{48+j}, v12
        """)
    signal(e, C5)
    e(f"""
    @S 5
    s_lshl_b32 s65, s3, 16
    s_add_u32 s52, s42, s65
    s_addc_u32 s53, s43, 0
    s_mov_b32 s54, 0x10000
    s_mov_b32 s55, 0x00020000
    s_lshr_b32 s70, s2, 3
    s_add_u32 s70, s70, s5
    s_lshl_b32 s70, s70, 13
    s_and_b32 s70, s70, {0xffff if ROT else 0}
    A_POLL:
    s_waitcnt vmcnt(0)
    v_cmp_ne_u32 vcc, s60, v14
    s_cbranch_vccz A_GOT
    s_sub_u32 s61, s61, 1
    s_cbranch_scc1 BAIL
    buffer_load_dwordx2 v[14:15], v9, s[44:47], s69 offen sc1
    s_branch A_POLL
    A_GOT:
    buffer_load_dwordx4 {vr(KV[0],4)}, v2, s[52:55], s70 offen sc1
    buffer_load_dwordx4 {vr(KV[0]+4,4)}, v2, s[52:55], s70 offen offset:1024 sc1
    buffer_load_dwordx4 {vr(KV[0]+8,4)}, v2, s[52:55], s70 offen offset:2048 sc1
    buffer_load_dwordx4 {vr(KV[0]+12,4)}, v2, s[52:55], s70 offen offset:3072 sc1
    s_add_u32 s70, s70, 4096
    v_and_b32 v13, 7, v1
    v_lshlrev_b32 v13, 12, v13
    s_lshl_b32 s71, s4, 6
    s_add_u32 s71, s71, {FX}
    buffer_load_dword v12, v13, s[44:47], s71 offen sc1
    buffer_load_dwordx4 {vr(KV[1],4)}, v2, s[52:55], s70 offen sc1
    buffer_load_dwordx4 {vr(KV[1]+4,4)}, v2, s[52:55], s70 offen offset:1024 sc1
    """)
    for c in (1, 2, 4, 8): e(f"v_max_f32_dpp v15, v15, v15 row_ror:{c} row_mask:0xf bank_mask:0xf\ns_nop 1")
    e(f"""
    v_mov_b32 v14, v15
    s_nop 1
    v_permlane16_swap_b32 v15, v14
    s_nop 1
    v_max_f32 v15, v15, v14
    v_mov_b32 v14, v15
    s_nop 1
    v_permlane32_swap_b32 v15, v14
    s_nop 1
    v_max_f32 v15, v15, v14
    s_mov_b32 s72, {f2u(SAFE_BOUND)}
    s_waitcnt lgkmcnt(0)
    """)
    for j in range(4): e(f"v_mul_f32 v{48+j}, v15, v{48+j}")
    for j in range(4): e(f"v_sqrt_f32 v{48+j}, v{48+j}")
    for i in range(8): e(f"v_mov_b32 v{P[1]+i}, 0")
    e(f"""
    v_max_f32 v52, v48, v49
    v_max3_f32 v52, v52, v50, v51
    v_cmp_nle_f32 vcc, v52, s72
    """)
    for j in range(4): e(f"v_sub_f32 v{48+j}, {f2u(SHIFT)}, v{48+j}")
    for i in range(8): e(f"v_mov_b32 v{KV[1]+8+i}, 0")
    e("s_cbranch_vccnz A_FALLBACK")
    for j in range(4): e(f"v_cvt_pk_bf16_f32 v{48+j}, v{48+j}, 0")
    for j in range(4): e(f"v_cndmask_b32 v{Q+8*j+6}, v{Q+8*j+6}, v{48+j}, s[62:63]")
    for j in range(4): e(f"v_lshlrev_b32 v{CR+j}, 16, v{48+j}")
    e(f"""
    A_MAIN:
    s_mul_i32 s65, s3, 12288
    s_add_u32 s65, s65, {WB}
    v_add_u32 v6, s65, v2
    v_lshlrev_b32 v15, 2, v1
    s_waitcnt vmcnt(2)
    A_SIB:
    v_cmp_ne_u32 vcc, s60, v12
    s_cbranch_vccz A_SIBOK
    s_sub_u32 s61, s61, 1
    s_cbranch_scc1 BAIL
    buffer_load_dword v12, v13, s[44:47], s71 offen sc1
    s_waitcnt vmcnt(0)
    s_branch A_SIB
    A_SIBOK:
    s_setprio {LPRIO}
    @S 6
    """)
    def qk(i, tile):
        kb = KV[(tile >> 2) & 1]; s = S[tile & 1]; q = Q + 8 * (tile & 3)
        return f"v_mfma_f32_32x32x16_bf16 {vr(s,16)}, {vr(kb+4*i,4)}, {vr(q+4*i,4)}, " + ("0" if i == 0 else vr(s,16))
    def pv(i, tile):
        vb = KV[(tile >> 2) & 1] + 8; p = P[tile & 1]; o = 16 * (tile & 3)
        return f"v_mfma_f32_32x32x16_bf16 {ar(o,16)}, {vr(vb+4*i,4)}, {vr(p+4*i,4)}, {ar(o,16)}"
    def ld(reg, off): return f"buffer_load_dwordx4 {vr(reg,4)}, v2, s[52:55], s70 offen offset:{off} sc1"
    def pw(d, i): return f"ds_write_b128 v6, {ar(16*d+4*i,4)} offset:{4096*d+1024*i}"
    e(qk(0, 0)); e(qk(1, 0))
    e(f"v_mov_b32 v{S[1]+14}, 0\nv_mov_b32 v{S[1]+15}, 0\ns_mov_b32 s73, 7")
    for d in range(3):
        e(f"s_sub_u32 s65, s3, {d+1}\ns_and_b32 s65, s65, 3\ns_mul_i32 s65, s65, 12288\ns_add_u32 s65, s65, {WB + 4096*d}\nv_add_u32 v{12+d}, s65, v2")
    pat = "pCeeee" "qceecee" "Qceeceec" "Peeceec"
    def step(j, last):
        s = S[j & 1]; p = P[j & 1]; sp = S[(j + 1) & 1]; pp = P[(j + 1) & 1]
        ex = [f"v_exp_f32 v{s+i}, v{s+i}" for i in range(16)]
        cv = [f"v_cvt_pk_bf16_f32 v{p+i}, v{s+2*i}, v{s+2*i+1}" for i in range(7)]
        side = {"p": [], "q": [], "Q": [], "P": []}
        pre = {"p": [], "q": []}
        if j == 1: pre["p"] = ["s_waitcnt vmcnt(2)"]; side["q"] = [ld(KV[1] + 8, 2048)]; side["Q"] = [ld(KV[1] + 12, 3072)]; side["P"] = ["s_add_u32 s70, s70, 4096", "s_and_b32 s70, s70, 0xffff"]
        if j == 3: side["p"] = ["s_waitcnt vmcnt(2)"]
        if not last:
            if j == 3: side["Q"] = [ld(KV[0], 0)]; side["P"] = [ld(KV[0] + 4, 1024)]
            if j == 5: pre["p"] = ["s_waitcnt vmcnt(2)"]; side["q"] = [ld(KV[0] + 8, 2048)]; side["Q"] = [ld(KV[0] + 12, 3072)]; side["P"] = ["s_add_u32 s70, s70, 4096"]
            if j == 7: side["p"] = ["s_waitcnt vmcnt(2)"]; side["Q"] = [ld(KV[1], 0), "s_sub_u32 s73, s73, 1"]; side["P"] = [ld(KV[1] + 4, 1024), "s_cmp_lg_u32 s73, 0"]
        else:
            if j == 2: side["q"] = [f"ds_read_b32 v5, v3 offset:{C7}"]
            if j == 4: side["p"] = ["s_waitcnt lgkmcnt(0)"]; side["q"] = ["v_readfirstlane_b32 s64, v5"]; side["Q"] = ["s_cmp_ge_u32 s64, 4", "s_cbranch_scc0 A_C7WAIT", "A_C7OK:"]
            if j == 5:
                pre["p"] = ["s_waitcnt vmcnt(0)"]
                for k, ch in enumerate("pqQP"):
                    side[ch] = [f"s_add_u32 s65, s3, {k+1}", "s_and_b32 s65, s65, 3", "s_lshl_b32 s65, s65, 10", f"s_add_u32 s65, s65, {CX + 256*k}",
                                "v_add_u32 v7, s65, v15", f"ds_write_b32 v7, v{CR+k}"]
            if j >= 6: side["q"] = [pw(j-6, 0)]; side["Q"] = [pw(j-6, 1)]; side["P"] = [pw(j-6, 2), pw(j-6, 3)]
        for ch in pat:
            if ch == "p":
                for x in pre["p"]: e(x)
                e(pv(0, (j - 1) & 7))
            elif ch == "P": e(pv(1, (j - 1) & 7))
            elif ch == "q":
                if not (last and j == 7): e(qk(0, j + 1))
            elif ch == "Q":
                if not (last and j == 7): e(qk(1, j + 1))
            elif ch == "C": e(f"v_cvt_pk_bf16_f32 v{pp+7}, v{sp+14}, v{sp+15}")
            elif ch == "e": e(ex.pop(0))
            elif ch == "c": e(cv.pop(0))
            if ch in side:
                for x in side[ch]: e(x)
        assert not ex and not cv
    e(".p2align 6\nA_LOOP:")
    for j in range(8): step(j, False)
    e("s_cbranch_scc1 A_LOOP")
    for j in range(8): step(j, True)
    e("s_setprio 3")
    e(pv(0, 7))
    e(f"""
    v_cvt_pk_bf16_f32 v{P[1]+7}, v{S[1]+14}, v{S[1]+15}
    s_lshl_b32 s65, s3, 10
    s_add_u32 s65, s65, {CX}
    """)
    e(pv(1, 7))
    e(f"""
    v_add_u32 v7, s65, v15
    s_lshl_b32 s65, s4, 2
    s_add_u32 s65, s65, s5
    s_lshl_b32 s65, s65, 13
    """)
    for i in range(4): e(pw(2, i))
    e(f"""
    @T 1
    s_lshl_b32 s66, s3, 11
    s_add_u32 s74, s65, s66
    s_add_u32 s74, s74, {OX}
    s_add_u32 s65, s66, {STG}
    v_add_u32 v6, s65, v2
    s_nop 1
    """)
    for i in range(16): e(f"v_accvgpr_read_b32 v{16+i}, a{48+i}")
    e(f"""
    s_waitcnt lgkmcnt(0)
    s_barrier
    @T 2
    ds_read2st64_b32 v[32:33], v7 offset0:0 offset1:1
    ds_read2st64_b32 v[34:35], v7 offset0:2 offset1:3
    """)
    R = 48
    for d in range(3):
        for i in range(4): e(f"ds_read_b128 {vr(R+16*d+4*i,4)}, v{12+d} offset:{1024*i}")
    for d in range(1, 4):
        e(f"""
        s_add_u32 s65, s5, {d}
        s_and_b32 s65, s65, 3
        s_lshl_b32 s65, s65, 13
        s_add_u32 s65, s65, s66
        s_lshl_b32 s{75+d}, s4, 15
        s_add_u32 s{75+d}, s{75+d}, s65
        s_add_u32 s{75+d}, s{75+d}, {OX}
        """)
    e(f"""
    s_waitcnt lgkmcnt(12)
    v_min_f32 v36, v32, v33
    v_min3_f32 v36, v36, v34, v35
    """)
    for d in (3, 0, 1, 2): e(f"v_sub_f32 v{32+d}, v36, v{32+d}")
    for d in (3, 0, 1, 2): e(f"v_exp_f32 v{32+d}, v{32+d}")
    for i in range(16): e(f"v_mul_f32 v{16+i}, v35, v{16+i}")
    for d in range(3):
        e(f"s_waitcnt lgkmcnt({4*(2-d)})")
        for i in [12] + [i for i in range(16) if i != 12]: e(f"v_fmac_f32 v{16+i}, v{32+d}, v{R+16*d+i}" if (d < 2 or i == 12) else "")
    e(f"""
    v_mov_b32 v36, v28
    v_mov_b32 v37, v28
    v_fmac_f32 v16, v34, v{R+32}
    v_fmac_f32 v17, v34, v{R+33}
    v_permlane32_swap_b32 v36, v37
    v_fmac_f32 v18, v34, v{R+34}
    v_fmac_f32 v19, v34, v{R+35}
    v_rcp_f32 v37, v37
    """)
    for i in range(4, 16):
        if i != 12: e(f"v_fmac_f32 v{16+i}, v34, v{R+32+i}")
    e("s_mov_b32 s75, 0xfffffffe")
    for i in range(16): e(f"v_mul_f32 v{16+i}, v{16+i}, v37")
    for i in range(8): e(f"v_cvt_pk_bf16_f32 v{40+i}, v{16+2*i}, v{17+2*i}")
    e(f"v_cndmask_b32 v46, v46, 0, s[62:63]\nv_cndmask_b32 v47, v47, 0, s[62:63]")
    for i in range(8): e(f"v_min_u32 v{40+i}, s75, v{40+i}")
    e(f"""
    buffer_store_dwordx4 v[40:43], v2, s[44:47], s74 offen sc1
    buffer_store_dwordx4 v[44:47], v2, s[44:47], s74 offen offset:1024 sc1
    ds_write_b128 v6, v[40:43]
    ds_write_b128 v6, v[44:47] offset:1024
    """)
    signal(e, G0)
    e("@T 3\ns_mov_b32 s73, 14\nA_GATHER:")
    for d in range(1, 4):
        e(f"""
        s_bitcmp0_b32 s73, {d}
        s_cbranch_scc1 A_GL{d}
        buffer_load_dwordx4 {vr(40+8*d,4)}, v2, s[44:47], s{75+d} offen sc1
        buffer_load_dwordx4 {vr(44+8*d,4)}, v2, s[44:47], s{75+d} offen offset:1024 sc1
        A_GL{d}:
        """)
    e("s_waitcnt vmcnt(0)")
    for d in range(1, 4):
        b = 40 + 8*d
        e(f"""
        s_bitcmp0_b32 s73, {d}
        s_cbranch_scc1 A_GC{d}
        v_max3_u32 v16, v{b}, v{b+1}, v{b+2}
        v_max3_u32 v16, v16, v{b+3}, v{b+4}
        v_max3_u32 v16, v16, v{b+5}, v{b+6}
        v_max_u32 v16, v16, v{b+7}
        v_cmp_eq_u32 vcc, -1, v16
        s_cbranch_vccnz A_GC{d}
        ds_write_b128 v6, {vr(b,4)} offset:{8192*d}
        ds_write_b128 v6, {vr(b+4,4)} offset:{8192*d+1024}
        s_bitset0_b32 s73, {d}
        """)
        signal(e, G0 + 4*d)
        e(f"A_GC{d}:")
    e(f"""
    s_sub_u32 s61, s61, 1
    s_cbranch_scc1 BAIL
    s_cmp_lg_u32 s73, 0
    s_cbranch_scc1 A_GATHER
    s_waitcnt lgkmcnt(0)
    @T 4
    @E 0
    s_endpgm
    A_C7WAIT:
    """)
    wait(e, C7, 4)
    e("s_branch A_C7OK")
    T = 52
    e(f"""
    A_FALLBACK:
    s_lshl_b32 s74, s3, 16
    s_mov_b32 s75, 16
    """)
    for j in range(4): e(f"v_mov_b32 v{48+j}, 0xff800000")
    e(f"""
    A_FB_LOOP:
    buffer_load_dwordx4 {vr(T,4)}, v2, s[44:47], s74 offen sc1
    buffer_load_dwordx4 {vr(T+4,4)}, v2, s[44:47], s74 offen offset:1024 sc1
    s_add_u32 s74, s74, 4096
    s_waitcnt vmcnt(0)
    """)
    for j in range(4):
        e(f"v_mfma_f32_32x32x16_bf16 {vr(64,16)}, {vr(T,4)}, {vr(Q+8*j,4)}, 0")
        e(f"v_mfma_f32_32x32x16_bf16 {vr(64,16)}, {vr(T+4,4)}, {vr(Q+8*j+4,4)}, {vr(64,16)}")
        e("s_nop 11")
        for i in range(8): e(f"v_max3_f32 v{48+j}, v{48+j}, v{64+2*i}, v{65+2*i}")
    e(f"""
    s_sub_u32 s75, s75, 1
    s_cmp_lg_u32 s75, 0
    s_cbranch_scc1 A_FB_LOOP
    """)
    for j in range(4): e(f"v_mov_b32 v{52+j}, v{48+j}")
    e("s_nop 0")
    for j in range(4): e(f"v_permlane32_swap_b32 v{48+j}, v{52+j}")
    e("s_nop 0")
    for j in range(4):
        m = 48 + j; t = 56
        e(f"""
        v_max_f32 v{m}, v{m}, v{52+j}
        v_sub_f32 v{m}, 0, v{m}
        v_cvt_pk_bf16_f32 v{t}, v{m}, v{m}
        v_and_b32 v{t+4}, 0xffff0000, v{t}
        v_sub_f32 v{m}, v{m}, v{t+4}
        v_cvt_pk_bf16_f32 v{t+2}, v{m}, v{m}
        v_and_b32 v{t+1}, 0xffff0000, v{t+2}
        v_sub_f32 v{m}, v{m}, v{t+1}
        v_cvt_pk_bf16_f32 v{t+3}, v{m}, 0
        v_and_b32 v{t}, 0xffff, v{t}
        v_or_b32 v{t}, v{t}, v{t+1}
        v_cndmask_b32 v{Q+8*j+6}, v{Q+8*j+6}, v{t}, s[62:63]
        v_cndmask_b32 v{Q+8*j+7}, v{Q+8*j+7}, v{t+3}, s[62:63]
        v_lshlrev_b32 v{t+3}, 16, v{t+3}
        v_add_f32 v{t+1}, v{t+1}, v{t+3}
        v_add_f32 v{CR+j}, v{t+4}, v{t+1}
        """)
    e("s_branch A_MAIN")

def helper_path(e):
    e(f"""
    HELPER:
    s_setprio {HPRIO}
    s_sub_u32 s3, s3, 4
    s_lshr_b32 s6, s3, 1
    s_and_b32 s7, s3, 1
    s_min_u32 s76, s2, 223
    s_or_b32 s65, s2, s3
    s_cmp_lg_u32 s65, 0
    s_cbranch_scc1 H_NON
    s_memrealtime s[66:67]
    s_waitcnt lgkmcnt(0)
    s_or_b32 s66, s66, 1
    v_mov_b32 v5, s66
    global_store_dword v3, v5, s[40:41] sc0 sc1
    H_NON:
    s_lshl_b32 s65, s76, 2
    s_load_dword s66, s[32:33], s65
    s_load_dword s67, s[34:35], s65
    s_lshl_b32 s65, s76, 10
    s_lshl_b32 s68, s3, 8
    s_add_u32 s65, s65, s68
    v_lshl_add_u32 v8, v1, 2, s65
    """)
    for i in range(6): e(f"global_load_dword v{96+i}, v8, s[{20+2*i}:{21+2*i}]")
    e("s_barrier")
    srd(e, 48, 16, 448 * 896)
    if 'noH' in ABL:
        signal(e, C7)
        e("@T 2\ns_barrier\n@E 0\ns_endpgm")
    e(f"""
    s_mul_i32 s77, s3, {KGS}
    s_mov_b32 m0, s77
    v_and_b32 v9, 15, v1
    v_lshrrev_b32 v10, 4, v1
    v_mul_u32_u24 v11, 288, v9
    v_lshl_add_u32 v11, v10, 4, v11
    v_add_u32 v11, s77, v11
    v_mul_u32_u24 v12, 1088, v10
    v_lshl_add_u32 v12, v9, 2, v12
    v_add_u32 v12, s77, v12
    s_lshl_b32 s68, s6, 4
    s_lshl_b32 s78, s6, 2
    v_mov_b32 v6, s78
    @S 1
    s_waitcnt lgkmcnt(0)
    s_lshr_b32 s66, s66, s68
    s_lshl_b32 s66, s66, 16
    s_lshr_b32 s67, s67, s68
    s_lshl_b32 s67, s67, 16
    v_mov_b32 v13, s66
    v_mul_f32 v13, {f2u(LOG2E)}, v13
    v_exp_f32 v13, v13
    s_nop 0
    v_cvt_pk_bf16_f32 v13, v13, v13
    v_and_b32 v13, 0xffff0000, v13
    """)
    P1_, P8, P256, P32 = 14, 16, 18, 20
    Y = [22, 24, 26, 28]
    X0, X2, X4, X6, XC = 30, 32, 34, 36, 38
    T0, T1 = 40, 42
    C = 44
    YF, XF, D = 48, 80, 112
    PR = 2
    for i in range(16): e(f"v_mov_b32 v{D+i}, 0")
    e("s_waitcnt vmcnt(0)\n@S 2")
    for i in range(6): e(f"v_and_b32 v{102+i}, 0xffff0000, v{96+i}")
    for i in range(6): e(f"v_accvgpr_write_b32 a{i}, v{102+i}")
    for i in range(6): e(f"v_lshlrev_b32 v{96+i}, 16, v{96+i}")
    e(f"s_mov_b32 s79, {1 if 'half' in ABL else 2}\nH_UNIT:")
    AR, AI, BR, BI, CRE, CIM = 96, 97, 98, 99, 100, 101
    e(f"""
    v_mul_f32 v{AR}, v13, v{AR}
    v_mul_f32 v{AI}, v13, v{AI}
    v_mul_f32 v{AR}, {f2u(LOG2E)}, v{AR}
    v_mul_f32 v{AI}, 0.15915494, v{AI}
    v_mul_f32 v{BR}, v13, v{BR}
    v_mul_f32 v{BI}, v13, v{BI}
    """)
    def anchor(dst, l, t):
        if l == 1:
            e(f"v_fract_f32 v{t+1}, v{AI}\nv_exp_f32 v{t}, v{AR}")
        else:
            e(f"v_mul_f32 v{t+1}, {f2u(float(l))}, v{AI}\nv_mul_f32 v{t}, {f2u(float(l))}, v{AR}\nv_fract_f32 v{t+1}, v{t+1}\nv_exp_f32 v{t}, v{t}")
        e(f"v_cos_f32 v{dst}, v{t+1}\nv_sin_f32 v{dst+1}, v{t+1}\ns_nop 0")
        e(f"v_pk_mul_f32 {vr(dst,2)}, {vr(dst,2)}, {vr(t,2)} op_sel:[0,0] op_sel_hi:[1,0]")
    anchor(P8, 8, T0)
    anchor(P1_, 1, T1)
    anchor(P256, 256, T0)
    cmul(e, X0, CRE, BR, T1)
    e(f"v_xor_b32 v{X0+1}, 0x80000000, v{X0+1}")
    cnt = [0]
    def put(src, row):
        c = C + (cnt[0] % 4); cnt[0] += 1
        e(f"v_cvt_pk_bf16_f32 v{c}, v{src}, v{src+1}")
        e(f"ds_write_addtid_b32 v{c} offset:{row*288}")
    tt = [0]
    def mul(z, x, y, conj=False):
        t = (T0, T1)[tt[0] % 2]; tt[0] += 1
        cmul(e, z, x, y, t, conj)
    def frags(dst):
        for ks in range(4): e(f"ds_read_b128 {vr(dst+4*ks,4)}, v11 offset:{64*ks}")
    e(f"v_mov_b32 v{C+3}, 0x3f80\nds_write_addtid_b32 v{C+3} offset:0")
    put(P8, 1)
    mul(Y[2], P8, P8); put(Y[2], 2)
    mul(Y[3], Y[2], P8); mul(P32, Y[2], Y[2]); put(Y[3], 3); put(P32, 4)
    mul(Y[1], P8, P32); put(Y[1], 5)
    mul(Y[2], Y[2], P32); put(Y[2], 6)
    mul(Y[3], Y[3], P32); put(Y[3], 7)
    mul(Y[0], P32, P32); put(Y[0], 8)
    for c in range(9, 32):
        if c == 16: frags(YF)
        mul(Y[c % 4], Y[c % 4], P32); put(Y[c % 4], c % 16)
    frags(YF + 16)
    put(X0, 4)
    mul(XC, X0, P1_, True); put(XC, 5)
    mul(X2, XC, P1_, True); put(X2, 6)
    mul(XC, X2, P1_, True); put(XC, 7)
    mul(X4, XC, P1_, True); put(X4, 8)
    mul(XC, X4, P1_, True); put(XC, 9)
    mul(X6, XC, P1_, True); put(X6, 10)
    mul(XC, X6, P1_, True); put(XC, 11)
    mul(X0, X0, P256, True); put(X0, 0)
    mul(X2, X2, P256, True); put(X2, 12)
    mul(X4, X4, P256, True); put(X4, 13)
    mul(X6, X6, P256, True); put(X6, 14)
    mul(X0, X0, P256, True); put(X0, 1)
    mul(X4, X4, P256, True); put(X4, 15)
    mul(X0, X0, P256, True); put(X0, 2)
    mul(X4, X4, P256, True)
    mul(X0, X0, P256, True); put(X0, 3)
    frags(XF)
    put(X4, 12)
    for r in range(4):
        mul(X0, X0, P256, True); put(X0, r)
    frags(XF + 16)
    e("s_waitcnt lgkmcnt(4)")
    def mm(rt, ct, ks):
        d = D + 4 * (2 * rt + ct)
        e(f"v_mfma_f32_16x16x32_bf16 {vr(d,4)}, {vr(XF+16*rt+4*ks,4)}, {vr(YF+16*ct+4*ks,4)}, {vr(d,4)}")
    for ks in range(4):
        for ct in range(2): mm(0, ct, ks)
    e("s_waitcnt lgkmcnt(0)")
    for ks in range(4):
        for ct in range(2): mm(1, ct, ks)
    for i in range(6): e(f"v_accvgpr_read_b32 v{96+i}, a{i}")
    e("s_sub_u32 s79, s79, 1\ns_cmp_lg_u32 s79, 0\ns_cbranch_scc1 H_UNIT")
    nonce_issue(e, 8)
    e(f"""
    s_lshr_b32 s65, s2, 3
    s_mul_i32 s65, s65, 12544
    s_lshl_b32 s68, s3, 12
    s_add_u32 s65, s65, s68
    v_lshlrev_b32 v9, 6, v1
    buffer_load_dword v7, v9, s[48:51], s65 offen
    """)
    for rt in range(2):
        for ct in range(2):
            for r in range(4):
                e(f"ds_write_b32 v12, v{D+4*(2*rt+ct)+r} offset:{(4*rt+r)*128+ct*64}")
    signal(e, P1, "v6")
    e("@S 3")
    if ABL == "kgen" or 'dmaonly' in ABL: e("@E 0\ns_endpgm")
    e(f"""
    s_mul_i32 s80, s76, 1171
    s_lshr_b32 s80, s80, 16
    s_mul_i32 s65, s80, 56
    s_sub_u32 s65, s76, s65
    s_lshr_b32 s65, s65, 5
    s_lshl_b32 s66, s80, 1
    s_add_u32 s65, s65, s66
    s_lshl_b32 s65, s65, 12
    s_add_u32 s81, s65, {FX}
    v_lshlrev_b32 v9, 6, v1
    s_mul_i32 s77, s6, {2*KGS}
    s_waitcnt vmcnt(0)
    """)
    nonce_check(e, 8)
    e("buffer_load_dword v10, v9, s[44:47], s81 offen sc1")
    wait(e, P1, 2, "v6")
    e(f"""
    s_lshl_b32 s65, s7, 6
    v_add_u32 v14, s65, v1
    v_lshlrev_b32 v15, 2, v14
    v_add_u32 v15, s77, v15
    ds_read2st64_b32 v[16:17], v15 offset0:{(512-128)//256} offset1:{(512-128)//256+18}
    """)
    e.l.pop()
    e(f"""
    v_add_u32 v18, 384, v15
    v_add_u32 v19, 388, v15
    ds_read2st64_b32 v[16:17], v18 offset0:0 offset1:18
    ds_read2st64_b32 v[20:21], v19 offset0:0 offset1:18
    v_and_b32 v22, 1, v1
    v_cmp_eq_u32 vcc, 1, v22
    s_cmp_eq_u32 s7, 0
    s_cbranch_scc1 H_T0
    v_subrev_u32 v18, 128, v15
    v_subrev_u32 v19, 124, v15
    v_add_u32 v22, {3648-256}, v15
    ds_read2st64_b32 v[24:25], v18 offset0:0 offset1:18
    ds_read2st64_b32 v[26:27], v19 offset0:0 offset1:18
    ds_read2st64_b32 v[28:29], v22 offset0:0 offset1:18
    s_waitcnt lgkmcnt(0)
    v_add_f32 v24, v24, v25
    v_add_f32 v26, v26, v27
    v_add_f32 v28, v28, v29
    v_cvt_pk_bf16_f32 v48, v26, v26
    v_cvt_pk_bf16_f32 v49, v28, v28
    v_cvt_pk_bf16_f32 v50, v28, v24
    v_cvt_pk_bf16_f32 v51, v24, v24
    v_mov_b32 v30, v51
    s_branch H_T2
    H_T0:
    v_and_b32 v18, 31, v1
    v_lshlrev_b32 v18, 2, v18
    v_add_u32 v18, s77, v18
    v_lshrrev_b32 v19, 5, v1
    """)
    A0 = [1088, 1216, 1344, 1472, 2176, 2304, 2432, 2560]
    A1 = [0, 0, 3264, 3392, 3392, 3392, 3520, 4]
    for j in range(8):
        e(f"""
        s_movk_i32 s65, {A1[j]-A0[j]}
        v_add_u32 v22, {A0[j]}, v18
        v_mad_i32_i24 v22, v19, s65, v22
        ds_read2st64_b32 {vr(32+2*j,2)}, v22 offset0:0 offset1:18
        """)
    e(f"""
    v_cmp_eq_u32 s[68:69], 0, v1
    v_mov_b32 v23, s67
    s_nop 0
    v_cndmask_b32 v23, 0, v23, s[68:69]
    s_waitcnt lgkmcnt(0)
    """)
    for j in range(8): e(f"v_add_f32 v{32+2*j}, v{32+2*j}, v{33+2*j}")
    e("v_add_f32 v32, v32, v23\nv_mov_b32 v30, 0")
    for i in range(4): e(f"v_cvt_pk_bf16_f32 v{48+i}, v{32+2*(7-2*i)}, v{32+2*(6-2*i)}")
    e(f"""
    s_nop 1
    v_mov_b32_dpp v30, v48 wave_shr:1 row_mask:0xf bank_mask:0xf
    H_T2:
    v_add_f32 v16, v16, v17
    v_add_f32 v20, v20, v21
    v_cndmask_b32 v24, v16, v20, vcc
    v_cvt_pk_bf16_f32 v56, v20, v20
    v_cvt_pk_bf16_f32 v57, v20, v24
    v_cvt_pk_bf16_f32 v58, v16, v16
    v_cvt_pk_bf16_f32 v59, v16, v16
    v_alignbit_b32 v52, v49, v48, 16
    v_alignbit_b32 v53, v50, v49, 16
    v_alignbit_b32 v54, v51, v50, 16
    v_alignbit_b32 v55, v30, v51, 16
    v_alignbit_b32 v60, v57, v56, 16
    v_alignbit_b32 v61, v58, v57, 16
    v_mov_b32 v62, v58
    v_mov_b32 v63, v58
    v_sub_u32 v14, 127, v14
    v_lshlrev_b32 v14, 4, v14
    s_mul_i32 s77, s6, {ECH}
    s_add_u32 s77, s77, {XB}
    v_add_u32 v14, s77, v14
    H_XPOLL:
    s_waitcnt vmcnt(0)
    v_cmp_ne_u32 vcc, s60, v10
    s_cbranch_vccz H_XOK
    s_sub_u32 s61, s61, 1
    s_cbranch_scc1 BAIL
    s_sleep 2
    buffer_load_dword v10, v9, s[44:47], s81 offen sc1
    s_branch H_XPOLL
    H_XOK:
    v_lshrrev_b32 v16, 2, v1
    v_and_b32 v17, 3, v1
    v_lshlrev_b32 v18, 7, v16
    v_lshl_add_u32 v18, v17, 4, v18
    s_lshl_b32 s65, s76, 13
    s_lshl_b32 s66, s7, 12
    s_add_u32 s65, s65, s66
    s_lshl_b32 s66, s6, 6
    s_add_u32 s65, s65, s66
    s_add_u32 s65, s65, {XT2}
    buffer_load_dwordx4 v[64:67], v18, s[44:47], s65 offen sc1
    buffer_load_dwordx4 v[68:71], v18, s[44:47], s65 offen offset:2048 sc1
    v_mul_u32_u24 v17, 1536, v17
    v_lshl_add_u32 v17, v16, 4, v17
    s_mul_i32 s82, s6, {UCH}
    s_add_u32 s82, s82, {UB}
    s_lshl_b32 s65, s7, 8
    s_add_u32 s65, s65, s82
    v_add_u32 v19, s65, v17
    s_lshl_b32 s65, s7, 9
    s_add_u32 s65, s65, s82
    v_add_u32 v17, s65, v17
    v_mov_b32 v72, 0
    v_mov_b32 v73, 0
    v_mov_b32 v74, 0
    v_mov_b32 v75, 0
    s_mul_i32 s65, s7, {OOF}
    s_add_u32 s65, s65, s77
    v_add_u32 v20, s65, v2
    """)
    wait(e, XF_, 4)
    e(f"""
    ds_write_b128 v14, v[56:59]
    ds_write_b128 v14, v[60:63] offset:{OOF}
    ds_write_b128 v14, v[48:51] offset:2048
    ds_write_b128 v14, v[52:55] offset:{2048+OOF}
    ds_write_b128 v19, v[72:75]
    s_mov_b64 exec, 15
    ds_write_b128 v20, v[72:75] offset:4096
    s_mov_b64 exec, -1
    s_waitcnt vmcnt(0)
    ds_write_b128 v17, v[64:67] offset:512
    ds_write_b128 v17, v[68:71] offset:768
    """)
    signal(e, P2, "v6")
    wdma_voff(e, 7)
    e(f"""
    v_and_b32 v21, 31, v1
    v_lshrrev_b32 v22, 5, v1
    v_lshlrev_b32 v8, 3, v22
    v_sub_u32 v8, v8, v21
    v_add_u32 v8, 2047, v8
    v_and_b32 v9, 1, v8
    v_lshrrev_b32 v8, 1, v8
    v_mul_u32_u24 v9, {OOF}, v9
    v_lshl_add_u32 v8, v8, 2, v9
    s_lshl_b32 s65, s7, 10
    s_sub_u32 s65, s77, s65
    v_add_u32 v14, s65, v8
    v_subrev_u32 v15, 2048, v14
    v_mul_u32_u24 v8, 1536, v22
    v_lshl_add_u32 v8, v21, 4, v8
    s_lshl_b32 s65, s7, 8
    s_sub_u32 s65, s82, s65
    s_add_u32 s65, s65, 512
    v_add_u32 v16, s65, v8
    s_lshl_b32 s65, s3, 10
    s_add_u32 s69, s65, {WB}
    s_mul_i32 s68, s3, 3584
    s_mul_i32 s66, s5, 224
    s_add_u32 s68, s68, s66
    """)
    AC, CF = 64, (32, 48)
    for i in range(32): e(f"v_mov_b32 v{AC+i}, 0")
    wait(e, P2, 2, "v6")
    e("@S 4")
    def cread(h):
        c = CF[h]
        return [f"ds_read2_b32 {vr(c,2)}, v14 offset0:{8*h} offset1:{8*h+1}", f"ds_read2_b32 {vr(c+2,2)}, v14 offset0:{8*h+2} offset1:{8*h+3}",
                f"ds_read_b128 {vr(c+8,4)}, v16 offset:{3072*h}",
                f"ds_read2_b32 {vr(c+4,2)}, v15 offset0:{8*h} offset1:{8*h+1}", f"ds_read2_b32 {vr(c+6,2)}, v15 offset0:{8*h+2} offset1:{8*h+3}",
                f"ds_read_b128 {vr(c+12,4)}, v16 offset:{3072*h+512}"]
    def cm(h):
        c = CF[h]
        return [f"v_mfma_f32_32x32x16_bf16 {vr(AC,16)}, {vr(c,4)}, {vr(c+8,4)}, {vr(AC,16)}",
                f"v_mfma_f32_32x32x16_bf16 {vr(AC+16,16)}, {vr(c+4,4)}, {vr(c+8,4)}, {vr(AC+16,16)}",
                f"v_mfma_f32_32x32x16_bf16 {vr(AC+16,16)}, {vr(c,4)}, {vr(c+12,4)}, {vr(AC+16,16)}"]
    for r in cread(0): e(r)
    e(f"s_mov_b32 s79, {1 if 'noconv' in ABL else 16}\nH_CONV:")
    for r in cread(1): e(r)
    e(f"""
    v_subrev_u32 v14, 64, v14
    v_subrev_u32 v15, 64, v15
    v_subrev_u32 v16, 16, v16
    s_waitcnt lgkmcnt(6)
    """)
    for m in cm(0): e(m)
    for r in cread(0): e(r)
    e("s_waitcnt lgkmcnt(6)")
    for m in cm(1): e(m)
    e(f"""
    s_sub_u32 s79, s79, 1
    s_cmp_lg_u32 s79, 0
    s_cbranch_scc1 H_CONV
    s_mul_i32 s65, s3, {KGS}
    v_add_u32 v8, s65, v2
    s_xor_b32 s65, s3, 1
    s_mul_i32 s65, s65, {KGS}
    v_add_u32 v9, s65, v2
    s_waitcnt lgkmcnt(0)
    s_nop 7
    s_cmp_eq_u32 s7, 0
    s_cbranch_scc1 H_C0
    """)
    for i in range(4): e(f"ds_write_b128 v8, {vr(AC+4*i,4)} offset:{1024*i}")
    for i in range(16): e(f"v_mov_b32 v{AC+i}, v{AC+16+i}")
    e("s_branch H_C1\nH_C0:")
    for i in range(4): e(f"ds_write_b128 v8, {vr(AC+16+4*i,4)} offset:{1024*i}")
    e("H_C1:")
    signal(e, P3, "v6")
    DMA2 = """
    s_mov_b32 m0, s69
    s_add_u32 s69, s69, 4096
    buffer_load_dwordx4 v7, s[48:51], s68 offen lds
    s_mov_b32 m0, s69
    s_add_u32 s68, s68, 14336
    s_add_u32 s69, s69, 4096
    buffer_load_dwordx4 v7, s[48:51], s68 offen lds
    s_add_u32 s68, s68, 14336
    """
    wait(e, C5, 4, sleep=2)
    e(DMA2); e(DMA2)
    wait(e, P3, 2, "v6", sleep=2)
    for i in range(4): e(f"ds_read_b128 {vr(32+4*i,4)}, v9 offset:{1024*i}")
    e(f"""
    v_mul_u32_u24 v8, 28672, v21
    v_lshl_add_u32 v8, v22, 4, v8
    s_lshl_b32 s65, s76, 1
    s_add_u32 s65, s65, s6
    s_lshl_b32 s65, s65, 6
    s_mul_i32 s66, s7, {32*28672}
    s_add_u32 s65, s65, s66
    s_add_u32 s65, s65, {BT2}
    s_mov_b32 s75, 0xfffffffe
    s_waitcnt lgkmcnt(0)
    """)
    for i in range(16): e(f"v_add_f32 v{AC+i}, v{AC+i}, v{32+i}")
    for i in range(8): e(f"v_cvt_pk_bf16_f32 v{32+i}, v{AC+2*i}, v{AC+2*i+1}")
    for i in range(8): e(f"v_min_u32 v{32+i}, s75, v{32+i}")
    e(f"""
    s_cmp_ge_u32 s2, 224
    v_permlane32_swap_b32 v32, v34
    v_permlane32_swap_b32 v33, v35
    v_permlane32_swap_b32 v36, v38
    v_permlane32_swap_b32 v37, v39
    s_cbranch_scc1 H_NOBT
    buffer_store_dwordx4 v[32:35], v8, s[44:47], s65 offen sc1
    buffer_store_dwordx4 v[36:39], v8, s[44:47], s65 offen offset:32 sc1
    H_NOBT:
    @S 5
    s_mov_b32 s79, {1 if 'nowo' in ABL else 12}
    H_WO:
    s_waitcnt vmcnt(2)
    {DMA2}
    s_sub_u32 s79, s79, 1
    s_cmp_lg_u32 s79, 0
    s_cbranch_scc1 H_WO
    v_bfe_u32 v8, v1, 2, 2
    v_lshl_add_u32 v9, v22, 2, v8
    v_lshlrev_b32 v9, 8, v9
    v_bfe_u32 v10, v1, 4, 1
    v_lshlrev_b32 v10, 5, v10
    v_and_b32 v11, 3, v1
    v_lshl_add_u32 v10, v11, 3, v10
    s_lshl_b32 s65, s3, 6
    v_add_u32 v10, s65, v10
    v_lshlrev_b32 v8, 6, v8
    v_xor_b32 v10, v10, v8
    v_add_u32 v9, v9, v10
    """)
    for d in range(4):
        e(f"s_add_u32 s65, s5, {d}\ns_and_b32 s65, s65, 3\ns_mul_i32 s65, s65, 28672\ns_add_u32 s65, s65, {WB}\nv_add_u32 v{24+d}, s65, v9")
    e("s_waitcnt vmcnt(0)")
    signal(e, C6)
    wait(e, C6, 4, sleep=2)
    for h in range(16):
        for s in range(2):
            for i in range(2):
                e(f"ds_read_b64_tr_b16 {ar(8*h+4*s+2*i,2)}, v{24 + h//4} offset:{7168*(h%4)+4096*s+2048*i}")
    ID, BF, YA, OA = 40, 48, 64, 80
    e(f"""
    v_and_b32 v8, 1, v21
    v_lshlrev_b32 v8, 4, v8
    v_mov_b32 v9, 0x3f80
    v_lshlrev_b32 v9, v8, v9
    v_lshrrev_b32 v10, 1, v21
    v_lshlrev_b32 v11, 2, v22
    v_sub_u32 v10, v10, v11
    """)
    for s in range(2):
        for w in range(4):
            e(f"v_cmp_eq_u32 vcc, {8*s+w}, v10\ns_nop 1\nv_cndmask_b32 v{ID+4*s+w}, 0, v9, vcc")
    e(f"""
    v_lshlrev_b32 v8, 6, v21
    v_lshl_add_u32 v8, v22, 4, v8
    s_mul_i32 s65, s4, 28672
    s_mul_i32 s66, s5, 7168
    s_add_u32 s65, s65, s66
    s_lshl_b32 s66, s3, 11
    s_add_u32 s65, s65, s66
    s_add_u32 s65, s65, {BT2}
    v_mul_u32_u24 v12, 896, v21
    v_lshl_add_u32 v12, v22, 4, v12
    s_mul_i32 s66, s4, {32*896}
    s_mul_i32 s67, s5, 224
    s_add_u32 s66, s66, s67
    s_lshl_b32 s67, s3, 6
    s_add_u32 s66, s66, s67
    v_lshlrev_b32 v13, 2, v21
    v_add_u32 v14, {STG}, v2
    s_cmp_eq_u32 s3, 3
    s_cselect_b32 s70, 0xffff, -1
    s_mov_b32 s71, s70
    s_waitcnt lgkmcnt(0)
    """)
    signal(e, C7)
    srd(e, 48, 38, 2048 * 896)
    e(f"""
    ds_read_b32 v15, v13 offset:{GOF}
    @S 6
    @T 1
    H_YPOLL:
    buffer_load_dwordx4 {vr(BF,4)}, v8, s[44:47], s65 offen sc1
    buffer_load_dwordx4 {vr(BF+4,4)}, v8, s[44:47], s65 offen offset:32 sc1
    s_waitcnt vmcnt(0)
    v_max3_u32 v16, v{BF}, v{BF+1}, v{BF+2}
    v_max3_u32 v16, v16, v{BF+3}, v{BF+4}
    v_max3_u32 v16, v16, v{BF+5}, v{BF+6}
    v_max_u32 v16, v16, v{BF+7}
    v_cmp_eq_u32 vcc, -1, v16
    s_and_b64 vcc, vcc, s[70:71]
    s_cbranch_vccz H_YOK
    s_sub_u32 s61, s61, 1
    s_cbranch_scc1 BAIL
    s_sleep 8
    s_branch H_YPOLL
    H_YOK:
    v_mfma_f32_32x32x16_bf16 {vr(YA,16)}, {vr(BF,4)}, {vr(ID,4)}, 0
    v_mfma_f32_32x32x16_bf16 {vr(YA,16)}, {vr(BF+4,4)}, {vr(ID+4,4)}, {vr(YA,16)}
    s_waitcnt lgkmcnt(0)
    v_sub_f32 v16, 1.0, v15
    s_nop 10
    """)
    for i in range(16): e(f"v_mul_f32 v{YA+i}, v16, v{YA+i}")
    e("@T 2\ns_setprio 3\ns_barrier\n@T 3")
    FB = 96
    def block(d):
        for s in range(8): e(f"ds_read_b128 {vr(FB+4*s,4)}, v14 offset:{8192*d+1024*s}")
        for s in range(8):
            e(f"s_waitcnt lgkmcnt({7-s})")
            o = (OA, 32, 48, OA)[d]
            e(f"v_mfma_f32_32x32x16_bf16 {vr(o,16)}, {ar(32*d+4*s,4)}, {vr(FB+4*s,4)}, " + ("0" if s == 0 else vr(o,16)))
    wait(e, G0, 4)
    block(0)
    e("s_nop 11")
    for i in range(16): e(f"v_fmac_f32 v{YA+i}, v15, v{OA+i}")
    e(f"""
    @T 4
    s_mov_b32 s73, 14
    H_PICK:
    ds_read_b128 v[20:23], v3 offset:{G0}
    s_waitcnt lgkmcnt(0)
    v_readfirstlane_b32 s76, v21
    v_readfirstlane_b32 s77, v22
    v_readfirstlane_b32 s78, v23
    """)
    for d in range(1, 4):
        e(f"""
        s_bitcmp0_b32 s73, {d}
        s_cbranch_scc1 H_PN{d}
        s_cmp_ge_u32 s{75+d}, 4
        s_cbranch_scc1 H_B{d}
        H_PN{d}:
        """)
    e("""
    s_sub_u32 s61, s61, 1
    s_cbranch_scc1 BAIL
    s_sleep 1
    s_branch H_PICK
    """)
    for d in range(1, 4):
        e(f"H_B{d}:")
        block(d)
        e(f"s_bitset0_b32 s73, {d}\ns_cmp_lg_u32 s73, 0\ns_cbranch_scc1 H_PICK")
        if d < 3: e("s_branch H_FIN")
    e("H_FIN:\n@T 5")
    e("s_nop 10")
    for i in range(16): e(f"v_add_f32 v{32+i}, v{32+i}, v{48+i}")
    for i in range(16): e(f"v_add_f32 v{32+i}, v{32+i}, v{OA+i}")
    for i in range(16): e(f"v_fmac_f32 v{YA+i}, v15, v{32+i}")
    for i in range(8): e(f"v_cvt_pk_bf16_f32 v{32+i}, v{YA+2*i}, v{YA+2*i+1}")
    e(f"""
    s_cmp_eq_u32 s3, 3
    s_nop 0
    v_permlane32_swap_b32 v32, v34
    v_permlane32_swap_b32 v33, v35
    v_permlane32_swap_b32 v36, v38
    v_permlane32_swap_b32 v37, v39
    buffer_store_dwordx4 v[32:35], v12, s[48:51], s66 offen
    s_cbranch_scc1 H_END
    buffer_store_dwordx4 v[36:39], v12, s[48:51], s66 offen offset:32
    H_END:
    @E 0
    BAIL:
    s_endpgm
    """)

def main(out):
    e = A()
    hdr = f"""; gated mix of MQA attention and an S4 convolution: one launch, workgroups hand data over through d_ws
; @launch grid=(256,1,1) block=(512,1,1) lds={LDS}
.amdgcn_target "amdgcn-amd-amdhsa--gfx950"
.text
"""
    prologue(e); attn_path(e); helper_path(e)
    tail = f""".section .rodata,"a"
.p2align 6
.amdhsa_kernel {NAME}
  .amdhsa_next_free_vgpr 256
  .amdhsa_next_free_sgpr 102
  .amdhsa_accum_offset 128
  .amdhsa_group_segment_fixed_size 0
  .amdhsa_kernarg_size 144
  .amdhsa_user_sgpr_count 2
  .amdhsa_user_sgpr_kernarg_segment_ptr 1
  .amdhsa_system_sgpr_workgroup_id_x 1
.end_amdhsa_kernel
"""
    open(out, "w").write(hdr + e.text() + tail)

if __name__ == "__main__":
    main(sys.argv[1] if len(sys.argv) > 1 else "f2.s")
```

```python
import math, struct, sys, os

def f2u(x): return struct.unpack("<I", struct.pack("<f", x))[0]
LOG2E = 1.4426950408889634
QSCALE = (28 ** -0.5) * LOG2E
NAME = "gated_mix__grouped_kv_mqa__ssm_conv_s4__prompt_kernel"

KVF = 0x000000
FLG = 0x040000
FX  = 0x044000
XT2 = 0x080000
OX  = 0x280000
BT2 = 0x480000
WSZ = 0x640000
KGS = 4608
SY = 18432
XB = 18944
WB = 48128
WEND = WB + 448 * 256
LDS = 163840
IMG = WB + 336 * 256
ECH, OOF, UB, UCH = 8384, 4224, XB + 16768, 6144
C1, CA, C3, C4, C5, KVD, P1, P2, P3, C6, C7, CI, XF_, CB, G0, GOF = [SY + x for x in (0, 4, 8, 12, 16, 20, 24, 32, 40, 48, 52, 56, 60, 64, 80, 128)]
CX = WB + 49152
STG = WB + 53248
SAFE_BOUND = 80.0
SHIFT = 64.0

BUDGET = int(os.environ.get("BUDGET", "0x8000"), 0)
ABL = os.environ.get("ABL", "")
NPRE = int(os.environ.get("NPRE", "8"))
PREF = int(os.environ.get("PREF", "1"))
PSH = int(os.environ.get("PSH", "7"))
HPRIO = int(os.environ.get("HPRIO", "1"))
LPRIO = int(os.environ.get("LPRIO", "0"))
ROT = int(os.environ.get("ROT", "1"))
APRIO = int(os.environ.get("APRIO", "3"))
CPF = int(os.environ.get("CPF", "0"))
STAMP = int(os.environ.get("STAMP", "0"))
TSB = 0x1000000
def stamp(e, i):
    if STAMP: e(f"s_memrealtime s[{100-2*i}:{101-2*i}]\ns_waitcnt lgkmcnt(0)")
def stamp_end(e, kidx):
    if not STAMP: return
    e(f"""
    s_waitcnt vmcnt(0)
    s_memrealtime s[86:87]
    s_load_dwordx2 s[84:85], s[0:1], 136
    s_mov_b64 exec, 1
    v_lshrrev_b32 v2, 6, v0
    s_lshl_b32 s83, s2, 4
    v_add_u32 v2, s83, v2
    v_lshlrev_b32 v2, 6, v2
    v_add_u32 v2, {TSB + kidx*0x100000}, v2
    s_waitcnt lgkmcnt(0)
    """)
    for i in range(16): e(f"v_mov_b32 v{4+i}, s{86+i}")
    for i in range(4): e(f"global_store_dwordx4 v2, v[{4+4*i}:{7+4*i}], s[84:85] offset:{16*i}")

class A:
    def __init__(self): self.l = []; self.n = 0
    def __call__(self, s=""):
        for line in s.split("\n"):
            line = line.strip()
            if not line: continue
            if line.startswith("@S "):
                if STAMP == 1 or line == "@S 0": stamp(self, int(line[3:]))
                continue
            if line.startswith("@T "):
                if STAMP == 2: stamp(self, int(line[3:]))
                continue
            if line.startswith("@E "): stamp_end(self, int(line[3:])); continue
            if line.endswith(":") or line.startswith("."): self.l.append(line)
            else: self.l.append("    " + line)
    def lab(self, p="L"):
        self.n += 1; return f"{p}{self.n}"
    def text(self): return "\n".join(self.l) + "\n"

def vr(a, n): return f"v[{a}:{a+n-1}]"
def ar(a, n): return f"a[{a}:{a+n-1}]"
def sr(a, n): return f"s[{a}:{a+n-1}]"
def srd(e, d, base, nbytes):
    e(f"s_mov_b32 s{d}, s{base}\ns_mov_b32 s{d+1}, s{base+1}\ns_mov_b32 s{d+2}, {nbytes}\ns_mov_b32 s{d+3}, 0x00020000")

def signal(e, off, addr="v3", restore="s_mov_b64 exec, -1"):
    e(f"s_mov_b64 exec, 1\nds_add_u32 {addr}, v4 offset:{off}\n{restore}")
def wait(e, off, n, addr="v3", sleep=1):
    l = e.lab("W"); d = e.lab("D")
    e(f"""
    {l}:
    ds_read_b32 v5, {addr} offset:{off}
    s_waitcnt lgkmcnt(0)
    v_readfirstlane_b32 s64, v5
    s_cmp_ge_u32 s64, {n}
    s_cbranch_scc1 {d}
    s_sub_u32 s61, s61, 1
    s_cbranch_scc1 BAIL
    s_sleep {sleep}
    s_branch {l}
    {d}:
    """)
def nonce_issue(e, v): e(f"global_load_dword v{v}, v3, s[40:41] sc1")
def nonce_check(e, v):
    l = e.lab("N"); d = e.lab("D")
    e(f"""
    {l}:
    v_readfirstlane_b32 s60, v{v}
    s_cmp_lg_u32 s60, 0
    s_cbranch_scc1 {d}
    s_sub_u32 s61, s61, 1
    s_cbranch_scc1 BAIL
    global_load_dword v{v}, v3, s[40:41] sc1
    s_waitcnt vmcnt(0)
    s_branch {l}
    {d}:
    """)

def gemm_loop(e, nsteps, reads, mfma, depth, nper):
    for s in range(min(depth, nsteps)):
        for r in reads(s): e(r)
    for s in range(nsteps):
        if s + depth < nsteps:
            for r in reads(s + depth): e(r)
            out = depth * nper
        else:
            out = (nsteps - 1 - s) * nper
        e(f"s_waitcnt lgkmcnt({out})")
        e(mfma(s))

def cmul(e, z, x, y, t, conj=False):
    e(f"v_pk_mul_f32 {vr(t,2)}, {vr(x,2)}, {vr(y,2)} op_sel:[0,0] op_sel_hi:[1,0]")
    neg = "neg_hi:[1,0,0]" if conj else "neg_lo:[1,0,0]"
    e(f"v_pk_fma_f32 {vr(z,2)}, {vr(x,2)}, {vr(y,2)}, {vr(t,2)} op_sel:[1,1,0] op_sel_hi:[0,1,1] {neg}")

def wdma_voff(e, v):
    e(f"""
    v_lshrrev_b32 v8, 4, v1
    v_and_b32 v9, 15, v1
    v_lshlrev_b32 v10, 2, v8
    v_xor_b32 v9, v9, v10
    v_mul_u32_u24 v8, 896, v8
    v_lshl_add_u32 v{v}, v9, 4, v8
    """)

def prologue(e):
    e(f"""
    .globl {NAME}
    .p2align 8
    .type {NAME},@function
    {NAME}:
    s_cmp_ge_u32 s2, 256
    s_cbranch_scc1 BAIL
    @S 0
    s_load_dwordx16 s[8:23], s[0:1], 0
    s_load_dwordx16 s[24:39], s[0:1], 64
    s_load_dwordx4 s[40:43], s[0:1], 128
    v_lshrrev_b32 v2, 6, v0
    v_and_b32 v1, 63, v0
    v_readfirstlane_b32 s3, v2
    v_lshlrev_b32 v2, 4, v1
    v_mov_b32 v3, 0
    v_mov_b32 v4, 1
    s_and_b32 s4, s2, 7
    s_lshl_b32 s4, s4, 3
    s_bfe_u32 s5, s2, 0x30003
    s_add_u32 s4, s4, s5
    s_lshr_b32 s5, s2, 6
    s_mov_b32 s61, {BUDGET}
    s_mov_b32 s62, 0
    s_mov_b32 s63, -1
    s_cmp_lg_u32 s3, 0
    s_cbranch_scc1 NOZERO
    v_mov_b32 v8, 0
    v_mov_b32 v9, 0
    v_mov_b32 v10, 0
    v_mov_b32 v11, 0
    v_lshlrev_b32 v6, 3, v1
    v_add_u32 v7, {WEND}, v2
    ds_write_b64 v6, v[8:9] offset:{SY}
    ds_write_b128 v7, v[8:11]
    NOZERO:
    s_waitcnt lgkmcnt(0)
    """)
    srd(e, 44, 42, WSZ)
    e("s_cmp_ge_u32 s3, 4\ns_cbranch_scc1 HELPER")

class Lds:
    def __init__(self, e): self.e = e; self.n = 0; self.mark = {}
    def op(self, text, tag=None):
        self.e(text); self.n += 1
        if tag is not None: self.mark[tag] = self.n
    def wait(self, tag):
        self.e(f"s_waitcnt lgkmcnt({min(15, self.n - self.mark[tag])})")

def xfrag(s): return ar(64 + 4*s, 4) if s < 16 else vr(80 + 4*(s-16), 4)
def xfrag_addr(e, v):
    e(f"""
    v_lshrrev_b32 v12, 5, v1
    v_and_b32 v13, 31, v1
    v_mul_u32_u24 v14, 912, v13
    v_lshl_add_u32 v14, v12, 4, v14
    v_add_u32 v{v}, {XB}, v14
    """)
def xfrag_reads(e, v):
    if 'noxf' in ABL: return
    for s in range(28): e(f"ds_read_b128 {xfrag(s)}, v{v} offset:{32*s}")

def attn_path(e):
    Q, S, P, KV, CR = 16, (48, 64), (80, 88), (96, 112), 8
    e(f"s_setprio {APRIO}")
    if PREF:
        e(f"""
        s_lshr_b32 s64, s2, 3
        v_lshlrev_b32 v8, {PSH}, v1
        s_mov_b32 s55, 0x00020000
        s_cmp_lg_u32 s3, 0
        s_cbranch_scc1 A_P1
        s_mov_b32 s52, s8
        s_mov_b32 s53, s9
        s_lshl_b32 s65, s4, 2
        s_add_u32 s65, s65, s5
        s_mul_i32 s65, s65, 7168
        s_add_u32 s54, s65, 7168
        s_branch A_PGO
        A_P1:
        s_cmp_eq_u32 s3, 3
        s_cbranch_scc1 A_P3
        s_mov_b32 s52, s10
        s_mov_b32 s53, s11
        s_mul_i32 s65, s64, 12544
        s_add_u32 s54, s65, 12544
        s_cmp_eq_u32 s3, 1
        s_cselect_b32 s66, 0, 6272
        s_cselect_b32 s67, 6272, 0
        s_add_u32 s65, s65, s66
        s_sub_u32 s54, s54, s67
        s_branch A_PGO
        A_P3:
        s_cmp_lt_u32 s64, 16
        s_cselect_b32 s52, s12, s14
        s_cselect_b32 s53, s13, s15
        s_and_b32 s65, s64, 15
        s_mul_i32 s65, s65, 1664
        s_add_u32 s54, s65, 1664
        s_min_u32 s54, s54, {448*56}
        A_PGO:
        buffer_load_dword v100, v8, s[52:55], s65 offen
        """)
        if PSH == 6: e("v_add_u32 v8, 4096, v8\nbuffer_load_dword v100, v8, s[52:55], s65 offen")
    e("s_barrier")
    srd(e, 48, 8, 2048 * 896)
    e(f"""
    s_mul_i32 s64, s3, {8*912}
    s_add_u32 m0, s64, {XB}
    s_lshl_b32 s65, s4, 5
    s_lshl_b32 s66, s3, 3
    s_add_u32 s65, s65, s66
    s_mul_i32 s65, s65, 896
    s_mov_b32 exec_hi, 0x00ffffff
    """)
    for i in range(8):
        e("buffer_load_dwordx4 v2, s[48:51], s65 offen lds")
        if i < 7: e("s_add_u32 m0, m0, 912\ns_add_u32 s65, s65, 896")
    e(f"""
    s_mov_b32 exec_hi, -1
    s_cmp_ge_u32 s5, 2
    s_cbranch_scc1 A_NOIMG
    s_cmp_eq_u32 s5, 0
    s_cselect_b32 s52, s12, s14
    s_cselect_b32 s53, s13, s15
    s_mov_b32 s54, {448*56}
    s_mov_b32 s55, 0x00020000
    s_mul_i32 s65, s3, {7*1024}
    s_add_u32 m0, s65, {IMG}
    s_nop 0
    """)
    for i in range(7):
        e("buffer_load_dwordx4 v2, s[52:55], s65 offen lds")
        if i < 6: e("s_add_u32 m0, m0, 1024\ns_add_u32 s65, s65, 1024")
    e("A_NOIMG:\n@S 1")
    if ABL == "kgen": e("@E 0\ns_endpgm")
    if 'dmaonly' in ABL: e("s_cmp_lt_u32 s3, 2\ns_cbranch_scc1 BAIL")
    e("s_cmp_ge_u32 s3, 2\ns_cbranch_scc1 A_DMAW")
    srd(e, 56, 36, 896)
    GW = 12
    e(f"""
    buffer_load_dwordx4 {vr(GW,4)}, v2, s[56:59], 0 offen
    v_mov_b32 v8, -1
    v_mov_b32 v9, -1
    v_mov_b32 v10, -1
    v_mov_b32 v11, -1
    s_mul_i32 s65, s4, 28672
    s_mul_i32 s66, s5, 7168
    s_add_u32 s65, s65, s66
    s_lshl_b32 s66, s3, 12
    s_add_u32 s65, s65, s66
    s_add_u32 s65, s65, {BT2}
    s_lshl_b32 s67, s3, 10
    s_sub_u32 s67, s65, s67
    buffer_store_dwordx4 v[8:11], v2, s[44:47], s65 offen sc1
    buffer_store_dwordx4 v[8:11], v2, s[44:47], s65 offen offset:1024 sc1
    buffer_store_dwordx4 v[8:11], v2, s[44:47], s65 offen offset:2048 sc1
    buffer_store_dwordx4 v[8:11], v2, s[44:47], s67 offen offset:3072 sc1
    s_lshl_b32 s65, s4, 2
    s_add_u32 s65, s65, s5
    s_lshl_b32 s65, s65, 13
    s_add_u32 s65, s65, s66
    s_add_u32 s65, s65, {OX}
    """)
    for i in range(4): e(f"buffer_store_dwordx4 v[8:11], v2, s[44:47], s65 offen offset:{1024*i} sc1")
    XA, WA, XT = 6, 7, 60
    e(f"""
    v_and_b32 v16, 15, v1
    v_lshrrev_b32 v17, 4, v1
    s_lshl_b32 s65, s3, 4
    v_add_u32 v18, s65, v16
    v_mul_u32_u24 v18, 912, v18
    v_lshl_add_u32 v18, v17, 4, v18
    v_add_u32 v{XA}, {XB}, v18
    v_bfe_u32 v18, v1, 2, 2
    v_lshl_add_u32 v18, v17, 3, v18
    v_and_b32 v19, 3, v1
    v_lshlrev_b32 v19, 3, v19
    v_mad_u32_u24 v20, v18, 56, v19
    v_add_u32 v{WA}, {IMG}, v20
    v_mul_u32_u24 v18, 912, v18
    v_add_u32 v10, v18, v19
    s_mul_i32 s65, s5, 224
    s_lshl_b32 s66, s3, 7
    s_add_u32 s65, s65, s66
    s_add_u32 s65, s65, {XB}
    v_add_u32 v10, s65, v10
    v_and_b32 v18, 1, v17
    v_lshl_add_u32 v18, v18, 5, v16
    v_lshlrev_b32 v18, 4, v18
    v_lshrrev_b32 v19, 5, v1
    s_cmp_eq_u32 s5, 0
    s_cselect_b32 s65, 10, 8
    v_lshlrev_b32 v19, s65, v19
    v_add_u32 v9, v18, v19
    v_lshrrev_b32 v18, 1, v16
    v_lshlrev_b32 v18, 13, v18
    v_and_b32 v19, 1, v1
    v_lshl_add_u32 v18, v19, 6, v18
    v_lshl_add_u32 v11, v17, 4, v18
    v_lshrrev_b32 v18, 5, v1
    v_and_b32 v19, 31, v1
    v_mul_u32_u24 v19, 912, v19
    v_lshl_add_u32 v19, v18, 4, v19
    v_add_u32 v8, {XB}, v19
    s_mul_i32 s65, s5, 56
    s_lshl_b32 s66, s3, 5
    s_add_u32 s65, s65, s66
    s_lshl_b32 s65, s65, 13
    s_lshl_b32 s66, s4, 7
    s_add_u32 s65, s65, s66
    s_add_u32 s69, s65, {XT2}
    s_lshl_b32 s65, s5, 1
    s_add_u32 s65, s65, s3
    s_lshl_b32 s65, s65, 6
    s_add_u32 s65, s65, s4
    s_lshl_b32 s65, s65, 6
    s_add_u32 s70, s65, {FX}
    s_lshl_b32 s65, s4, 2
    s_lshl_b32 s66, s5, 1
    s_add_u32 s65, s65, s66
    s_add_u32 s65, s65, s3
    s_lshl_b32 s65, s65, 6
    s_add_u32 s71, s65, {FLG}
    s_lshl_b32 s68, s4, 12
    """)
    for i in range(64): e(f"v_accvgpr_write_b32 a{i}, 0")
    e("s_waitcnt vmcnt(9)")
    signal(e, C1)
    wait(e, C1, 4)
    e("@S 2")
    for g in range(4):
        e(f"ds_read_b64_tr_b16 {vr(XT+4*g,2)}, v10 offset:{32*g}\nds_read_b64_tr_b16 {vr(XT+2+4*g,2)}, v10 offset:{32*g+4*912}")
    e("s_waitcnt lgkmcnt(4)")
    for g in range(3):
        if g == 2: e("s_waitcnt lgkmcnt(0)")
        e(f"buffer_store_dwordx4 {vr(XT+4*g,4)}, v11, s[44:47], s69 offen sc1\ns_add_u32 s69, s69, 65536")
    e(f"""
    s_cmp_eq_u32 s3, 1
    s_cbranch_scc1 A_XT3
    buffer_store_dwordx4 {vr(XT+12,4)}, v11, s[44:47], s69 offen sc1
    A_XT3:
    """)
    nonce_issue(e, 30)
    e("s_cmp_ge_u32 s5, 2\ns_cbranch_scc1 A_NOKV")
    e("s_cmp_eq_u32 s5, 1\ns_cbranch_scc1 A_V")
    D, FB = 16, 32
    DD = 76
    def rd(s):
        b = 24 + 12 * (s % 3)
        if s % 3 == 0: b = 84
        return b
    def rds(s):
        b = rd(s)
        return [f"ds_read_b128 {vr(b+8,4)}, v{XA} offset:{64*s}"] + \
               [f"ds_read_b64_tr_b16 {vr(b+4*dt+2*i,2)}, v{WA} offset:{1792*s+224*i+32*dt}" for dt in range(2) for i in range(2)]
    def mfk(s):
        b = rd(s)
        return "\n".join(f"v_mfma_f32_16x16x32_bf16 {vr(D+4*dt,4)}, {vr(b+4*dt,4)}, {vr(b+8,4)}, " + ("0" if s == 0 else vr(D+4*dt,4)) for dt in range(2))
    def mfv(s):
        b = rd(s)
        return "\n".join(f"v_mfma_f32_16x16x32_bf16 {vr(D+4*dt,4)}, {vr(b+8,4)}, {vr(b+4*dt,4)}, " + ("0" if s == 0 else vr(D+4*dt,4)) for dt in range(2))
    gemm_loop(e, 14, rds, mfk, 2, 5)
    signal(e, KVD)
    e(f"""
    s_mov_b32 s66, 0
    s_mov_b32 s67, 0xffff0000
    s_lshl_b32 s65, s3, 8
    s_add_u32 s68, s68, s65
    v_mov_b32 v28, 0x3f803f80
    v_mov_b32 v29, 0x00003f80
    v_cvt_pk_bf16_f32 v24, v16, v17
    v_cvt_pk_bf16_f32 v25, v18, v19
    v_cvt_pk_bf16_f32 v26, v20, v21
    v_cvt_pk_bf16_f32 v27, v22, v23
    v_cndmask_b32 v26, v26, v28, s[66:67]
    v_cndmask_b32 v27, v27, v29, s[66:67]
    v_mul_f32 v28, v20, v20
    v_fmac_f32 v28, v21, v21
    v_permlane32_swap_b32 v24, v26
    v_permlane32_swap_b32 v25, v27
    v_fmac_f32 v28, v22, v22
    v_fmac_f32 v28, v23, v23
    buffer_store_dwordx4 v[24:27], v9, s[44:47], s68 offen sc1
    v_cndmask_b32 v28, v28, 0, s[66:67]
    v_fmac_f32 v28, v16, v16
    v_fmac_f32 v28, v17, v17
    v_fmac_f32 v28, v18, v18
    v_fmac_f32 v28, v19, v19
    v_mov_b32 v29, v28
    s_nop 1
    v_permlane16_swap_b32 v28, v29
    s_nop 1
    v_add_f32 v28, v28, v29
    v_mov_b32 v29, v28
    s_nop 1
    v_permlane32_swap_b32 v28, v29
    s_nop 1
    v_add_f32 v31, v28, v29
    """)
    for c in (1, 2, 4, 8): e(f"s_nop 1\nv_max_f32_dpp v31, v31, v31 row_ror:{c} row_mask:0xf bank_mask:0xf")
    e("s_branch A_KVFLAG\nA_V:")
    gemm_loop(e, 14, rds, mfv, 2, 5)
    signal(e, KVD)
    e(f"""
    v_and_b32 v28, 15, v1
    v_cmp_eq_u32 vcc, 12, v28
    s_lshl_b32 s65, s3, 10
    s_add_u32 s68, s68, s65
    v_mov_b32 v28, 0x3f803f80
    v_mov_b32 v31, 0
    v_cvt_pk_bf16_f32 v24, v16, v17
    v_cvt_pk_bf16_f32 v25, v18, v19
    v_cvt_pk_bf16_f32 v26, v20, v21
    v_cvt_pk_bf16_f32 v27, v22, v23
    v_cndmask_b32 v26, v26, v28, vcc
    v_cndmask_b32 v27, v27, v28, vcc
    s_nop 1
    v_permlane32_swap_b32 v24, v26
    v_permlane32_swap_b32 v25, v27
    s_nop 0
    buffer_store_dwordx4 v[24:27], v9, s[44:47], s68 offen offset:2048 sc1
    A_KVFLAG:
    s_waitcnt vmcnt(1)
    """)
    nonce_check(e, 30)
    e(f"""
    s_mov_b64 exec, 1
    buffer_store_dword v30, v3, s[44:47], s70 offen sc1
    s_mov_b64 exec, -1
    """)
    xfrag_reads(e, 8)
    e(f"""
    s_waitcnt vmcnt(1)
    s_mov_b64 exec, 1
    buffer_store_dwordx2 v[30:31], v3, s[44:47], s71 offen sc1
    s_mov_b64 exec, -1
    @S 3
    """)
    signal(e, XF_)
    e("s_cmp_eq_u32 s3, 0\ns_cbranch_scc1 A_QSYNC")
    wait(e, KVD, 2)
    e("s_branch A_GATE\nA_NOKV:")
    xfrag_reads(e, 8)
    signal(e, XF_)
    e("s_waitcnt vmcnt(0)")
    nonce_check(e, 30)
    e(f"""
    s_mov_b64 exec, 1
    buffer_store_dword v30, v3, s[44:47], s70 offen sc1
    s_mov_b64 exec, -1
    @S 3
    s_cmp_eq_u32 s3, 0
    s_cbranch_scc1 A_QSYNC
    A_GATE:
    v_lshlrev_b32 v8, 11, v1
    v_add_u32 v8, {WB}, v8
    s_mov_b32 exec_hi, 0x00ffffff
    """)
    for j in range(8):
        op = "ds_write_b16_d16_hi" if j & 1 else "ds_write_b16"
        e(f"{op} v8, v{GW + j//2} offset:{256*j + (224 ^ (64*(j&3)))}")
    e("s_mov_b32 exec_hi, -1")
    signal(e, CA)
    e("s_branch A_QSYNC\nA_DMAW:")
    srd(e, 56, 10, 448 * 896)
    wdma_voff(e, 6)
    xfrag_addr(e, 8)
    MASK = "s_mov_b32 exec_lo, 0xf3ff3fff\ns_mov_b32 exec_hi, 0xfff3ff3f"
    e(f"""
    s_sub_u32 s65, s3, 2
    s_lshl_b32 s66, s65, 10
    s_add_u32 m0, s66, {WB}
    s_mul_i32 s65, s65, 3584
    s_mul_i32 s66, s5, 224
    s_add_u32 s65, s65, s66
    {MASK}
    """)
    def dma_loop(n, lab):
        if 'nodma' in ABL: return
        e(f"""
        s_mov_b32 s66, {n//2}
        {lab}:
        buffer_load_dwordx4 v6, s[56:59], s65 offen lds
        s_add_u32 m0, m0, 2048
        s_add_u32 s65, s65, 7168
        buffer_load_dwordx4 v6, s[56:59], s65 offen lds
        s_add_u32 m0, m0, 2048
        s_add_u32 s65, s65, 7168
        s_sub_u32 s66, s66, 1
        s_cmp_lg_u32 s66, 0
        s_cbranch_scc1 {lab}
        """)
    dma_loop(NPRE, "A_DL1")
    e(f"s_waitcnt vmcnt({NPRE})")
    signal(e, C1)
    e("@S 2")
    if 'dmaonly' not in ABL: wait(e, C1, 4)
    xfrag_reads(e, 8)
    signal(e, XF_, restore=MASK)
    dma_loop(42 - NPRE, "A_DL2")
    e("s_cmp_ge_u32 s5, 2\ns_cbranch_scc1 A_DL3P")
    if 'dmaonly' not in ABL: wait(e, KVD, 2)
    e("A_DL3P:")
    dma_loop(14, "A_DL3")
    e("s_mov_b64 exec, -1\n@S 3")
    for i in range(64): e(f"v_accvgpr_write_b32 a{i}, 0")
    e("s_waitcnt vmcnt(14)")
    if 'dmaonly' in ABL: e("s_waitcnt vmcnt(0)\n@S 4\n@E 0\ns_endpgm")
    signal(e, CA)
    nonce_issue(e, 30)
    e("A_QSYNC:")
    e(f"""
    v_lshrrev_b32 v12, 5, v1
    v_bfe_u32 v13, v1, 2, 2
    v_lshl_add_u32 v14, v12, 3, v13
    v_lshlrev_b32 v14, 8, v14
    v_bfe_u32 v15, v1, 4, 1
    v_lshlrev_b32 v15, 5, v15
    v_and_b32 v16, 3, v1
    v_lshl_add_u32 v15, v16, 3, v15
    s_mul_i32 s65, s3, 56
    v_add_u32 v15, s65, v15
    v_lshlrev_b32 v13, 6, v13
    v_xor_b32 v15, v15, v13
    v_add_u32 v14, v14, v15
    v_add_u32 v7, {WB}, v14
    v_add_u32 v8, {WB + 65536}, v14
    s_mov_b32 s68, {f2u(QSCALE)}
    v_lshlrev_b32 v9, 6, v1
    s_lshl_b32 s69, s3, 12
    s_add_u32 s69, s69, {FLG}
    s_lshl_b32 s65, s3, 11
    s_add_u32 s65, s65, {WB}
    v_add_u32 v10, s65, v2
    v_lshlrev_b32 v11, 2, v1
    s_lshl_b32 s65, s3, 8
    s_add_u32 s65, s65, {WB + 8192}
    v_add_u32 v12, s65, v11
    """)
    wait(e, CA, 3)
    e("@S 4")
    ACC, FB = 48, 64
    WBUF = [16, 20, 24, 32, 36, 40]
    L = Lds(e); DEP = 5
    def rq(s):
        b = WBUF[s % 6]; w = 7 if s < 16 else 8; o = 4096 * (s % 16)
        L.op(f"ds_read_b64_tr_b16 {vr(b,2)}, v{w} offset:{o}")
        L.op(f"ds_read_b64_tr_b16 {vr(b+2,2)}, v{w} offset:{o+1024}", s)
    for s in range(DEP): rq(s)
    for s in range(28):
        if s == 11:
            e("s_cmp_lt_u32 s3, 2\ns_cbranch_scc1 A_NOCB\ns_waitcnt vmcnt(0)")
            signal(e, CB)
            e("A_NOCB:")
        if s == 14: L.op(f"ds_read_b32 v5, v3 offset:{CB}", "cb")
        if s + DEP == 21:
            L.wait("cb")
            e(f"""
            v_readfirstlane_b32 s64, v5
            s_cmp_ge_u32 s64, 2
            s_cbranch_scc1 A_CBOK
            """)
            wait(e, CB, 2)
            e("A_CBOK:")
        if s + DEP < 28: rq(s + DEP)
        L.wait(s)
        e(f"v_mfma_f32_32x32x16_bf16 {vr(ACC,16)}, {vr(WBUF[s%6],4)}, {xfrag(s)}, " + ("0" if s == 0 else vr(ACC,16)))
    signal(e, C3)
    e("s_waitcnt vmcnt(0)")
    nonce_check(e, 30)
    e(f"""
    buffer_load_dwordx2 v[14:15], v9, s[44:47], s69 offen sc1
    s_nop 3
    s_cmp_lg_u32 s3, 3
    s_cbranch_scc1 A_NOG
    v_mul_f32 v13, {f2u(-LOG2E)}, v{ACC+12}
    v_exp_f32 v13, v13
    s_nop 0
    v_add_f32 v13, 1.0, v13
    v_rcp_f32 v13, v13
    s_mov_b32 exec_lo, 0
    ds_write_b32 v11, v13 offset:{GOF - 128}
    s_mov_b32 exec_lo, -1
    A_NOG:
    """)
    for r in range(16): e(f"v_mul_f32 v{ACC+r}, s68, v{ACC+r}")
    for i in range(8): e(f"v_cvt_pk_bf16_f32 v{FB+i}, v{ACC+2*i}, v{ACC+2*i+1}")
    e(f"""
    v_cndmask_b32 v{FB+6}, v{FB+6}, 0, s[62:63]
    v_cndmask_b32 v{FB+7}, v{FB+7}, 0, s[62:63]
    v_mov_b32 v13, 0
    """)
    for i in range(8): e(f"v_dot2c_f32_bf16 v13, v{FB+i}, v{FB+i}")
    e("""
    s_nop 2
    v_mov_b32 v6, v13
    s_nop 1
    v_permlane32_swap_b32 v13, v6
    s_nop 1
    v_add_f32 v13, v13, v6
    """)
    wait(e, C3, 4)
    e(f"""
    ds_write_b128 v10, {vr(FB,4)}
    ds_write_b128 v10, {vr(FB+4,4)} offset:1024
    ds_write_b32 v12, v13
    """)
    signal(e, C4)
    wait(e, C4, 4)
    for j in range(4):
        e(f"""
        s_add_u32 s65, s3, {j+1}
        s_and_b32 s65, s65, 3
        s_lshl_b32 s66, s65, 11
        s_add_u32 s66, s66, {WB}
        v_add_u32 v10, s66, v2
        s_lshl_b32 s66, s65, 8
        s_add_u32 s66, s66, {WB + 8192}
        v_add_u32 v12, s66, v11
        ds_read_b128 {vr(Q+8*j,4)}, v10
        ds_read_b128 {vr(Q+8*j+4,4)}, v10 offset:1024
        ds_read_b32 v{48+j}, v12
        """)
    signal(e, C5)
    e(f"""
    @S 5
    s_lshl_b32 s65, s3, 16
    s_add_u32 s52, s42, s65
    s_addc_u32 s53, s43, 0
    s_mov_b32 s54, 0x10000
    s_mov_b32 s55, 0x00020000
    s_lshr_b32 s70, s2, 3
    s_add_u32 s70, s70, s5
    s_lshl_b32 s70, s70, 13
    s_and_b32 s70, s70, {0xffff if ROT else 0}
    A_POLL:
    s_waitcnt vmcnt(0)
    v_cmp_ne_u32 vcc, s60, v14
    s_cbranch_vccz A_GOT
    s_sub_u32 s61, s61, 1
    s_cbranch_scc1 BAIL
    buffer_load_dwordx2 v[14:15], v9, s[44:47], s69 offen sc1
    s_branch A_POLL
    A_GOT:
    buffer_load_dwordx4 {vr(KV[0],4)}, v2, s[52:55], s70 offen sc1
    buffer_load_dwordx4 {vr(KV[0]+4,4)}, v2, s[52:55], s70 offen offset:1024 sc1
    buffer_load_dwordx4 {vr(KV[0]+8,4)}, v2, s[52:55], s70 offen offset:2048 sc1
    buffer_load_dwordx4 {vr(KV[0]+12,4)}, v2, s[52:55], s70 offen offset:3072 sc1
    s_add_u32 s70, s70, 4096
    v_and_b32 v13, 7, v1
    v_lshlrev_b32 v13, 12, v13
    s_lshl_b32 s71, s4, 6
    s_add_u32 s71, s71, {FX}
    buffer_load_dword v12, v13, s[44:47], s71 offen sc1
    buffer_load_dwordx4 {vr(KV[1],4)}, v2, s[52:55], s70 offen sc1
    buffer_load_dwordx4 {vr(KV[1]+4,4)}, v2, s[52:55], s70 offen offset:1024 sc1
    """)
    for c in (1, 2, 4, 8): e(f"v_max_f32_dpp v15, v15, v15 row_ror:{c} row_mask:0xf bank_mask:0xf\ns_nop 1")
    e(f"""
    v_mov_b32 v14, v15
    s_nop 1
    v_permlane16_swap_b32 v15, v14
    s_nop 1
    v_max_f32 v15, v15, v14
    v_mov_b32 v14, v15
    s_nop 1
    v_permlane32_swap_b32 v15, v14
    s_nop 1
    v_max_f32 v15, v15, v14
    s_mov_b32 s72, {f2u(SAFE_BOUND)}
    s_waitcnt lgkmcnt(0)
    """)
    for j in range(4): e(f"v_mul_f32 v{48+j}, v15, v{48+j}")
    for j in range(4): e(f"v_sqrt_f32 v{48+j}, v{48+j}")
    for i in range(8): e(f"v_mov_b32 v{P[1]+i}, 0")
    e(f"""
    v_max_f32 v52, v48, v49
    v_max3_f32 v52, v52, v50, v51
    v_cmp_nle_f32 vcc, v52, s72
    """)
    for j in range(4): e(f"v_sub_f32 v{48+j}, {f2u(SHIFT)}, v{48+j}")
    for i in range(8): e(f"v_mov_b32 v{KV[1]+8+i}, 0")
    e("s_cbranch_vccnz A_FALLBACK")
    for j in range(4): e(f"v_cvt_pk_bf16_f32 v{48+j}, v{48+j}, 0")
    for j in range(4): e(f"v_cndmask_b32 v{Q+8*j+6}, v{Q+8*j+6}, v{48+j}, s[62:63]")
    for j in range(4): e(f"v_lshlrev_b32 v{CR+j}, 16, v{48+j}")
    e(f"""
    A_MAIN:
    s_mul_i32 s65, s3, 12288
    s_add_u32 s65, s65, {WB}
    v_add_u32 v6, s65, v2
    v_lshlrev_b32 v15, 2, v1
    s_waitcnt vmcnt(2)
    A_SIB:
    v_cmp_ne_u32 vcc, s60, v12
    s_cbranch_vccz A_SIBOK
    s_sub_u32 s61, s61, 1
    s_cbranch_scc1 BAIL
    buffer_load_dword v12, v13, s[44:47], s71 offen sc1
    s_waitcnt vmcnt(0)
    s_branch A_SIB
    A_SIBOK:
    s_setprio {LPRIO}
    @S 6
    """)
    def qk(i, tile):
        kb = KV[(tile >> 2) & 1]; s = S[tile & 1]; q = Q + 8 * (tile & 3)
        return f"v_mfma_f32_32x32x16_bf16 {vr(s,16)}, {vr(kb+4*i,4)}, {vr(q+4*i,4)}, " + ("0" if i == 0 else vr(s,16))
    def pv(i, tile):
        vb = KV[(tile >> 2) & 1] + 8; p = P[tile & 1]; o = 16 * (tile & 3)
        return f"v_mfma_f32_32x32x16_bf16 {ar(o,16)}, {vr(vb+4*i,4)}, {vr(p+4*i,4)}, {ar(o,16)}"
    def ld(reg, off): return f"buffer_load_dwordx4 {vr(reg,4)}, v2, s[52:55], s70 offen offset:{off} sc1"
    def pw(d, i): return f"ds_write_b128 v6, {ar(16*d+4*i,4)} offset:{4096*d+1024*i}"
    e(qk(0, 0)); e(qk(1, 0))
    e(f"v_mov_b32 v{S[1]+14}, 0\nv_mov_b32 v{S[1]+15}, 0\ns_mov_b32 s73, 7")
    for d in range(3):
        e(f"s_sub_u32 s65, s3, {d+1}\ns_and_b32 s65, s65, 3\ns_mul_i32 s65, s65, 12288\ns_add_u32 s65, s65, {WB + 4096*d}\nv_add_u32 v{12+d}, s65, v2")
    pat = "pCeeee" "qceecee" "Qceeceec" "Peeceec"
    def step(j, last):
        s = S[j & 1]; p = P[j & 1]; sp = S[(j + 1) & 1]; pp = P[(j + 1) & 1]
        ex = [f"v_exp_f32 v{s+i}, v{s+i}" for i in range(16)]
        cv = [f"v_cvt_pk_bf16_f32 v{p+i}, v{s+2*i}, v{s+2*i+1}" for i in range(7)]
        side = {"p": [], "q": [], "Q": [], "P": []}
        pre = {"p": [], "q": []}
        if j == 1: pre["p"] = ["s_waitcnt vmcnt(2)"]; side["q"] = [ld(KV[1] + 8, 2048)]; side["Q"] = [ld(KV[1] + 12, 3072)]; side["P"] = ["s_add_u32 s70, s70, 4096", "s_and_b32 s70, s70, 0xffff"]
        if j == 3: side["p"] = ["s_waitcnt vmcnt(2)"]
        if not last:
            if j == 3: side["Q"] = [ld(KV[0], 0)]; side["P"] = [ld(KV[0] + 4, 1024)]
            if j == 5: pre["p"] = ["s_waitcnt vmcnt(2)"]; side["q"] = [ld(KV[0] + 8, 2048)]; side["Q"] = [ld(KV[0] + 12, 3072)]; side["P"] = ["s_add_u32 s70, s70, 4096"]
            if j == 7: side["p"] = ["s_waitcnt vmcnt(2)"]; side["Q"] = [ld(KV[1], 0), "s_sub_u32 s73, s73, 1"]; side["P"] = [ld(KV[1] + 4, 1024), "s_cmp_lg_u32 s73, 0"]
        else:
            if j == 2: side["q"] = [f"ds_read_b32 v5, v3 offset:{C7}"]
            if j == 4: side["p"] = ["s_waitcnt lgkmcnt(0)"]; side["q"] = ["v_readfirstlane_b32 s64, v5"]; side["Q"] = ["s_cmp_ge_u32 s64, 4", "s_cbranch_scc0 A_C7WAIT", "A_C7OK:"]
            if j == 5:
                pre["p"] = ["s_waitcnt vmcnt(0)"]
                for k, ch in enumerate("pqQP"):
                    side[ch] = [f"s_add_u32 s65, s3, {k+1}", "s_and_b32 s65, s65, 3", "s_lshl_b32 s65, s65, 10", f"s_add_u32 s65, s65, {CX + 256*k}",
                                "v_add_u32 v7, s65, v15", f"ds_write_b32 v7, v{CR+k}"]
            if j >= 6: side["q"] = [pw(j-6, 0)]; side["Q"] = [pw(j-6, 1)]; side["P"] = [pw(j-6, 2), pw(j-6, 3)]
        for ch in pat:
            if ch == "p":
                for x in pre["p"]: e(x)
                e(pv(0, (j - 1) & 7))
            elif ch == "P": e(pv(1, (j - 1) & 7))
            elif ch == "q":
                if not (last and j == 7): e(qk(0, j + 1))
            elif ch == "Q":
                if not (last and j == 7): e(qk(1, j + 1))
            elif ch == "C": e(f"v_cvt_pk_bf16_f32 v{pp+7}, v{sp+14}, v{sp+15}")
            elif ch == "e": e(ex.pop(0))
            elif ch == "c": e(cv.pop(0))
            if ch in side:
                for x in side[ch]: e(x)
        assert not ex and not cv
    e(".p2align 6\nA_LOOP:")
    for j in range(8): step(j, False)
    e("s_cbranch_scc1 A_LOOP")
    for j in range(8): step(j, True)
    e("s_setprio 3")
    e(pv(0, 7))
    e(f"""
    v_cvt_pk_bf16_f32 v{P[1]+7}, v{S[1]+14}, v{S[1]+15}
    s_lshl_b32 s65, s3, 10
    s_add_u32 s65, s65, {CX}
    """)
    e(pv(1, 7))
    e(f"""
    v_add_u32 v7, s65, v15
    s_lshl_b32 s65, s4, 2
    s_add_u32 s65, s65, s5
    s_lshl_b32 s65, s65, 13
    """)
    for i in range(4): e(pw(2, i))
    e(f"""
    @T 1
    s_lshl_b32 s66, s3, 11
    s_add_u32 s74, s65, s66
    s_add_u32 s74, s74, {OX}
    s_add_u32 s65, s66, {STG}
    v_add_u32 v6, s65, v2
    s_nop 1
    """)
    for i in range(16): e(f"v_accvgpr_read_b32 v{16+i}, a{48+i}")
    e(f"""
    s_waitcnt lgkmcnt(0)
    s_barrier
    @T 2
    ds_read2st64_b32 v[32:33], v7 offset0:0 offset1:1
    ds_read2st64_b32 v[34:35], v7 offset0:2 offset1:3
    """)
    R = 48
    for d in range(3):
        for i in range(4): e(f"ds_read_b128 {vr(R+16*d+4*i,4)}, v{12+d} offset:{1024*i}")
    for d in range(1, 4):
        e(f"""
        s_add_u32 s65, s5, {d}
        s_and_b32 s65, s65, 3
        s_lshl_b32 s65, s65, 13
        s_add_u32 s65, s65, s66
        s_lshl_b32 s{75+d}, s4, 15
        s_add_u32 s{75+d}, s{75+d}, s65
        s_add_u32 s{75+d}, s{75+d}, {OX}
        """)
    e(f"""
    s_waitcnt lgkmcnt(12)
    v_min_f32 v36, v32, v33
    v_min3_f32 v36, v36, v34, v35
    """)
    for d in (3, 0, 1, 2): e(f"v_sub_f32 v{32+d}, v36, v{32+d}")
    for d in (3, 0, 1, 2): e(f"v_exp_f32 v{32+d}, v{32+d}")
    for i in range(16): e(f"v_mul_f32 v{16+i}, v35, v{16+i}")
    for d in range(3):
        e(f"s_waitcnt lgkmcnt({4*(2-d)})")
        for i in [12] + [i for i in range(16) if i != 12]: e(f"v_fmac_f32 v{16+i}, v{32+d}, v{R+16*d+i}" if (d < 2 or i == 12) else "")
    e(f"""
    v_mov_b32 v36, v28
    v_mov_b32 v37, v28
    v_fmac_f32 v16, v34, v{R+32}
    v_fmac_f32 v17, v34, v{R+33}
    v_permlane32_swap_b32 v36, v37
    v_fmac_f32 v18, v34, v{R+34}
    v_fmac_f32 v19, v34, v{R+35}
    v_rcp_f32 v37, v37
    """)
    for i in range(4, 16):
        if i != 12: e(f"v_fmac_f32 v{16+i}, v34, v{R+32+i}")
    e("s_mov_b32 s75, 0xfffffffe")
    for i in range(16): e(f"v_mul_f32 v{16+i}, v{16+i}, v37")
    for i in range(8): e(f"v_cvt_pk_bf16_f32 v{40+i}, v{16+2*i}, v{17+2*i}")
    e(f"v_cndmask_b32 v46, v46, 0, s[62:63]\nv_cndmask_b32 v47, v47, 0, s[62:63]")
    for i in range(8): e(f"v_min_u32 v{40+i}, s75, v{40+i}")
    e(f"""
    buffer_store_dwordx4 v[40:43], v2, s[44:47], s74 offen sc1
    buffer_store_dwordx4 v[44:47], v2, s[44:47], s74 offen offset:1024 sc1
    ds_write_b128 v6, v[40:43]
    ds_write_b128 v6, v[44:47] offset:1024
    """)
    signal(e, G0)
    e("@T 3\ns_mov_b32 s73, 14\nA_GATHER:")
    for d in range(1, 4):
        e(f"""
        s_bitcmp0_b32 s73, {d}
        s_cbranch_scc1 A_GL{d}
        buffer_load_dwordx4 {vr(40+8*d,4)}, v2, s[44:47], s{75+d} offen sc1
        buffer_load_dwordx4 {vr(44+8*d,4)}, v2, s[44:47], s{75+d} offen offset:1024 sc1
        A_GL{d}:
        """)
    e("s_waitcnt vmcnt(0)")
    for d in range(1, 4):
        b = 40 + 8*d
        e(f"""
        s_bitcmp0_b32 s73, {d}
        s_cbranch_scc1 A_GC{d}
        v_max3_u32 v16, v{b}, v{b+1}, v{b+2}
        v_max3_u32 v16, v16, v{b+3}, v{b+4}
        v_max3_u32 v16, v16, v{b+5}, v{b+6}
        v_max_u32 v16, v16, v{b+7}
        v_cmp_eq_u32 vcc, -1, v16
        s_cbranch_vccnz A_GC{d}
        ds_write_b128 v6, {vr(b,4)} offset:{8192*d}
        ds_write_b128 v6, {vr(b+4,4)} offset:{8192*d+1024}
        s_bitset0_b32 s73, {d}
        """)
        signal(e, G0 + 4*d)
        e(f"A_GC{d}:")
    e(f"""
    s_sub_u32 s61, s61, 1
    s_cbranch_scc1 BAIL
    s_cmp_lg_u32 s73, 0
    s_cbranch_scc1 A_GATHER
    s_waitcnt lgkmcnt(0)
    @T 4
    @E 0
    s_endpgm
    A_C7WAIT:
    """)
    wait(e, C7, 4)
    e("s_branch A_C7OK")
    T = 52
    e(f"""
    A_FALLBACK:
    s_lshl_b32 s74, s3, 16
    s_mov_b32 s75, 16
    """)
    for j in range(4): e(f"v_mov_b32 v{48+j}, 0xff800000")
    e(f"""
    A_FB_LOOP:
    buffer_load_dwordx4 {vr(T,4)}, v2, s[44:47], s74 offen sc1
    buffer_load_dwordx4 {vr(T+4,4)}, v2, s[44:47], s74 offen offset:1024 sc1
    s_add_u32 s74, s74, 4096
    s_waitcnt vmcnt(0)
    """)
    for j in range(4):
        e(f"v_mfma_f32_32x32x16_bf16 {vr(64,16)}, {vr(T,4)}, {vr(Q+8*j,4)}, 0")
        e(f"v_mfma_f32_32x32x16_bf16 {vr(64,16)}, {vr(T+4,4)}, {vr(Q+8*j+4,4)}, {vr(64,16)}")
        e("s_nop 11")
        for i in range(8): e(f"v_max3_f32 v{48+j}, v{48+j}, v{64+2*i}, v{65+2*i}")
    e(f"""
    s_sub_u32 s75, s75, 1
    s_cmp_lg_u32 s75, 0
    s_cbranch_scc1 A_FB_LOOP
    """)
    for j in range(4): e(f"v_mov_b32 v{52+j}, v{48+j}")
    e("s_nop 0")
    for j in range(4): e(f"v_permlane32_swap_b32 v{48+j}, v{52+j}")
    e("s_nop 0")
    for j in range(4):
        m = 48 + j; t = 56
        e(f"""
        v_max_f32 v{m}, v{m}, v{52+j}
        v_sub_f32 v{m}, 0, v{m}
        v_cvt_pk_bf16_f32 v{t}, v{m}, v{m}
        v_and_b32 v{t+4}, 0xffff0000, v{t}
        v_sub_f32 v{m}, v{m}, v{t+4}
        v_cvt_pk_bf16_f32 v{t+2}, v{m}, v{m}
        v_and_b32 v{t+1}, 0xffff0000, v{t+2}
        v_sub_f32 v{m}, v{m}, v{t+1}
        v_cvt_pk_bf16_f32 v{t+3}, v{m}, 0
        v_and_b32 v{t}, 0xffff, v{t}
        v_or_b32 v{t}, v{t}, v{t+1}
        v_cndmask_b32 v{Q+8*j+6}, v{Q+8*j+6}, v{t}, s[62:63]
        v_cndmask_b32 v{Q+8*j+7}, v{Q+8*j+7}, v{t+3}, s[62:63]
        v_lshlrev_b32 v{t+3}, 16, v{t+3}
        v_add_f32 v{t+1}, v{t+1}, v{t+3}
        v_add_f32 v{CR+j}, v{t+4}, v{t+1}
        """)
    e("s_branch A_MAIN")

def helper_path(e):
    e(f"""
    HELPER:
    s_setprio {HPRIO}
    s_sub_u32 s3, s3, 4
    s_lshr_b32 s6, s3, 1
    s_and_b32 s7, s3, 1
    s_min_u32 s76, s2, 223
    s_or_b32 s65, s2, s3
    s_cmp_lg_u32 s65, 0
    s_cbranch_scc1 H_NON
    s_memrealtime s[66:67]
    s_waitcnt lgkmcnt(0)
    s_or_b32 s66, s66, 1
    v_mov_b32 v5, s66
    global_store_dword v3, v5, s[40:41] sc0 sc1
    H_NON:
    s_lshl_b32 s65, s76, 2
    s_load_dword s66, s[32:33], s65
    s_load_dword s67, s[34:35], s65
    s_lshl_b32 s65, s76, 10
    s_lshl_b32 s68, s3, 8
    s_add_u32 s65, s65, s68
    v_lshl_add_u32 v8, v1, 2, s65
    """)
    for i in range(6): e(f"global_load_dword v{96+i}, v8, s[{20+2*i}:{21+2*i}]")
    if CPF:
        e(f"""
        s_cmp_eq_u32 s3, 3
        s_cbranch_scc0 H_NCPF
        s_getpc_b64 s[84:85]
        H_PC:
        s_sub_u32 s84, s84, H_PC - {NAME}
        s_subb_u32 s85, s85, 0
        """)
        if CPF == 1:
            e(f"""
            s_lshr_b32 s65, s2, 3
            s_mul_i32 s65, s65, {6*128}
            v_lshl_add_u32 v9, v1, 7, s65
            v_min_u32 v9, CODE_END - {NAME} - 4, v9
            s_mov_b64 exec, 63
            global_load_dword v90, v9, s[84:85]
            s_mov_b64 exec, -1
            """)
        else:
            for i in range(3):
                e(f"""
                v_lshlrev_b32 v9, 7, v1
                v_add_u32 v9, {8192*i}, v9
                v_min_u32 v9, CODE_END - {NAME} - 4, v9
                global_load_dword v{90+i}, v9, s[84:85]
                """)
        e("H_NCPF:")
    e("s_barrier")
    srd(e, 48, 16, 448 * 896)
    if 'noH' in ABL:
        signal(e, C7)
        e("@T 2\ns_barrier\n@E 0\ns_endpgm")
    e(f"""
    s_mul_i32 s77, s3, {KGS}
    s_mov_b32 m0, s77
    v_and_b32 v9, 15, v1
    v_lshrrev_b32 v10, 4, v1
    v_mul_u32_u24 v11, 288, v9
    v_lshl_add_u32 v11, v10, 4, v11
    v_add_u32 v11, s77, v11
    v_mul_u32_u24 v12, 1088, v10
    v_lshl_add_u32 v12, v9, 2, v12
    v_add_u32 v12, s77, v12
    s_lshl_b32 s68, s6, 4
    s_lshl_b32 s78, s6, 2
    v_mov_b32 v6, s78
    @S 1
    s_waitcnt lgkmcnt(0)
    s_lshr_b32 s66, s66, s68
    s_lshl_b32 s66, s66, 16
    s_lshr_b32 s67, s67, s68
    s_lshl_b32 s67, s67, 16
    v_mov_b32 v13, s66
    v_mul_f32 v13, {f2u(LOG2E)}, v13
    v_exp_f32 v13, v13
    s_nop 0
    v_cvt_pk_bf16_f32 v13, v13, v13
    v_and_b32 v13, 0xffff0000, v13
    """)
    P1_, P8, P256, P32 = 14, 16, 18, 20
    Y = [22, 24, 26, 28]
    X0, X2, X4, X6, XC = 30, 32, 34, 36, 38
    T0, T1 = 40, 42
    C = 44
    YF, XF, D = 48, 80, 112
    PR = 2
    for i in range(16): e(f"v_mov_b32 v{D+i}, 0")
    e("s_waitcnt vmcnt(0)\n@S 2")
    for i in range(6): e(f"v_and_b32 v{102+i}, 0xffff0000, v{96+i}")
    for i in range(6): e(f"v_accvgpr_write_b32 a{i}, v{102+i}")
    for i in range(6): e(f"v_lshlrev_b32 v{96+i}, 16, v{96+i}")
    e(f"s_mov_b32 s79, {1 if 'half' in ABL else 2}\nH_UNIT:")
    AR, AI, BR, BI, CRE, CIM = 96, 97, 98, 99, 100, 101
    e(f"""
    v_mul_f32 v{AR}, v13, v{AR}
    v_mul_f32 v{AI}, v13, v{AI}
    v_mul_f32 v{AR}, {f2u(LOG2E)}, v{AR}
    v_mul_f32 v{AI}, 0.15915494, v{AI}
    v_mul_f32 v{BR}, v13, v{BR}
    v_mul_f32 v{BI}, v13, v{BI}
    """)
    def anchor(dst, l, t):
        if l == 1:
            e(f"v_fract_f32 v{t+1}, v{AI}\nv_exp_f32 v{t}, v{AR}")
        else:
            e(f"v_mul_f32 v{t+1}, {f2u(float(l))}, v{AI}\nv_mul_f32 v{t}, {f2u(float(l))}, v{AR}\nv_fract_f32 v{t+1}, v{t+1}\nv_exp_f32 v{t}, v{t}")
        e(f"v_cos_f32 v{dst}, v{t+1}\nv_sin_f32 v{dst+1}, v{t+1}\ns_nop 0")
        e(f"v_pk_mul_f32 {vr(dst,2)}, {vr(dst,2)}, {vr(t,2)} op_sel:[0,0] op_sel_hi:[1,0]")
    anchor(P8, 8, T0)
    anchor(P1_, 1, T1)
    anchor(P256, 256, T0)
    cmul(e, X0, CRE, BR, T1)
    e(f"v_xor_b32 v{X0+1}, 0x80000000, v{X0+1}")
    cnt = [0]
    def put(src, row):
        c = C + (cnt[0] % 4); cnt[0] += 1
        e(f"v_cvt_pk_bf16_f32 v{c}, v{src}, v{src+1}")
        e(f"ds_write_addtid_b32 v{c} offset:{row*288}")
    tt = [0]
    def mul(z, x, y, conj=False):
        t = (T0, T1)[tt[0] % 2]; tt[0] += 1
        cmul(e, z, x, y, t, conj)
    def frags(dst):
        for ks in range(4): e(f"ds_read_b128 {vr(dst+4*ks,4)}, v11 offset:{64*ks}")
    e(f"v_mov_b32 v{C+3}, 0x3f80\nds_write_addtid_b32 v{C+3} offset:0")
    put(P8, 1)
    mul(Y[2], P8, P8); put(Y[2], 2)
    mul(Y[3], Y[2], P8); mul(P32, Y[2], Y[2]); put(Y[3], 3); put(P32, 4)
    mul(Y[1], P8, P32); put(Y[1], 5)
    mul(Y[2], Y[2], P32); put(Y[2], 6)
    mul(Y[3], Y[3], P32); put(Y[3], 7)
    mul(Y[0], P32, P32); put(Y[0], 8)
    for c in range(9, 32):
        if c == 16: frags(YF)
        mul(Y[c % 4], Y[c % 4], P32); put(Y[c % 4], c % 16)
    frags(YF + 16)
    put(X0, 4)
    mul(XC, X0, P1_, True); put(XC, 5)
    mul(X2, XC, P1_, True); put(X2, 6)
    mul(XC, X2, P1_, True); put(XC, 7)
    mul(X4, XC, P1_, True); put(X4, 8)
    mul(XC, X4, P1_, True); put(XC, 9)
    mul(X6, XC, P1_, True); put(X6, 10)
    mul(XC, X6, P1_, True); put(XC, 11)
    mul(X0, X0, P256, True); put(X0, 0)
    mul(X2, X2, P256, True); put(X2, 12)
    mul(X4, X4, P256, True); put(X4, 13)
    mul(X6, X6, P256, True); put(X6, 14)
    mul(X0, X0, P256, True); put(X0, 1)
    mul(X4, X4, P256, True); put(X4, 15)
    mul(X0, X0, P256, True); put(X0, 2)
    mul(X4, X4, P256, True)
    mul(X0, X0, P256, True); put(X0, 3)
    frags(XF)
    put(X4, 12)
    for r in range(4):
        mul(X0, X0, P256, True); put(X0, r)
    frags(XF + 16)
    e("s_waitcnt lgkmcnt(4)")
    def mm(rt, ct, ks):
        d = D + 4 * (2 * rt + ct)
        e(f"v_mfma_f32_16x16x32_bf16 {vr(d,4)}, {vr(XF+16*rt+4*ks,4)}, {vr(YF+16*ct+4*ks,4)}, {vr(d,4)}")
    for ks in range(4):
        for ct in range(2): mm(0, ct, ks)
    e("s_waitcnt lgkmcnt(0)")
    for ks in range(4):
        for ct in range(2): mm(1, ct, ks)
    for i in range(6): e(f"v_accvgpr_read_b32 v{96+i}, a{i}")
    e("s_sub_u32 s79, s79, 1\ns_cmp_lg_u32 s79, 0\ns_cbranch_scc1 H_UNIT")
    nonce_issue(e, 8)
    e(f"""
    s_lshr_b32 s65, s2, 3
    s_mul_i32 s65, s65, 12544
    s_lshl_b32 s68, s3, 12
    s_add_u32 s65, s65, s68
    v_lshlrev_b32 v9, 6, v1
    buffer_load_dword v7, v9, s[48:51], s65 offen
    """)
    for rt in range(2):
        for ct in range(2):
            for r in range(4):
                e(f"ds_write_b32 v12, v{D+4*(2*rt+ct)+r} offset:{(4*rt+r)*128+ct*64}")
    signal(e, P1, "v6")
    e("@S 3")
    if ABL == "kgen" or 'dmaonly' in ABL: e("@E 0\ns_endpgm")
    e(f"""
    s_mul_i32 s80, s76, 1171
    s_lshr_b32 s80, s80, 16
    s_mul_i32 s65, s80, 56
    s_sub_u32 s65, s76, s65
    s_lshr_b32 s65, s65, 5
    s_lshl_b32 s66, s80, 1
    s_add_u32 s65, s65, s66
    s_lshl_b32 s65, s65, 12
    s_add_u32 s81, s65, {FX}
    v_lshlrev_b32 v9, 6, v1
    s_mul_i32 s77, s6, {2*KGS}
    s_waitcnt vmcnt(0)
    """)
    nonce_check(e, 8)
    e("buffer_load_dword v10, v9, s[44:47], s81 offen sc1")
    wait(e, P1, 2, "v6")
    e(f"""
    s_lshl_b32 s65, s7, 6
    v_add_u32 v14, s65, v1
    v_lshlrev_b32 v15, 2, v14
    v_add_u32 v15, s77, v15
    ds_read2st64_b32 v[16:17], v15 offset0:{(512-128)//256} offset1:{(512-128)//256+18}
    """)
    e.l.pop()
    e(f"""
    v_add_u32 v18, 384, v15
    v_add_u32 v19, 388, v15
    ds_read2st64_b32 v[16:17], v18 offset0:0 offset1:18
    ds_read2st64_b32 v[20:21], v19 offset0:0 offset1:18
    v_and_b32 v22, 1, v1
    v_cmp_eq_u32 vcc, 1, v22
    s_cmp_eq_u32 s7, 0
    s_cbranch_scc1 H_T0
    v_subrev_u32 v18, 128, v15
    v_subrev_u32 v19, 124, v15
    v_add_u32 v22, {3648-256}, v15
    ds_read2st64_b32 v[24:25], v18 offset0:0 offset1:18
    ds_read2st64_b32 v[26:27], v19 offset0:0 offset1:18
    ds_read2st64_b32 v[28:29], v22 offset0:0 offset1:18
    s_waitcnt lgkmcnt(0)
    v_add_f32 v24, v24, v25
    v_add_f32 v26, v26, v27
    v_add_f32 v28, v28, v29
    v_cvt_pk_bf16_f32 v48, v26, v26
    v_cvt_pk_bf16_f32 v49, v28, v28
    v_cvt_pk_bf16_f32 v50, v28, v24
    v_cvt_pk_bf16_f32 v51, v24, v24
    v_mov_b32 v30, v51
    s_branch H_T2
    H_T0:
    v_and_b32 v18, 31, v1
    v_lshlrev_b32 v18, 2, v18
    v_add_u32 v18, s77, v18
    v_lshrrev_b32 v19, 5, v1
    """)
    A0 = [1088, 1216, 1344, 1472, 2176, 2304, 2432, 2560]
    A1 = [0, 0, 3264, 3392, 3392, 3392, 3520, 4]
    for j in range(8):
        e(f"""
        s_movk_i32 s65, {A1[j]-A0[j]}
        v_add_u32 v22, {A0[j]}, v18
        v_mad_i32_i24 v22, v19, s65, v22
        ds_read2st64_b32 {vr(32+2*j,2)}, v22 offset0:0 offset1:18
        """)
    e(f"""
    v_cmp_eq_u32 s[68:69], 0, v1
    v_mov_b32 v23, s67
    s_nop 0
    v_cndmask_b32 v23, 0, v23, s[68:69]
    s_waitcnt lgkmcnt(0)
    """)
    for j in range(8): e(f"v_add_f32 v{32+2*j}, v{32+2*j}, v{33+2*j}")
    e("v_add_f32 v32, v32, v23\nv_mov_b32 v30, 0")
    for i in range(4): e(f"v_cvt_pk_bf16_f32 v{48+i}, v{32+2*(7-2*i)}, v{32+2*(6-2*i)}")
    e(f"""
    s_nop 1
    v_mov_b32_dpp v30, v48 wave_shr:1 row_mask:0xf bank_mask:0xf
    H_T2:
    v_add_f32 v16, v16, v17
    v_add_f32 v20, v20, v21
    v_cndmask_b32 v24, v16, v20, vcc
    v_cvt_pk_bf16_f32 v56, v20, v20
    v_cvt_pk_bf16_f32 v57, v20, v24
    v_cvt_pk_bf16_f32 v58, v16, v16
    v_cvt_pk_bf16_f32 v59, v16, v16
    v_alignbit_b32 v52, v49, v48, 16
    v_alignbit_b32 v53, v50, v49, 16
    v_alignbit_b32 v54, v51, v50, 16
    v_alignbit_b32 v55, v30, v51, 16
    v_alignbit_b32 v60, v57, v56, 16
    v_alignbit_b32 v61, v58, v57, 16
    v_mov_b32 v62, v58
    v_mov_b32 v63, v58
    v_sub_u32 v14, 127, v14
    v_lshlrev_b32 v14, 4, v14
    s_mul_i32 s77, s6, {ECH}
    s_add_u32 s77, s77, {XB}
    v_add_u32 v14, s77, v14
    H_XPOLL:
    s_waitcnt vmcnt(0)
    v_cmp_ne_u32 vcc, s60, v10
    s_cbranch_vccz H_XOK
    s_sub_u32 s61, s61, 1
    s_cbranch_scc1 BAIL
    s_sleep 2
    buffer_load_dword v10, v9, s[44:47], s81 offen sc1
    s_branch H_XPOLL
    H_XOK:
    v_lshrrev_b32 v16, 2, v1
    v_and_b32 v17, 3, v1
    v_lshlrev_b32 v18, 7, v16
    v_lshl_add_u32 v18, v17, 4, v18
    s_lshl_b32 s65, s76, 13
    s_lshl_b32 s66, s7, 12
    s_add_u32 s65, s65, s66
    s_lshl_b32 s66, s6, 6
    s_add_u32 s65, s65, s66
    s_add_u32 s65, s65, {XT2}
    buffer_load_dwordx4 v[64:67], v18, s[44:47], s65 offen sc1
    buffer_load_dwordx4 v[68:71], v18, s[44:47], s65 offen offset:2048 sc1
    v_mul_u32_u24 v17, 1536, v17
    v_lshl_add_u32 v17, v16, 4, v17
    s_mul_i32 s82, s6, {UCH}
    s_add_u32 s82, s82, {UB}
    s_lshl_b32 s65, s7, 8
    s_add_u32 s65, s65, s82
    v_add_u32 v19, s65, v17
    s_lshl_b32 s65, s7, 9
    s_add_u32 s65, s65, s82
    v_add_u32 v17, s65, v17
    v_mov_b32 v72, 0
    v_mov_b32 v73, 0
    v_mov_b32 v74, 0
    v_mov_b32 v75, 0
    s_mul_i32 s65, s7, {OOF}
    s_add_u32 s65, s65, s77
    v_add_u32 v20, s65, v2
    """)
    wait(e, XF_, 4)
    e(f"""
    ds_write_b128 v14, v[56:59]
    ds_write_b128 v14, v[60:63] offset:{OOF}
    ds_write_b128 v14, v[48:51] offset:2048
    ds_write_b128 v14, v[52:55] offset:{2048+OOF}
    ds_write_b128 v19, v[72:75]
    s_mov_b64 exec, 15
    ds_write_b128 v20, v[72:75] offset:4096
    s_mov_b64 exec, -1
    s_waitcnt vmcnt(0)
    ds_write_b128 v17, v[64:67] offset:512
    ds_write_b128 v17, v[68:71] offset:768
    """)
    signal(e, P2, "v6")
    wdma_voff(e, 7)
    e(f"""
    v_and_b32 v21, 31, v1
    v_lshrrev_b32 v22, 5, v1
    v_lshlrev_b32 v8, 3, v22
    v_sub_u32 v8, v8, v21
    v_add_u32 v8, 2047, v8
    v_and_b32 v9, 1, v8
    v_lshrrev_b32 v8, 1, v8
    v_mul_u32_u24 v9, {OOF}, v9
    v_lshl_add_u32 v8, v8, 2, v9
    s_lshl_b32 s65, s7, 10
    s_sub_u32 s65, s77, s65
    v_add_u32 v14, s65, v8
    v_subrev_u32 v15, 2048, v14
    v_mul_u32_u24 v8, 1536, v22
    v_lshl_add_u32 v8, v21, 4, v8
    s_lshl_b32 s65, s7, 8
    s_sub_u32 s65, s82, s65
    s_add_u32 s65, s65, 512
    v_add_u32 v16, s65, v8
    s_lshl_b32 s65, s3, 10
    s_add_u32 s69, s65, {WB}
    s_mul_i32 s68, s3, 3584
    s_mul_i32 s66, s5, 224
    s_add_u32 s68, s68, s66
    """)
    AC, CF = 64, (32, 48)
    for i in range(32): e(f"v_mov_b32 v{AC+i}, 0")
    wait(e, P2, 2, "v6")
    e("@S 4")
    def cread(h):
        c = CF[h]
        return [f"ds_read2_b32 {vr(c,2)}, v14 offset0:{8*h} offset1:{8*h+1}", f"ds_read2_b32 {vr(c+2,2)}, v14 offset0:{8*h+2} offset1:{8*h+3}",
                f"ds_read_b128 {vr(c+8,4)}, v16 offset:{3072*h}",
                f"ds_read2_b32 {vr(c+4,2)}, v15 offset0:{8*h} offset1:{8*h+1}", f"ds_read2_b32 {vr(c+6,2)}, v15 offset0:{8*h+2} offset1:{8*h+3}",
                f"ds_read_b128 {vr(c+12,4)}, v16 offset:{3072*h+512}"]
    def cm(h):
        c = CF[h]
        return [f"v_mfma_f32_32x32x16_bf16 {vr(AC,16)}, {vr(c,4)}, {vr(c+8,4)}, {vr(AC,16)}",
                f"v_mfma_f32_32x32x16_bf16 {vr(AC+16,16)}, {vr(c+4,4)}, {vr(c+8,4)}, {vr(AC+16,16)}",
                f"v_mfma_f32_32x32x16_bf16 {vr(AC+16,16)}, {vr(c,4)}, {vr(c+12,4)}, {vr(AC+16,16)}"]
    for r in cread(0): e(r)
    e(f"s_mov_b32 s79, {1 if 'noconv' in ABL else 16}\nH_CONV:")
    for r in cread(1): e(r)
    e(f"""
    v_subrev_u32 v14, 64, v14
    v_subrev_u32 v15, 64, v15
    v_subrev_u32 v16, 16, v16
    s_waitcnt lgkmcnt(6)
    """)
    for m in cm(0): e(m)
    for r in cread(0): e(r)
    e("s_waitcnt lgkmcnt(6)")
    for m in cm(1): e(m)
    e(f"""
    s_sub_u32 s79, s79, 1
    s_cmp_lg_u32 s79, 0
    s_cbranch_scc1 H_CONV
    s_mul_i32 s65, s3, {KGS}
    v_add_u32 v8, s65, v2
    s_xor_b32 s65, s3, 1
    s_mul_i32 s65, s65, {KGS}
    v_add_u32 v9, s65, v2
    s_waitcnt lgkmcnt(0)
    s_nop 7
    s_cmp_eq_u32 s7, 0
    s_cbranch_scc1 H_C0
    """)
    for i in range(4): e(f"ds_write_b128 v8, {vr(AC+4*i,4)} offset:{1024*i}")
    for i in range(16): e(f"v_mov_b32 v{AC+i}, v{AC+16+i}")
    e("s_branch H_C1\nH_C0:")
    for i in range(4): e(f"ds_write_b128 v8, {vr(AC+16+4*i,4)} offset:{1024*i}")
    e("H_C1:")
    signal(e, P3, "v6")
    DMA2 = """
    s_mov_b32 m0, s69
    s_add_u32 s69, s69, 4096
    buffer_load_dwordx4 v7, s[48:51], s68 offen lds
    s_mov_b32 m0, s69
    s_add_u32 s68, s68, 14336
    s_add_u32 s69, s69, 4096
    buffer_load_dwordx4 v7, s[48:51], s68 offen lds
    s_add_u32 s68, s68, 14336
    """
    wait(e, C5, 4, sleep=2)
    e(DMA2); e(DMA2)
    wait(e, P3, 2, "v6", sleep=2)
    for i in range(4): e(f"ds_read_b128 {vr(32+4*i,4)}, v9 offset:{1024*i}")
    e(f"""
    v_mul_u32_u24 v8, 28672, v21
    v_lshl_add_u32 v8, v22, 4, v8
    s_lshl_b32 s65, s76, 1
    s_add_u32 s65, s65, s6
    s_lshl_b32 s65, s65, 6
    s_mul_i32 s66, s7, {32*28672}
    s_add_u32 s65, s65, s66
    s_add_u32 s65, s65, {BT2}
    s_mov_b32 s75, 0xfffffffe
    s_waitcnt lgkmcnt(0)
    """)
    for i in range(16): e(f"v_add_f32 v{AC+i}, v{AC+i}, v{32+i}")
    for i in range(8): e(f"v_cvt_pk_bf16_f32 v{32+i}, v{AC+2*i}, v{AC+2*i+1}")
    for i in range(8): e(f"v_min_u32 v{32+i}, s75, v{32+i}")
    e(f"""
    s_cmp_ge_u32 s2, 224
    v_permlane32_swap_b32 v32, v34
    v_permlane32_swap_b32 v33, v35
    v_permlane32_swap_b32 v36, v38
    v_permlane32_swap_b32 v37, v39
    s_cbranch_scc1 H_NOBT
    buffer_store_dwordx4 v[32:35], v8, s[44:47], s65 offen sc1
    buffer_store_dwordx4 v[36:39], v8, s[44:47], s65 offen offset:32 sc1
    H_NOBT:
    @S 5
    s_mov_b32 s79, {1 if 'nowo' in ABL else 12}
    H_WO:
    s_waitcnt vmcnt(2)
    {DMA2}
    s_sub_u32 s79, s79, 1
    s_cmp_lg_u32 s79, 0
    s_cbranch_scc1 H_WO
    v_bfe_u32 v8, v1, 2, 2
    v_lshl_add_u32 v9, v22, 2, v8
    v_lshlrev_b32 v9, 8, v9
    v_bfe_u32 v10, v1, 4, 1
    v_lshlrev_b32 v10, 5, v10
    v_and_b32 v11, 3, v1
    v_lshl_add_u32 v10, v11, 3, v10
    s_lshl_b32 s65, s3, 6
    v_add_u32 v10, s65, v10
    v_lshlrev_b32 v8, 6, v8
    v_xor_b32 v10, v10, v8
    v_add_u32 v9, v9, v10
    """)
    for d in range(4):
        e(f"s_add_u32 s65, s5, {d}\ns_and_b32 s65, s65, 3\ns_mul_i32 s65, s65, 28672\ns_add_u32 s65, s65, {WB}\nv_add_u32 v{24+d}, s65, v9")
    e("s_waitcnt vmcnt(0)")
    signal(e, C6)
    wait(e, C6, 4, sleep=2)
    for h in range(16):
        for s in range(2):
            for i in range(2):
                e(f"ds_read_b64_tr_b16 {ar(8*h+4*s+2*i,2)}, v{24 + h//4} offset:{7168*(h%4)+4096*s+2048*i}")
    ID, BF, YA, OA = 40, 48, 64, 80
    e(f"""
    v_and_b32 v8, 1, v21
    v_lshlrev_b32 v8, 4, v8
    v_mov_b32 v9, 0x3f80
    v_lshlrev_b32 v9, v8, v9
    v_lshrrev_b32 v10, 1, v21
    v_lshlrev_b32 v11, 2, v22
    v_sub_u32 v10, v10, v11
    """)
    for s in range(2):
        for w in range(4):
            e(f"v_cmp_eq_u32 vcc, {8*s+w}, v10\ns_nop 1\nv_cndmask_b32 v{ID+4*s+w}, 0, v9, vcc")
    e(f"""
    v_lshlrev_b32 v8, 6, v21
    v_lshl_add_u32 v8, v22, 4, v8
    s_mul_i32 s65, s4, 28672
    s_mul_i32 s66, s5, 7168
    s_add_u32 s65, s65, s66
    s_lshl_b32 s66, s3, 11
    s_add_u32 s65, s65, s66
    s_add_u32 s65, s65, {BT2}
    v_mul_u32_u24 v12, 896, v21
    v_lshl_add_u32 v12, v22, 4, v12
    s_mul_i32 s66, s4, {32*896}
    s_mul_i32 s67, s5, 224
    s_add_u32 s66, s66, s67
    s_lshl_b32 s67, s3, 6
    s_add_u32 s66, s66, s67
    v_lshlrev_b32 v13, 2, v21
    v_add_u32 v14, {STG}, v2
    s_cmp_eq_u32 s3, 3
    s_cselect_b32 s70, 0xffff, -1
    s_mov_b32 s71, s70
    s_waitcnt lgkmcnt(0)
    """)
    signal(e, C7)
    srd(e, 48, 38, 2048 * 896)
    e(f"""
    ds_read_b32 v15, v13 offset:{GOF}
    @S 6
    @T 1
    H_YPOLL:
    buffer_load_dwordx4 {vr(BF,4)}, v8, s[44:47], s65 offen sc1
    buffer_load_dwordx4 {vr(BF+4,4)}, v8, s[44:47], s65 offen offset:32 sc1
    s_waitcnt vmcnt(0)
    v_max3_u32 v16, v{BF}, v{BF+1}, v{BF+2}
    v_max3_u32 v16, v16, v{BF+3}, v{BF+4}
    v_max3_u32 v16, v16, v{BF+5}, v{BF+6}
    v_max_u32 v16, v16, v{BF+7}
    v_cmp_eq_u32 vcc, -1, v16
    s_and_b64 vcc, vcc, s[70:71]
    s_cbranch_vccz H_YOK
    s_sub_u32 s61, s61, 1
    s_cbranch_scc1 BAIL
    s_sleep 8
    s_branch H_YPOLL
    H_YOK:
    v_mfma_f32_32x32x16_bf16 {vr(YA,16)}, {vr(BF,4)}, {vr(ID,4)}, 0
    v_mfma_f32_32x32x16_bf16 {vr(YA,16)}, {vr(BF+4,4)}, {vr(ID+4,4)}, {vr(YA,16)}
    s_waitcnt lgkmcnt(0)
    v_sub_f32 v16, 1.0, v15
    s_nop 10
    """)
    for i in range(16): e(f"v_mul_f32 v{YA+i}, v16, v{YA+i}")
    e("@T 2\ns_setprio 3\ns_barrier\n@T 3")
    FB = 96
    def block(d):
        for s in range(8): e(f"ds_read_b128 {vr(FB+4*s,4)}, v14 offset:{8192*d+1024*s}")
        for s in range(8):
            e(f"s_waitcnt lgkmcnt({7-s})")
            o = (OA, 32, 48, OA)[d]
            e(f"v_mfma_f32_32x32x16_bf16 {vr(o,16)}, {ar(32*d+4*s,4)}, {vr(FB+4*s,4)}, " + ("0" if s == 0 else vr(o,16)))
    wait(e, G0, 4)
    block(0)
    e("s_nop 11")
    for i in range(16): e(f"v_fmac_f32 v{YA+i}, v15, v{OA+i}")
    e(f"""
    @T 4
    s_mov_b32 s73, 14
    H_PICK:
    ds_read_b128 v[20:23], v3 offset:{G0}
    s_waitcnt lgkmcnt(0)
    v_readfirstlane_b32 s76, v21
    v_readfirstlane_b32 s77, v22
    v_readfirstlane_b32 s78, v23
    """)
    for d in range(1, 4):
        e(f"""
        s_bitcmp0_b32 s73, {d}
        s_cbranch_scc1 H_PN{d}
        s_cmp_ge_u32 s{75+d}, 4
        s_cbranch_scc1 H_B{d}
        H_PN{d}:
        """)
    e("""
    s_sub_u32 s61, s61, 1
    s_cbranch_scc1 BAIL
    s_sleep 1
    s_branch H_PICK
    """)
    for d in range(1, 4):
        e(f"H_B{d}:")
        block(d)
        e(f"s_bitset0_b32 s73, {d}\ns_cmp_lg_u32 s73, 0\ns_cbranch_scc1 H_PICK")
        if d < 3: e("s_branch H_FIN")
    e("H_FIN:\n@T 5")
    e("s_nop 10")
    for i in range(16): e(f"v_add_f32 v{32+i}, v{32+i}, v{48+i}")
    for i in range(16): e(f"v_add_f32 v{32+i}, v{32+i}, v{OA+i}")
    for i in range(16): e(f"v_fmac_f32 v{YA+i}, v15, v{32+i}")
    for i in range(8): e(f"v_cvt_pk_bf16_f32 v{32+i}, v{YA+2*i}, v{YA+2*i+1}")
    e(f"""
    s_cmp_eq_u32 s3, 3
    s_nop 0
    v_permlane32_swap_b32 v32, v34
    v_permlane32_swap_b32 v33, v35
    v_permlane32_swap_b32 v36, v38
    v_permlane32_swap_b32 v37, v39
    buffer_store_dwordx4 v[32:35], v12, s[48:51], s66 offen
    s_cbranch_scc1 H_END
    buffer_store_dwordx4 v[36:39], v12, s[48:51], s66 offen offset:32
    H_END:
    @E 0
    BAIL:
    s_endpgm
    CODE_END:
    """)

def main(out):
    e = A()
    hdr = f"""; gated mix of MQA attention and an S4 convolution: one launch, workgroups hand data over through d_ws
; @launch grid=(256,1,1) block=(512,1,1) lds={LDS}
.amdgcn_target "amdgcn-amd-amdhsa--gfx950"
.text
"""
    prologue(e); attn_path(e); helper_path(e)
    tail = f""".section .rodata,"a"
.p2align 6
.amdhsa_kernel {NAME}
  .amdhsa_next_free_vgpr 256
  .amdhsa_next_free_sgpr 102
  .amdhsa_accum_offset 128
  .amdhsa_group_segment_fixed_size 0
  .amdhsa_kernarg_size 144
  .amdhsa_user_sgpr_count 2
  .amdhsa_user_sgpr_kernarg_segment_ptr 1
  .amdhsa_system_sgpr_workgroup_id_x 1
.end_amdhsa_kernel
"""
    open(out, "w").write(hdr + e.text() + tail)

if __name__ == "__main__":
    main(sys.argv[1] if len(sys.argv) > 1 else "f2.s")
```

```python
import math, struct, sys, os

def f2u(x): return struct.unpack("<I", struct.pack("<f", x))[0]
LOG2E = 1.4426950408889634
QSCALE = (28 ** -0.5) * LOG2E
NAME = "gated_mix__grouped_kv_mqa__ssm_conv_s4__prompt_kernel"

KVF = 0x000000
FLG = 0x040000
FX  = 0x044000
XT2 = 0x080000
OX  = 0x280000
BT2 = 0x480000
WSZ = 0x640000
KGS = 4608
SY = 18432
XB = 18944
WB = 48128
WEND = WB + 448 * 256
LDS = 163840
IMG = WB + 336 * 256
ECH, OOF, UB, UCH = 8384, 4224, XB + 16768, 6144
C1, CA, C3, C4, C5, KVD, P1, P2, P3, C6, C7, CI, XF_, CB, G0, GOF = [SY + x for x in (0, 4, 8, 12, 16, 20, 24, 32, 40, 48, 52, 56, 60, 64, 80, 128)]
CX = WB + 49152
STG = WB + 53248
SAFE_BOUND = 80.0
SHIFT = 64.0

BUDGET = int(os.environ.get("BUDGET", "0x8000"), 0)
ABL = os.environ.get("ABL", "")
NPRE = int(os.environ.get("NPRE", "8"))
PREF = int(os.environ.get("PREF", "1"))
PSH = int(os.environ.get("PSH", "7"))
HPRIO = int(os.environ.get("HPRIO", "1"))
LPRIO = int(os.environ.get("LPRIO", "0"))
ROT = int(os.environ.get("ROT", "1"))
APRIO = int(os.environ.get("APRIO", "3"))
CPF = int(os.environ.get("CPF", "0"))
STAMP = int(os.environ.get("STAMP", "0"))
TSB = 0x1000000
def stamp(e, i):
    if STAMP: e(f"s_memrealtime s[{100-2*i}:{101-2*i}]\ns_waitcnt lgkmcnt(0)")
def stamp_end(e, kidx):
    if not STAMP: return
    e(f"""
    s_waitcnt vmcnt(0)
    s_memrealtime s[86:87]
    s_load_dwordx2 s[84:85], s[0:1], 136
    s_mov_b64 exec, 1
    v_lshrrev_b32 v2, 6, v0
    s_lshl_b32 s83, s2, 4
    v_add_u32 v2, s83, v2
    v_lshlrev_b32 v2, 6, v2
    v_add_u32 v2, {TSB + kidx*0x100000}, v2
    s_waitcnt lgkmcnt(0)
    """)
    for i in range(16): e(f"v_mov_b32 v{4+i}, s{86+i}")
    for i in range(4): e(f"global_store_dwordx4 v2, v[{4+4*i}:{7+4*i}], s[84:85] offset:{16*i}")

class A:
    def __init__(self): self.l = []; self.n = 0
    def __call__(self, s=""):
        for line in s.split("\n"):
            line = line.strip()
            if not line: continue
            if line.startswith("@S "):
                if STAMP == 1 or line == "@S 0": stamp(self, int(line[3:]))
                continue
            if line.startswith("@T "):
                if STAMP == 2: stamp(self, int(line[3:]))
                continue
            if line.startswith("@E "): stamp_end(self, int(line[3:])); continue
            if line.endswith(":") or line.startswith("."): self.l.append(line)
            else: self.l.append("    " + line)
    def lab(self, p="L"):
        self.n += 1; return f"{p}{self.n}"
    def text(self): return "\n".join(self.l) + "\n"

def vr(a, n): return f"v[{a}:{a+n-1}]"
def ar(a, n): return f"a[{a}:{a+n-1}]"
def sr(a, n): return f"s[{a}:{a+n-1}]"
def srd(e, d, base, nbytes):
    e(f"s_mov_b32 s{d}, s{base}\ns_mov_b32 s{d+1}, s{base+1}\ns_mov_b32 s{d+2}, {nbytes}\ns_mov_b32 s{d+3}, 0x00020000")

def signal(e, off, addr="v3", restore="s_mov_b64 exec, -1"):
    e(f"s_mov_b64 exec, 1\nds_add_u32 {addr}, v4 offset:{off}\n{restore}")
def wait(e, off, n, addr="v3", sleep=1):
    l = e.lab("W"); d = e.lab("D")
    e(f"""
    {l}:
    ds_read_b32 v5, {addr} offset:{off}
    s_waitcnt lgkmcnt(0)
    v_readfirstlane_b32 s64, v5
    s_cmp_ge_u32 s64, {n}
    s_cbranch_scc1 {d}
    s_sub_u32 s61, s61, 1
    s_cbranch_scc1 BAIL
    s_sleep {sleep}
    s_branch {l}
    {d}:
    """)
def nonce_issue(e, v): e(f"global_load_dword v{v}, v3, s[40:41] sc1")
def nonce_check(e, v):
    l = e.lab("N"); d = e.lab("D")
    e(f"""
    {l}:
    v_readfirstlane_b32 s60, v{v}
    s_cmp_lg_u32 s60, 0
    s_cbranch_scc1 {d}
    s_sub_u32 s61, s61, 1
    s_cbranch_scc1 BAIL
    global_load_dword v{v}, v3, s[40:41] sc1
    s_waitcnt vmcnt(0)
    s_branch {l}
    {d}:
    """)

def gemm_loop(e, nsteps, reads, mfma, depth, nper):
    for s in range(min(depth, nsteps)):
        for r in reads(s): e(r)
    for s in range(nsteps):
        if s + depth < nsteps:
            for r in reads(s + depth): e(r)
            out = depth * nper
        else:
            out = (nsteps - 1 - s) * nper
        e(f"s_waitcnt lgkmcnt({out})")
        e(mfma(s))

def cmul(e, z, x, y, t, conj=False):
    e(f"v_pk_mul_f32 {vr(t,2)}, {vr(x,2)}, {vr(y,2)} op_sel:[0,0] op_sel_hi:[1,0]")
    neg = "neg_hi:[1,0,0]" if conj else "neg_lo:[1,0,0]"
    e(f"v_pk_fma_f32 {vr(z,2)}, {vr(x,2)}, {vr(y,2)}, {vr(t,2)} op_sel:[1,1,0] op_sel_hi:[0,1,1] {neg}")

def wdma_voff(e, v):
    e(f"""
    v_lshrrev_b32 v8, 4, v1
    v_and_b32 v9, 15, v1
    v_lshlrev_b32 v10, 2, v8
    v_xor_b32 v9, v9, v10
    v_mul_u32_u24 v8, 896, v8
    v_lshl_add_u32 v{v}, v9, 4, v8
    """)

def prologue(e):
    e(f"""
    .globl {NAME}
    .p2align 8
    .type {NAME},@function
    {NAME}:
    s_cmp_ge_u32 s2, 256
    s_cbranch_scc1 BAIL
    """)
    if CPF >= 3:
        e(f"""
        s_getpc_b64 s[84:85]
        v_lshlrev_b32 v2, {7 if CPF == 3 else 6}, v0
        v_min_u32 v2, CODE_END - {NAME} - 64, v2
        global_load_dword v79, v2, s[84:85]
        """)
    e(f"""
    @S 0
    s_load_dwordx16 s[8:23], s[0:1], 0
    s_load_dwordx16 s[24:39], s[0:1], 64
    s_load_dwordx4 s[40:43], s[0:1], 128
    v_lshrrev_b32 v2, 6, v0
    v_and_b32 v1, 63, v0
    v_readfirstlane_b32 s3, v2
    v_lshlrev_b32 v2, 4, v1
    v_mov_b32 v3, 0
    v_mov_b32 v4, 1
    s_and_b32 s4, s2, 7
    s_lshl_b32 s4, s4, 3
    s_bfe_u32 s5, s2, 0x30003
    s_add_u32 s4, s4, s5
    s_lshr_b32 s5, s2, 6
    s_mov_b32 s61, {BUDGET}
    s_mov_b32 s62, 0
    s_mov_b32 s63, -1
    s_cmp_lg_u32 s3, 0
    s_cbranch_scc1 NOZERO
    v_mov_b32 v8, 0
    v_mov_b32 v9, 0
    v_mov_b32 v10, 0
    v_mov_b32 v11, 0
    v_lshlrev_b32 v6, 3, v1
    v_add_u32 v7, {WEND}, v2
    ds_write_b64 v6, v[8:9] offset:{SY}
    ds_write_b128 v7, v[8:11]
    NOZERO:
    s_waitcnt lgkmcnt(0)
    """)
    srd(e, 44, 42, WSZ)
    e("s_cmp_ge_u32 s3, 4\ns_cbranch_scc1 HELPER")

class Lds:
    def __init__(self, e): self.e = e; self.n = 0; self.mark = {}
    def op(self, text, tag=None):
        self.e(text); self.n += 1
        if tag is not None: self.mark[tag] = self.n
    def wait(self, tag):
        self.e(f"s_waitcnt lgkmcnt({min(15, self.n - self.mark[tag])})")

def xfrag(s): return ar(64 + 4*s, 4) if s < 16 else vr(80 + 4*(s-16), 4)
def xfrag_addr(e, v):
    e(f"""
    v_lshrrev_b32 v12, 5, v1
    v_and_b32 v13, 31, v1
    v_mul_u32_u24 v14, 912, v13
    v_lshl_add_u32 v14, v12, 4, v14
    v_add_u32 v{v}, {XB}, v14
    """)
def xfrag_reads(e, v):
    if 'noxf' in ABL: return
    for s in range(28): e(f"ds_read_b128 {xfrag(s)}, v{v} offset:{32*s}")

def attn_path(e):
    Q, S, P, KV, CR = 16, (48, 64), (80, 88), (96, 112), 8
    e(f"s_setprio {APRIO}")
    if PREF:
        e(f"""
        s_lshr_b32 s64, s2, 3
        v_lshlrev_b32 v8, {PSH}, v1
        s_mov_b32 s55, 0x00020000
        s_cmp_lg_u32 s3, 0
        s_cbranch_scc1 A_P1
        s_mov_b32 s52, s8
        s_mov_b32 s53, s9
        s_lshl_b32 s65, s4, 2
        s_add_u32 s65, s65, s5
        s_mul_i32 s65, s65, 7168
        s_add_u32 s54, s65, 7168
        s_branch A_PGO
        A_P1:
        s_cmp_eq_u32 s3, 3
        s_cbranch_scc1 A_P3
        s_mov_b32 s52, s10
        s_mov_b32 s53, s11
        s_mul_i32 s65, s64, 12544
        s_add_u32 s54, s65, 12544
        s_cmp_eq_u32 s3, 1
        s_cselect_b32 s66, 0, 6272
        s_cselect_b32 s67, 6272, 0
        s_add_u32 s65, s65, s66
        s_sub_u32 s54, s54, s67
        s_branch A_PGO
        A_P3:
        s_cmp_lt_u32 s64, 16
        s_cselect_b32 s52, s12, s14
        s_cselect_b32 s53, s13, s15
        s_and_b32 s65, s64, 15
        s_mul_i32 s65, s65, 1664
        s_add_u32 s54, s65, 1664
        s_min_u32 s54, s54, {448*56}
        A_PGO:
        buffer_load_dword v100, v8, s[52:55], s65 offen
        """)
        if PSH == 6: e("v_add_u32 v8, 4096, v8\nbuffer_load_dword v100, v8, s[52:55], s65 offen")
    e("s_barrier")
    srd(e, 48, 8, 2048 * 896)
    e(f"""
    s_mul_i32 s64, s3, {8*912}
    s_add_u32 m0, s64, {XB}
    s_lshl_b32 s65, s4, 5
    s_lshl_b32 s66, s3, 3
    s_add_u32 s65, s65, s66
    s_mul_i32 s65, s65, 896
    s_mov_b32 exec_hi, 0x00ffffff
    """)
    for i in range(8):
        e("buffer_load_dwordx4 v2, s[48:51], s65 offen lds")
        if i < 7: e("s_add_u32 m0, m0, 912\ns_add_u32 s65, s65, 896")
    e(f"""
    s_mov_b32 exec_hi, -1
    s_cmp_ge_u32 s5, 2
    s_cbranch_scc1 A_NOIMG
    s_cmp_eq_u32 s5, 0
    s_cselect_b32 s52, s12, s14
    s_cselect_b32 s53, s13, s15
    s_mov_b32 s54, {448*56}
    s_mov_b32 s55, 0x00020000
    s_mul_i32 s65, s3, {7*1024}
    s_add_u32 m0, s65, {IMG}
    s_nop 0
    """)
    for i in range(7):
        e("buffer_load_dwordx4 v2, s[52:55], s65 offen lds")
        if i < 6: e("s_add_u32 m0, m0, 1024\ns_add_u32 s65, s65, 1024")
    e("A_NOIMG:\n@S 1")
    if ABL == "kgen": e("@E 0\ns_endpgm")
    if 'dmaonly' in ABL: e("s_cmp_lt_u32 s3, 2\ns_cbranch_scc1 BAIL")
    e("s_cmp_ge_u32 s3, 2\ns_cbranch_scc1 A_DMAW")
    srd(e, 56, 36, 896)
    GW = 12
    e(f"""
    buffer_load_dwordx4 {vr(GW,4)}, v2, s[56:59], 0 offen
    v_mov_b32 v8, -1
    v_mov_b32 v9, -1
    v_mov_b32 v10, -1
    v_mov_b32 v11, -1
    s_mul_i32 s65, s4, 28672
    s_mul_i32 s66, s5, 7168
    s_add_u32 s65, s65, s66
    s_lshl_b32 s66, s3, 12
    s_add_u32 s65, s65, s66
    s_add_u32 s65, s65, {BT2}
    s_lshl_b32 s67, s3, 10
    s_sub_u32 s67, s65, s67
    buffer_store_dwordx4 v[8:11], v2, s[44:47], s65 offen sc1
    buffer_store_dwordx4 v[8:11], v2, s[44:47], s65 offen offset:1024 sc1
    buffer_store_dwordx4 v[8:11], v2, s[44:47], s65 offen offset:2048 sc1
    buffer_store_dwordx4 v[8:11], v2, s[44:47], s67 offen offset:3072 sc1
    s_lshl_b32 s65, s4, 2
    s_add_u32 s65, s65, s5
    s_lshl_b32 s65, s65, 13
    s_add_u32 s65, s65, s66
    s_add_u32 s65, s65, {OX}
    """)
    for i in range(4): e(f"buffer_store_dwordx4 v[8:11], v2, s[44:47], s65 offen offset:{1024*i} sc1")
    XA, WA, XT = 6, 7, 60
    e(f"""
    v_and_b32 v16, 15, v1
    v_lshrrev_b32 v17, 4, v1
    s_lshl_b32 s65, s3, 4
    v_add_u32 v18, s65, v16
    v_mul_u32_u24 v18, 912, v18
    v_lshl_add_u32 v18, v17, 4, v18
    v_add_u32 v{XA}, {XB}, v18
    v_bfe_u32 v18, v1, 2, 2
    v_lshl_add_u32 v18, v17, 3, v18
    v_and_b32 v19, 3, v1
    v_lshlrev_b32 v19, 3, v19
    v_mad_u32_u24 v20, v18, 56, v19
    v_add_u32 v{WA}, {IMG}, v20
    v_mul_u32_u24 v18, 912, v18
    v_add_u32 v10, v18, v19
    s_mul_i32 s65, s5, 224
    s_lshl_b32 s66, s3, 7
    s_add_u32 s65, s65, s66
    s_add_u32 s65, s65, {XB}
    v_add_u32 v10, s65, v10
    v_and_b32 v18, 1, v17
    v_lshl_add_u32 v18, v18, 5, v16
    v_lshlrev_b32 v18, 4, v18
    v_lshrrev_b32 v19, 5, v1
    s_cmp_eq_u32 s5, 0
    s_cselect_b32 s65, 10, 8
    v_lshlrev_b32 v19, s65, v19
    v_add_u32 v9, v18, v19
    v_lshrrev_b32 v18, 1, v16
    v_lshlrev_b32 v18, 13, v18
    v_and_b32 v19, 1, v1
    v_lshl_add_u32 v18, v19, 6, v18
    v_lshl_add_u32 v11, v17, 4, v18
    v_lshrrev_b32 v18, 5, v1
    v_and_b32 v19, 31, v1
    v_mul_u32_u24 v19, 912, v19
    v_lshl_add_u32 v19, v18, 4, v19
    v_add_u32 v8, {XB}, v19
    s_mul_i32 s65, s5, 56
    s_lshl_b32 s66, s3, 5
    s_add_u32 s65, s65, s66
    s_lshl_b32 s65, s65, 13
    s_lshl_b32 s66, s4, 7
    s_add_u32 s65, s65, s66
    s_add_u32 s69, s65, {XT2}
    s_lshl_b32 s65, s5, 1
    s_add_u32 s65, s65, s3
    s_lshl_b32 s65, s65, 6
    s_add_u32 s65, s65, s4
    s_lshl_b32 s65, s65, 6
    s_add_u32 s70, s65, {FX}
    s_lshl_b32 s65, s4, 2
    s_lshl_b32 s66, s5, 1
    s_add_u32 s65, s65, s66
    s_add_u32 s65, s65, s3
    s_lshl_b32 s65, s65, 6
    s_add_u32 s71, s65, {FLG}
    s_lshl_b32 s68, s4, 12
    """)
    for i in range(64): e(f"v_accvgpr_write_b32 a{i}, 0")
    e("s_waitcnt vmcnt(9)")
    signal(e, C1)
    wait(e, C1, 4)
    e("@S 2")
    for g in range(4):
        e(f"ds_read_b64_tr_b16 {vr(XT+4*g,2)}, v10 offset:{32*g}\nds_read_b64_tr_b16 {vr(XT+2+4*g,2)}, v10 offset:{32*g+4*912}")
    e("s_waitcnt lgkmcnt(4)")
    for g in range(3):
        if g == 2: e("s_waitcnt lgkmcnt(0)")
        e(f"buffer_store_dwordx4 {vr(XT+4*g,4)}, v11, s[44:47], s69 offen sc1\ns_add_u32 s69, s69, 65536")
    e(f"""
    s_cmp_eq_u32 s3, 1
    s_cbranch_scc1 A_XT3
    buffer_store_dwordx4 {vr(XT+12,4)}, v11, s[44:47], s69 offen sc1
    A_XT3:
    """)
    nonce_issue(e, 30)
    e("s_cmp_ge_u32 s5, 2\ns_cbranch_scc1 A_NOKV")
    e("s_cmp_eq_u32 s5, 1\ns_cbranch_scc1 A_V")
    D, FB = 16, 32
    DD = 76
    def rd(s):
        b = 24 + 12 * (s % 3)
        if s % 3 == 0: b = 84
        return b
    def rds(s):
        b = rd(s)
        return [f"ds_read_b128 {vr(b+8,4)}, v{XA} offset:{64*s}"] + \
               [f"ds_read_b64_tr_b16 {vr(b+4*dt+2*i,2)}, v{WA} offset:{1792*s+224*i+32*dt}" for dt in range(2) for i in range(2)]
    def mfk(s):
        b = rd(s)
        return "\n".join(f"v_mfma_f32_16x16x32_bf16 {vr(D+4*dt,4)}, {vr(b+4*dt,4)}, {vr(b+8,4)}, " + ("0" if s == 0 else vr(D+4*dt,4)) for dt in range(2))
    def mfv(s):
        b = rd(s)
        return "\n".join(f"v_mfma_f32_16x16x32_bf16 {vr(D+4*dt,4)}, {vr(b+8,4)}, {vr(b+4*dt,4)}, " + ("0" if s == 0 else vr(D+4*dt,4)) for dt in range(2))
    gemm_loop(e, 14, rds, mfk, 2, 5)
    signal(e, KVD)
    e(f"""
    s_mov_b32 s66, 0
    s_mov_b32 s67, 0xffff0000
    s_lshl_b32 s65, s3, 8
    s_add_u32 s68, s68, s65
    v_mov_b32 v28, 0x3f803f80
    v_mov_b32 v29, 0x00003f80
    v_cvt_pk_bf16_f32 v24, v16, v17
    v_cvt_pk_bf16_f32 v25, v18, v19
    v_cvt_pk_bf16_f32 v26, v20, v21
    v_cvt_pk_bf16_f32 v27, v22, v23
    v_cndmask_b32 v26, v26, v28, s[66:67]
    v_cndmask_b32 v27, v27, v29, s[66:67]
    v_mul_f32 v28, v20, v20
    v_fmac_f32 v28, v21, v21
    v_permlane32_swap_b32 v24, v26
    v_permlane32_swap_b32 v25, v27
    v_fmac_f32 v28, v22, v22
    v_fmac_f32 v28, v23, v23
    buffer_store_dwordx4 v[24:27], v9, s[44:47], s68 offen sc1
    v_cndmask_b32 v28, v28, 0, s[66:67]
    v_fmac_f32 v28, v16, v16
    v_fmac_f32 v28, v17, v17
    v_fmac_f32 v28, v18, v18
    v_fmac_f32 v28, v19, v19
    v_mov_b32 v29, v28
    s_nop 1
    v_permlane16_swap_b32 v28, v29
    s_nop 1
    v_add_f32 v28, v28, v29
    v_mov_b32 v29, v28
    s_nop 1
    v_permlane32_swap_b32 v28, v29
    s_nop 1
    v_add_f32 v31, v28, v29
    """)
    for c in (1, 2, 4, 8): e(f"s_nop 1\nv_max_f32_dpp v31, v31, v31 row_ror:{c} row_mask:0xf bank_mask:0xf")
    e("s_branch A_KVFLAG\nA_V:")
    gemm_loop(e, 14, rds, mfv, 2, 5)
    signal(e, KVD)
    e(f"""
    v_and_b32 v28, 15, v1
    v_cmp_eq_u32 vcc, 12, v28
    s_lshl_b32 s65, s3, 10
    s_add_u32 s68, s68, s65
    v_mov_b32 v28, 0x3f803f80
    v_mov_b32 v31, 0
    v_cvt_pk_bf16_f32 v24, v16, v17
    v_cvt_pk_bf16_f32 v25, v18, v19
    v_cvt_pk_bf16_f32 v26, v20, v21
    v_cvt_pk_bf16_f32 v27, v22, v23
    v_cndmask_b32 v26, v26, v28, vcc
    v_cndmask_b32 v27, v27, v28, vcc
    s_nop 1
    v_permlane32_swap_b32 v24, v26
    v_permlane32_swap_b32 v25, v27
    s_nop 0
    buffer_store_dwordx4 v[24:27], v9, s[44:47], s68 offen offset:2048 sc1
    A_KVFLAG:
    s_waitcnt vmcnt(1)
    """)
    nonce_check(e, 30)
    e(f"""
    s_mov_b64 exec, 1
    buffer_store_dword v30, v3, s[44:47], s70 offen sc1
    s_mov_b64 exec, -1
    """)
    xfrag_reads(e, 8)
    e(f"""
    s_waitcnt vmcnt(1)
    s_mov_b64 exec, 1
    buffer_store_dwordx2 v[30:31], v3, s[44:47], s71 offen sc1
    s_mov_b64 exec, -1
    @S 3
    """)
    signal(e, XF_)
    e("s_cmp_eq_u32 s3, 0\ns_cbranch_scc1 A_QSYNC")
    wait(e, KVD, 2)
    e("s_branch A_GATE\nA_NOKV:")
    xfrag_reads(e, 8)
    signal(e, XF_)
    e("s_waitcnt vmcnt(0)")
    nonce_check(e, 30)
    e(f"""
    s_mov_b64 exec, 1
    buffer_store_dword v30, v3, s[44:47], s70 offen sc1
    s_mov_b64 exec, -1
    @S 3
    s_cmp_eq_u32 s3, 0
    s_cbranch_scc1 A_QSYNC
    A_GATE:
    v_lshlrev_b32 v8, 11, v1
    v_add_u32 v8, {WB}, v8
    s_mov_b32 exec_hi, 0x00ffffff
    """)
    for j in range(8):
        op = "ds_write_b16_d16_hi" if j & 1 else "ds_write_b16"
        e(f"{op} v8, v{GW + j//2} offset:{256*j + (224 ^ (64*(j&3)))}")
    e("s_mov_b32 exec_hi, -1")
    signal(e, CA)
    e("s_branch A_QSYNC\nA_DMAW:")
    srd(e, 56, 10, 448 * 896)
    wdma_voff(e, 6)
    xfrag_addr(e, 8)
    MASK = "s_mov_b32 exec_lo, 0xf3ff3fff\ns_mov_b32 exec_hi, 0xfff3ff3f"
    e(f"""
    s_sub_u32 s65, s3, 2
    s_lshl_b32 s66, s65, 10
    s_add_u32 m0, s66, {WB}
    s_mul_i32 s65, s65, 3584
    s_mul_i32 s66, s5, 224
    s_add_u32 s65, s65, s66
    {MASK}
    """)
    def dma_loop(n, lab):
        if 'nodma' in ABL: return
        e(f"""
        s_mov_b32 s66, {n//2}
        {lab}:
        buffer_load_dwordx4 v6, s[56:59], s65 offen lds
        s_add_u32 m0, m0, 2048
        s_add_u32 s65, s65, 7168
        buffer_load_dwordx4 v6, s[56:59], s65 offen lds
        s_add_u32 m0, m0, 2048
        s_add_u32 s65, s65, 7168
        s_sub_u32 s66, s66, 1
        s_cmp_lg_u32 s66, 0
        s_cbranch_scc1 {lab}
        """)
    dma_loop(NPRE, "A_DL1")
    e(f"s_waitcnt vmcnt({NPRE})")
    signal(e, C1)
    e("@S 2")
    if 'dmaonly' not in ABL: wait(e, C1, 4)
    xfrag_reads(e, 8)
    signal(e, XF_, restore=MASK)
    dma_loop(42 - NPRE, "A_DL2")
    e("s_cmp_ge_u32 s5, 2\ns_cbranch_scc1 A_DL3P")
    if 'dmaonly' not in ABL: wait(e, KVD, 2)
    e("A_DL3P:")
    dma_loop(14, "A_DL3")
    e("s_mov_b64 exec, -1\n@S 3")
    for i in range(64): e(f"v_accvgpr_write_b32 a{i}, 0")
    e("s_waitcnt vmcnt(14)")
    if 'dmaonly' in ABL: e("s_waitcnt vmcnt(0)\n@S 4\n@E 0\ns_endpgm")
    signal(e, CA)
    nonce_issue(e, 30)
    e("A_QSYNC:")
    e(f"""
    v_lshrrev_b32 v12, 5, v1
    v_bfe_u32 v13, v1, 2, 2
    v_lshl_add_u32 v14, v12, 3, v13
    v_lshlrev_b32 v14, 8, v14
    v_bfe_u32 v15, v1, 4, 1
    v_lshlrev_b32 v15, 5, v15
    v_and_b32 v16, 3, v1
    v_lshl_add_u32 v15, v16, 3, v15
    s_mul_i32 s65, s3, 56
    v_add_u32 v15, s65, v15
    v_lshlrev_b32 v13, 6, v13
    v_xor_b32 v15, v15, v13
    v_add_u32 v14, v14, v15
    v_add_u32 v7, {WB}, v14
    v_add_u32 v8, {WB + 65536}, v14
    s_mov_b32 s68, {f2u(QSCALE)}
    v_lshlrev_b32 v9, 6, v1
    s_lshl_b32 s69, s3, 12
    s_add_u32 s69, s69, {FLG}
    s_lshl_b32 s65, s3, 11
    s_add_u32 s65, s65, {WB}
    v_add_u32 v10, s65, v2
    v_lshlrev_b32 v11, 2, v1
    s_lshl_b32 s65, s3, 8
    s_add_u32 s65, s65, {WB + 8192}
    v_add_u32 v12, s65, v11
    """)
    wait(e, CA, 3)
    e("@S 4")
    ACC, FB = 48, 64
    WBUF = [16, 20, 24, 32, 36, 40]
    L = Lds(e); DEP = 5
    def rq(s):
        b = WBUF[s % 6]; w = 7 if s < 16 else 8; o = 4096 * (s % 16)
        L.op(f"ds_read_b64_tr_b16 {vr(b,2)}, v{w} offset:{o}")
        L.op(f"ds_read_b64_tr_b16 {vr(b+2,2)}, v{w} offset:{o+1024}", s)
    for s in range(DEP): rq(s)
    for s in range(28):
        if s == 11:
            e("s_cmp_lt_u32 s3, 2\ns_cbranch_scc1 A_NOCB\ns_waitcnt vmcnt(0)")
            signal(e, CB)
            e("A_NOCB:")
        if s == 14: L.op(f"ds_read_b32 v5, v3 offset:{CB}", "cb")
        if s + DEP == 21:
            L.wait("cb")
            e(f"""
            v_readfirstlane_b32 s64, v5
            s_cmp_ge_u32 s64, 2
            s_cbranch_scc1 A_CBOK
            """)
            wait(e, CB, 2)
            e("A_CBOK:")
        if s + DEP < 28: rq(s + DEP)
        L.wait(s)
        e(f"v_mfma_f32_32x32x16_bf16 {vr(ACC,16)}, {vr(WBUF[s%6],4)}, {xfrag(s)}, " + ("0" if s == 0 else vr(ACC,16)))
    signal(e, C3)
    e("s_waitcnt vmcnt(0)")
    nonce_check(e, 30)
    e(f"""
    buffer_load_dwordx2 v[14:15], v9, s[44:47], s69 offen sc1
    s_nop 3
    s_cmp_lg_u32 s3, 3
    s_cbranch_scc1 A_NOG
    v_mul_f32 v13, {f2u(-LOG2E)}, v{ACC+12}
    v_exp_f32 v13, v13
    s_nop 0
    v_add_f32 v13, 1.0, v13
    v_rcp_f32 v13, v13
    s_mov_b32 exec_lo, 0
    ds_write_b32 v11, v13 offset:{GOF - 128}
    s_mov_b32 exec_lo, -1
    A_NOG:
    """)
    for r in range(16): e(f"v_mul_f32 v{ACC+r}, s68, v{ACC+r}")
    for i in range(8): e(f"v_cvt_pk_bf16_f32 v{FB+i}, v{ACC+2*i}, v{ACC+2*i+1}")
    e(f"""
    v_cndmask_b32 v{FB+6}, v{FB+6}, 0, s[62:63]
    v_cndmask_b32 v{FB+7}, v{FB+7}, 0, s[62:63]
    v_mov_b32 v13, 0
    """)
    for i in range(8): e(f"v_dot2c_f32_bf16 v13, v{FB+i}, v{FB+i}")
    e("""
    s_nop 2
    v_mov_b32 v6, v13
    s_nop 1
    v_permlane32_swap_b32 v13, v6
    s_nop 1
    v_add_f32 v13, v13, v6
    """)
    wait(e, C3, 4)
    e(f"""
    ds_write_b128 v10, {vr(FB,4)}
    ds_write_b128 v10, {vr(FB+4,4)} offset:1024
    ds_write_b32 v12, v13
    """)
    signal(e, C4)
    wait(e, C4, 4)
    for j in range(4):
        e(f"""
        s_add_u32 s65, s3, {j+1}
        s_and_b32 s65, s65, 3
        s_lshl_b32 s66, s65, 11
        s_add_u32 s66, s66, {WB}
        v_add_u32 v10, s66, v2
        s_lshl_b32 s66, s65, 8
        s_add_u32 s66, s66, {WB + 8192}
        v_add_u32 v12, s66, v11
        ds_read_b128 {vr(Q+8*j,4)}, v10
        ds_read_b128 {vr(Q+8*j+4,4)}, v10 offset:1024
        ds_read_b32 v{48+j}, v12
        """)
    signal(e, C5)
    e(f"""
    @S 5
    s_lshl_b32 s65, s3, 16
    s_add_u32 s52, s42, s65
    s_addc_u32 s53, s43, 0
    s_mov_b32 s54, 0x10000
    s_mov_b32 s55, 0x00020000
    s_lshr_b32 s70, s2, 3
    s_add_u32 s70, s70, s5
    s_lshl_b32 s70, s70, 13
    s_and_b32 s70, s70, {0xffff if ROT else 0}
    A_POLL:
    s_waitcnt vmcnt(0)
    v_cmp_ne_u32 vcc, s60, v14
    s_cbranch_vccz A_GOT
    s_sub_u32 s61, s61, 1
    s_cbranch_scc1 BAIL
    buffer_load_dwordx2 v[14:15], v9, s[44:47], s69 offen sc1
    s_branch A_POLL
    A_GOT:
    buffer_load_dwordx4 {vr(KV[0],4)}, v2, s[52:55], s70 offen sc1
    buffer_load_dwordx4 {vr(KV[0]+4,4)}, v2, s[52:55], s70 offen offset:1024 sc1
    buffer_load_dwordx4 {vr(KV[0]+8,4)}, v2, s[52:55], s70 offen offset:2048 sc1
    buffer_load_dwordx4 {vr(KV[0]+12,4)}, v2, s[52:55], s70 offen offset:3072 sc1
    s_add_u32 s70, s70, 4096
    v_and_b32 v13, 7, v1
    v_lshlrev_b32 v13, 12, v13
    s_lshl_b32 s71, s4, 6
    s_add_u32 s71, s71, {FX}
    buffer_load_dword v12, v13, s[44:47], s71 offen sc1
    buffer_load_dwordx4 {vr(KV[1],4)}, v2, s[52:55], s70 offen sc1
    buffer_load_dwordx4 {vr(KV[1]+4,4)}, v2, s[52:55], s70 offen offset:1024 sc1
    """)
    for c in (1, 2, 4, 8): e(f"v_max_f32_dpp v15, v15, v15 row_ror:{c} row_mask:0xf bank_mask:0xf\ns_nop 1")
    e(f"""
    v_mov_b32 v14, v15
    s_nop 1
    v_permlane16_swap_b32 v15, v14
    s_nop 1
    v_max_f32 v15, v15, v14
    v_mov_b32 v14, v15
    s_nop 1
    v_permlane32_swap_b32 v15, v14
    s_nop 1
    v_max_f32 v15, v15, v14
    s_mov_b32 s72, {f2u(SAFE_BOUND)}
    s_waitcnt lgkmcnt(0)
    """)
    for j in range(4): e(f"v_mul_f32 v{48+j}, v15, v{48+j}")
    for j in range(4): e(f"v_sqrt_f32 v{48+j}, v{48+j}")
    for i in range(8): e(f"v_mov_b32 v{P[1]+i}, 0")
    e(f"""
    v_max_f32 v52, v48, v49
    v_max3_f32 v52, v52, v50, v51
    v_cmp_nle_f32 vcc, v52, s72
    """)
    for j in range(4): e(f"v_sub_f32 v{48+j}, {f2u(SHIFT)}, v{48+j}")
    for i in range(8): e(f"v_mov_b32 v{KV[1]+8+i}, 0")
    e("s_cbranch_vccnz A_FALLBACK")
    for j in range(4): e(f"v_cvt_pk_bf16_f32 v{48+j}, v{48+j}, 0")
    for j in range(4): e(f"v_cndmask_b32 v{Q+8*j+6}, v{Q+8*j+6}, v{48+j}, s[62:63]")
    for j in range(4): e(f"v_lshlrev_b32 v{CR+j}, 16, v{48+j}")
    e(f"""
    A_MAIN:
    s_mul_i32 s65, s3, 12288
    s_add_u32 s65, s65, {WB}
    v_add_u32 v6, s65, v2
    v_lshlrev_b32 v15, 2, v1
    s_waitcnt vmcnt(2)
    A_SIB:
    v_cmp_ne_u32 vcc, s60, v12
    s_cbranch_vccz A_SIBOK
    s_sub_u32 s61, s61, 1
    s_cbranch_scc1 BAIL
    buffer_load_dword v12, v13, s[44:47], s71 offen sc1
    s_waitcnt vmcnt(0)
    s_branch A_SIB
    A_SIBOK:
    s_setprio {LPRIO}
    @S 6
    """)
    def qk(i, tile):
        kb = KV[(tile >> 2) & 1]; s = S[tile & 1]; q = Q + 8 * (tile & 3)
        return f"v_mfma_f32_32x32x16_bf16 {vr(s,16)}, {vr(kb+4*i,4)}, {vr(q+4*i,4)}, " + ("0" if i == 0 else vr(s,16))
    def pv(i, tile):
        vb = KV[(tile >> 2) & 1] + 8; p = P[tile & 1]; o = 16 * (tile & 3)
        return f"v_mfma_f32_32x32x16_bf16 {ar(o,16)}, {vr(vb+4*i,4)}, {vr(p+4*i,4)}, {ar(o,16)}"
    def ld(reg, off): return f"buffer_load_dwordx4 {vr(reg,4)}, v2, s[52:55], s70 offen offset:{off} sc1"
    def pw(d, i): return f"ds_write_b128 v6, {ar(16*d+4*i,4)} offset:{4096*d+1024*i}"
    e(qk(0, 0)); e(qk(1, 0))
    e(f"v_mov_b32 v{S[1]+14}, 0\nv_mov_b32 v{S[1]+15}, 0\ns_mov_b32 s73, 7")
    for d in range(3):
        e(f"s_sub_u32 s65, s3, {d+1}\ns_and_b32 s65, s65, 3\ns_mul_i32 s65, s65, 12288\ns_add_u32 s65, s65, {WB + 4096*d}\nv_add_u32 v{12+d}, s65, v2")
    pat = "pCeeee" "qceecee" "Qceeceec" "Peeceec"
    def step(j, last):
        s = S[j & 1]; p = P[j & 1]; sp = S[(j + 1) & 1]; pp = P[(j + 1) & 1]
        ex = [f"v_exp_f32 v{s+i}, v{s+i}" for i in range(16)]
        cv = [f"v_cvt_pk_bf16_f32 v{p+i}, v{s+2*i}, v{s+2*i+1}" for i in range(7)]
        side = {"p": [], "q": [], "Q": [], "P": []}
        pre = {"p": [], "q": []}
        if j == 1: pre["p"] = ["s_waitcnt vmcnt(2)"]; side["q"] = [ld(KV[1] + 8, 2048)]; side["Q"] = [ld(KV[1] + 12, 3072)]; side["P"] = ["s_add_u32 s70, s70, 4096", "s_and_b32 s70, s70, 0xffff"]
        if j == 3: side["p"] = ["s_waitcnt vmcnt(2)"]
        if not last:
            if j == 3: side["Q"] = [ld(KV[0], 0)]; side["P"] = [ld(KV[0] + 4, 1024)]
            if j == 5: pre["p"] = ["s_waitcnt vmcnt(2)"]; side["q"] = [ld(KV[0] + 8, 2048)]; side["Q"] = [ld(KV[0] + 12, 3072)]; side["P"] = ["s_add_u32 s70, s70, 4096"]
            if j == 7: side["p"] = ["s_waitcnt vmcnt(2)"]; side["Q"] = [ld(KV[1], 0), "s_sub_u32 s73, s73, 1"]; side["P"] = [ld(KV[1] + 4, 1024), "s_cmp_lg_u32 s73, 0"]
        else:
            if j == 2: side["q"] = [f"ds_read_b32 v5, v3 offset:{C7}"]
            if j == 4: side["p"] = ["s_waitcnt lgkmcnt(0)"]; side["q"] = ["v_readfirstlane_b32 s64, v5"]; side["Q"] = ["s_cmp_ge_u32 s64, 4", "s_cbranch_scc0 A_C7WAIT", "A_C7OK:"]
            if j == 5:
                pre["p"] = ["s_waitcnt vmcnt(0)"]
                for k, ch in enumerate("pqQP"):
                    side[ch] = [f"s_add_u32 s65, s3, {k+1}", "s_and_b32 s65, s65, 3", "s_lshl_b32 s65, s65, 10", f"s_add_u32 s65, s65, {CX + 256*k}",
                                "v_add_u32 v7, s65, v15", f"ds_write_b32 v7, v{CR+k}"]
            if j >= 6: side["q"] = [pw(j-6, 0)]; side["Q"] = [pw(j-6, 1)]; side["P"] = [pw(j-6, 2), pw(j-6, 3)]
        for ch in pat:
            if ch == "p":
                for x in pre["p"]: e(x)
                e(pv(0, (j - 1) & 7))
            elif ch == "P": e(pv(1, (j - 1) & 7))
            elif ch == "q":
                if not (last and j == 7): e(qk(0, j + 1))
            elif ch == "Q":
                if not (last and j == 7): e(qk(1, j + 1))
            elif ch == "C": e(f"v_cvt_pk_bf16_f32 v{pp+7}, v{sp+14}, v{sp+15}")
            elif ch == "e": e(ex.pop(0))
            elif ch == "c": e(cv.pop(0))
            if ch in side:
                for x in side[ch]: e(x)
        assert not ex and not cv
    e(".p2align 6\nA_LOOP:")
    for j in range(8): step(j, False)
    e("s_cbranch_scc1 A_LOOP")
    for j in range(8): step(j, True)
    e("s_setprio 3")
    e(pv(0, 7))
    e(f"""
    v_cvt_pk_bf16_f32 v{P[1]+7}, v{S[1]+14}, v{S[1]+15}
    s_lshl_b32 s65, s3, 10
    s_add_u32 s65, s65, {CX}
    """)
    e(pv(1, 7))
    e(f"""
    v_add_u32 v7, s65, v15
    s_lshl_b32 s65, s4, 2
    s_add_u32 s65, s65, s5
    s_lshl_b32 s65, s65, 13
    """)
    for i in range(4): e(pw(2, i))
    e(f"""
    @T 1
    s_lshl_b32 s66, s3, 11
    s_add_u32 s74, s65, s66
    s_add_u32 s74, s74, {OX}
    s_add_u32 s65, s66, {STG}
    v_add_u32 v6, s65, v2
    s_nop 1
    """)
    for i in range(16): e(f"v_accvgpr_read_b32 v{16+i}, a{48+i}")
    e(f"""
    s_waitcnt lgkmcnt(0)
    s_barrier
    @T 2
    ds_read2st64_b32 v[32:33], v7 offset0:0 offset1:1
    ds_read2st64_b32 v[34:35], v7 offset0:2 offset1:3
    """)
    R = 48
    for d in range(3):
        for i in range(4): e(f"ds_read_b128 {vr(R+16*d+4*i,4)}, v{12+d} offset:{1024*i}")
    for d in range(1, 4):
        e(f"""
        s_add_u32 s65, s5, {d}
        s_and_b32 s65, s65, 3
        s_lshl_b32 s65, s65, 13
        s_add_u32 s65, s65, s66
        s_lshl_b32 s{75+d}, s4, 15
        s_add_u32 s{75+d}, s{75+d}, s65
        s_add_u32 s{75+d}, s{75+d}, {OX}
        """)
    e(f"""
    s_waitcnt lgkmcnt(12)
    v_min_f32 v36, v32, v33
    v_min3_f32 v36, v36, v34, v35
    """)
    for d in (3, 0, 1, 2): e(f"v_sub_f32 v{32+d}, v36, v{32+d}")
    for d in (3, 0, 1, 2): e(f"v_exp_f32 v{32+d}, v{32+d}")
    for i in range(16): e(f"v_mul_f32 v{16+i}, v35, v{16+i}")
    for d in range(3):
        e(f"s_waitcnt lgkmcnt({4*(2-d)})")
        for i in [12] + [i for i in range(16) if i != 12]: e(f"v_fmac_f32 v{16+i}, v{32+d}, v{R+16*d+i}" if (d < 2 or i == 12) else "")
    e(f"""
    v_mov_b32 v36, v28
    v_mov_b32 v37, v28
    v_fmac_f32 v16, v34, v{R+32}
    v_fmac_f32 v17, v34, v{R+33}
    v_permlane32_swap_b32 v36, v37
    v_fmac_f32 v18, v34, v{R+34}
    v_fmac_f32 v19, v34, v{R+35}
    v_rcp_f32 v37, v37
    """)
    for i in range(4, 16):
        if i != 12: e(f"v_fmac_f32 v{16+i}, v34, v{R+32+i}")
    e("s_mov_b32 s75, 0xfffffffe")
    for i in range(16): e(f"v_mul_f32 v{16+i}, v{16+i}, v37")
    for i in range(8): e(f"v_cvt_pk_bf16_f32 v{40+i}, v{16+2*i}, v{17+2*i}")
    e(f"v_cndmask_b32 v46, v46, 0, s[62:63]\nv_cndmask_b32 v47, v47, 0, s[62:63]")
    for i in range(8): e(f"v_min_u32 v{40+i}, s75, v{40+i}")
    e(f"""
    buffer_store_dwordx4 v[40:43], v2, s[44:47], s74 offen sc1
    buffer_store_dwordx4 v[44:47], v2, s[44:47], s74 offen offset:1024 sc1
    ds_write_b128 v6, v[40:43]
    ds_write_b128 v6, v[44:47] offset:1024
    """)
    signal(e, G0)
    e("@T 3\ns_mov_b32 s73, 14\nA_GATHER:")
    for d in range(1, 4):
        e(f"""
        s_bitcmp0_b32 s73, {d}
        s_cbranch_scc1 A_GL{d}
        buffer_load_dwordx4 {vr(40+8*d,4)}, v2, s[44:47], s{75+d} offen sc1
        buffer_load_dwordx4 {vr(44+8*d,4)}, v2, s[44:47], s{75+d} offen offset:1024 sc1
        A_GL{d}:
        """)
    e("s_waitcnt vmcnt(0)")
    for d in range(1, 4):
        b = 40 + 8*d
        e(f"""
        s_bitcmp0_b32 s73, {d}
        s_cbranch_scc1 A_GC{d}
        v_max3_u32 v16, v{b}, v{b+1}, v{b+2}
        v_max3_u32 v16, v16, v{b+3}, v{b+4}
        v_max3_u32 v16, v16, v{b+5}, v{b+6}
        v_max_u32 v16, v16, v{b+7}
        v_cmp_eq_u32 vcc, -1, v16
        s_cbranch_vccnz A_GC{d}
        ds_write_b128 v6, {vr(b,4)} offset:{8192*d}
        ds_write_b128 v6, {vr(b+4,4)} offset:{8192*d+1024}
        s_bitset0_b32 s73, {d}
        """)
        signal(e, G0 + 4*d)
        e(f"A_GC{d}:")
    e(f"""
    s_sub_u32 s61, s61, 1
    s_cbranch_scc1 BAIL
    s_cmp_lg_u32 s73, 0
    s_cbranch_scc1 A_GATHER
    s_waitcnt lgkmcnt(0)
    @T 4
    @E 0
    s_endpgm
    A_C7WAIT:
    """)
    wait(e, C7, 4)
    e("s_branch A_C7OK")
    T = 52
    e(f"""
    A_FALLBACK:
    s_lshl_b32 s74, s3, 16
    s_mov_b32 s75, 16
    """)
    for j in range(4): e(f"v_mov_b32 v{48+j}, 0xff800000")
    e(f"""
    A_FB_LOOP:
    buffer_load_dwordx4 {vr(T,4)}, v2, s[44:47], s74 offen sc1
    buffer_load_dwordx4 {vr(T+4,4)}, v2, s[44:47], s74 offen offset:1024 sc1
    s_add_u32 s74, s74, 4096
    s_waitcnt vmcnt(0)
    """)
    for j in range(4):
        e(f"v_mfma_f32_32x32x16_bf16 {vr(64,16)}, {vr(T,4)}, {vr(Q+8*j,4)}, 0")
        e(f"v_mfma_f32_32x32x16_bf16 {vr(64,16)}, {vr(T+4,4)}, {vr(Q+8*j+4,4)}, {vr(64,16)}")
        e("s_nop 11")
        for i in range(8): e(f"v_max3_f32 v{48+j}, v{48+j}, v{64+2*i}, v{65+2*i}")
    e(f"""
    s_sub_u32 s75, s75, 1
    s_cmp_lg_u32 s75, 0
    s_cbranch_scc1 A_FB_LOOP
    """)
    for j in range(4): e(f"v_mov_b32 v{52+j}, v{48+j}")
    e("s_nop 0")
    for j in range(4): e(f"v_permlane32_swap_b32 v{48+j}, v{52+j}")
    e("s_nop 0")
    for j in range(4):
        m = 48 + j; t = 56
        e(f"""
        v_max_f32 v{m}, v{m}, v{52+j}
        v_sub_f32 v{m}, 0, v{m}
        v_cvt_pk_bf16_f32 v{t}, v{m}, v{m}
        v_and_b32 v{t+4}, 0xffff0000, v{t}
        v_sub_f32 v{m}, v{m}, v{t+4}
        v_cvt_pk_bf16_f32 v{t+2}, v{m}, v{m}
        v_and_b32 v{t+1}, 0xffff0000, v{t+2}
        v_sub_f32 v{m}, v{m}, v{t+1}
        v_cvt_pk_bf16_f32 v{t+3}, v{m}, 0
        v_and_b32 v{t}, 0xffff, v{t}
        v_or_b32 v{t}, v{t}, v{t+1}
        v_cndmask_b32 v{Q+8*j+6}, v{Q+8*j+6}, v{t}, s[62:63]
        v_cndmask_b32 v{Q+8*j+7}, v{Q+8*j+7}, v{t+3}, s[62:63]
        v_lshlrev_b32 v{t+3}, 16, v{t+3}
        v_add_f32 v{t+1}, v{t+1}, v{t+3}
        v_add_f32 v{CR+j}, v{t+4}, v{t+1}
        """)
    e("s_branch A_MAIN")

def helper_path(e):
    e(f"""
    HELPER:
    s_setprio {HPRIO}
    s_sub_u32 s3, s3, 4
    s_lshr_b32 s6, s3, 1
    s_and_b32 s7, s3, 1
    s_min_u32 s76, s2, 223
    s_or_b32 s65, s2, s3
    s_cmp_lg_u32 s65, 0
    s_cbranch_scc1 H_NON
    s_memrealtime s[66:67]
    s_waitcnt lgkmcnt(0)
    s_or_b32 s66, s66, 1
    v_mov_b32 v5, s66
    global_store_dword v3, v5, s[40:41] sc0 sc1
    H_NON:
    s_lshl_b32 s65, s76, 2
    s_load_dword s66, s[32:33], s65
    s_load_dword s67, s[34:35], s65
    s_lshl_b32 s65, s76, 10
    s_lshl_b32 s68, s3, 8
    s_add_u32 s65, s65, s68
    v_lshl_add_u32 v8, v1, 2, s65
    """)
    for i in range(6): e(f"global_load_dword v{96+i}, v8, s[{20+2*i}:{21+2*i}]")
    if CPF in (1, 2):
        e(f"""
        s_cmp_eq_u32 s3, 3
        s_cbranch_scc0 H_NCPF
        s_getpc_b64 s[84:85]
        H_PC:
        s_sub_u32 s84, s84, H_PC - {NAME}
        s_subb_u32 s85, s85, 0
        """)
        if CPF == 1:
            e(f"""
            s_lshr_b32 s65, s2, 3
            s_mul_i32 s65, s65, {6*128}
            v_lshl_add_u32 v9, v1, 7, s65
            v_min_u32 v9, CODE_END - {NAME} - 4, v9
            s_mov_b64 exec, 63
            global_load_dword v90, v9, s[84:85]
            s_mov_b64 exec, -1
            """)
        else:
            for i in range(3):
                e(f"""
                v_lshlrev_b32 v9, 7, v1
                v_add_u32 v9, {8192*i}, v9
                v_min_u32 v9, CODE_END - {NAME} - 4, v9
                global_load_dword v{90+i}, v9, s[84:85]
                """)
        e("H_NCPF:")
    e("s_barrier")
    srd(e, 48, 16, 448 * 896)
    if 'noH' in ABL:
        signal(e, C7)
        e("@T 2\ns_barrier\n@E 0\ns_endpgm")
    e(f"""
    s_mul_i32 s77, s3, {KGS}
    s_mov_b32 m0, s77
    v_and_b32 v9, 15, v1
    v_lshrrev_b32 v10, 4, v1
    v_mul_u32_u24 v11, 288, v9
    v_lshl_add_u32 v11, v10, 4, v11
    v_add_u32 v11, s77, v11
    v_mul_u32_u24 v12, 1088, v10
    v_lshl_add_u32 v12, v9, 2, v12
    v_add_u32 v12, s77, v12
    s_lshl_b32 s68, s6, 4
    s_lshl_b32 s78, s6, 2
    v_mov_b32 v6, s78
    @S 1
    s_waitcnt lgkmcnt(0)
    s_lshr_b32 s66, s66, s68
    s_lshl_b32 s66, s66, 16
    s_lshr_b32 s67, s67, s68
    s_lshl_b32 s67, s67, 16
    v_mov_b32 v13, s66
    v_mul_f32 v13, {f2u(LOG2E)}, v13
    v_exp_f32 v13, v13
    s_nop 0
    v_cvt_pk_bf16_f32 v13, v13, v13
    v_and_b32 v13, 0xffff0000, v13
    """)
    P1_, P8, P256, P32 = 14, 16, 18, 20
    Y = [22, 24, 26, 28]
    X0, X2, X4, X6, XC = 30, 32, 34, 36, 38
    T0, T1 = 40, 42
    C = 44
    YF, XF, D = 48, 80, 112
    PR = 2
    for i in range(16): e(f"v_mov_b32 v{D+i}, 0")
    e("s_waitcnt vmcnt(0)\n@S 2")
    for i in range(6): e(f"v_and_b32 v{102+i}, 0xffff0000, v{96+i}")
    for i in range(6): e(f"v_accvgpr_write_b32 a{i}, v{102+i}")
    for i in range(6): e(f"v_lshlrev_b32 v{96+i}, 16, v{96+i}")
    e(f"s_mov_b32 s79, {1 if 'half' in ABL else 2}\nH_UNIT:")
    AR, AI, BR, BI, CRE, CIM = 96, 97, 98, 99, 100, 101
    e(f"""
    v_mul_f32 v{AR}, v13, v{AR}
    v_mul_f32 v{AI}, v13, v{AI}
    v_mul_f32 v{AR}, {f2u(LOG2E)}, v{AR}
    v_mul_f32 v{AI}, 0.15915494, v{AI}
    v_mul_f32 v{BR}, v13, v{BR}
    v_mul_f32 v{BI}, v13, v{BI}
    """)
    def anchor(dst, l, t):
        if l == 1:
            e(f"v_fract_f32 v{t+1}, v{AI}\nv_exp_f32 v{t}, v{AR}")
        else:
            e(f"v_mul_f32 v{t+1}, {f2u(float(l))}, v{AI}\nv_mul_f32 v{t}, {f2u(float(l))}, v{AR}\nv_fract_f32 v{t+1}, v{t+1}\nv_exp_f32 v{t}, v{t}")
        e(f"v_cos_f32 v{dst}, v{t+1}\nv_sin_f32 v{dst+1}, v{t+1}\ns_nop 0")
        e(f"v_pk_mul_f32 {vr(dst,2)}, {vr(dst,2)}, {vr(t,2)} op_sel:[0,0] op_sel_hi:[1,0]")
    anchor(P8, 8, T0)
    anchor(P1_, 1, T1)
    anchor(P256, 256, T0)
    cmul(e, X0, CRE, BR, T1)
    e(f"v_xor_b32 v{X0+1}, 0x80000000, v{X0+1}")
    cnt = [0]
    def put(src, row):
        c = C + (cnt[0] % 4); cnt[0] += 1
        e(f"v_cvt_pk_bf16_f32 v{c}, v{src}, v{src+1}")
        e(f"ds_write_addtid_b32 v{c} offset:{row*288}")
    tt = [0]
    def mul(z, x, y, conj=False):
        t = (T0, T1)[tt[0] % 2]; tt[0] += 1
        cmul(e, z, x, y, t, conj)
    def frags(dst):
        for ks in range(4): e(f"ds_read_b128 {vr(dst+4*ks,4)}, v11 offset:{64*ks}")
    e(f"v_mov_b32 v{C+3}, 0x3f80\nds_write_addtid_b32 v{C+3} offset:0")
    put(P8, 1)
    mul(Y[2], P8, P8); put(Y[2], 2)
    mul(Y[3], Y[2], P8); mul(P32, Y[2], Y[2]); put(Y[3], 3); put(P32, 4)
    mul(Y[1], P8, P32); put(Y[1], 5)
    mul(Y[2], Y[2], P32); put(Y[2], 6)
    mul(Y[3], Y[3], P32); put(Y[3], 7)
    mul(Y[0], P32, P32); put(Y[0], 8)
    for c in range(9, 32):
        if c == 16: frags(YF)
        mul(Y[c % 4], Y[c % 4], P32); put(Y[c % 4], c % 16)
    frags(YF + 16)
    put(X0, 4)
    mul(XC, X0, P1_, True); put(XC, 5)
    mul(X2, XC, P1_, True); put(X2, 6)
    mul(XC, X2, P1_, True); put(XC, 7)
    mul(X4, XC, P1_, True); put(X4, 8)
    mul(XC, X4, P1_, True); put(XC, 9)
    mul(X6, XC, P1_, True); put(X6, 10)
    mul(XC, X6, P1_, True); put(XC, 11)
    mul(X0, X0, P256, True); put(X0, 0)
    mul(X2, X2, P256, True); put(X2, 12)
    mul(X4, X4, P256, True); put(X4, 13)
    mul(X6, X6, P256, True); put(X6, 14)
    mul(X0, X0, P256, True); put(X0, 1)
    mul(X4, X4, P256, True); put(X4, 15)
    mul(X0, X0, P256, True); put(X0, 2)
    mul(X4, X4, P256, True)
    mul(X0, X0, P256, True); put(X0, 3)
    frags(XF)
    put(X4, 12)
    for r in range(4):
        mul(X0, X0, P256, True); put(X0, r)
    frags(XF + 16)
    e("s_waitcnt lgkmcnt(4)")
    def mm(rt, ct, ks):
        d = D + 4 * (2 * rt + ct)
        e(f"v_mfma_f32_16x16x32_bf16 {vr(d,4)}, {vr(XF+16*rt+4*ks,4)}, {vr(YF+16*ct+4*ks,4)}, {vr(d,4)}")
    for ks in range(4):
        for ct in range(2): mm(0, ct, ks)
    e("s_waitcnt lgkmcnt(0)")
    for ks in range(4):
        for ct in range(2): mm(1, ct, ks)
    for i in range(6): e(f"v_accvgpr_read_b32 v{96+i}, a{i}")
    e("s_sub_u32 s79, s79, 1\ns_cmp_lg_u32 s79, 0\ns_cbranch_scc1 H_UNIT")
    nonce_issue(e, 8)
    e(f"""
    s_lshr_b32 s65, s2, 3
    s_mul_i32 s65, s65, 12544
    s_lshl_b32 s68, s3, 12
    s_add_u32 s65, s65, s68
    v_lshlrev_b32 v9, 6, v1
    buffer_load_dword v7, v9, s[48:51], s65 offen
    """)
    for rt in range(2):
        for ct in range(2):
            for r in range(4):
                e(f"ds_write_b32 v12, v{D+4*(2*rt+ct)+r} offset:{(4*rt+r)*128+ct*64}")
    signal(e, P1, "v6")
    e("@S 3")
    if ABL == "kgen" or 'dmaonly' in ABL: e("@E 0\ns_endpgm")
    e(f"""
    s_mul_i32 s80, s76, 1171
    s_lshr_b32 s80, s80, 16
    s_mul_i32 s65, s80, 56
    s_sub_u32 s65, s76, s65
    s_lshr_b32 s65, s65, 5
    s_lshl_b32 s66, s80, 1
    s_add_u32 s65, s65, s66
    s_lshl_b32 s65, s65, 12
    s_add_u32 s81, s65, {FX}
    v_lshlrev_b32 v9, 6, v1
    s_mul_i32 s77, s6, {2*KGS}
    s_waitcnt vmcnt(0)
    """)
    nonce_check(e, 8)
    e("buffer_load_dword v10, v9, s[44:47], s81 offen sc1")
    wait(e, P1, 2, "v6")
    e(f"""
    s_lshl_b32 s65, s7, 6
    v_add_u32 v14, s65, v1
    v_lshlrev_b32 v15, 2, v14
    v_add_u32 v15, s77, v15
    ds_read2st64_b32 v[16:17], v15 offset0:{(512-128)//256} offset1:{(512-128)//256+18}
    """)
    e.l.pop()
    e(f"""
    v_add_u32 v18, 384, v15
    v_add_u32 v19, 388, v15
    ds_read2st64_b32 v[16:17], v18 offset0:0 offset1:18
    ds_read2st64_b32 v[20:21], v19 offset0:0 offset1:18
    v_and_b32 v22, 1, v1
    v_cmp_eq_u32 vcc, 1, v22
    s_cmp_eq_u32 s7, 0
    s_cbranch_scc1 H_T0
    v_subrev_u32 v18, 128, v15
    v_subrev_u32 v19, 124, v15
    v_add_u32 v22, {3648-256}, v15
    ds_read2st64_b32 v[24:25], v18 offset0:0 offset1:18
    ds_read2st64_b32 v[26:27], v19 offset0:0 offset1:18
    ds_read2st64_b32 v[28:29], v22 offset0:0 offset1:18
    s_waitcnt lgkmcnt(0)
    v_add_f32 v24, v24, v25
    v_add_f32 v26, v26, v27
    v_add_f32 v28, v28, v29
    v_cvt_pk_bf16_f32 v48, v26, v26
    v_cvt_pk_bf16_f32 v49, v28, v28
    v_cvt_pk_bf16_f32 v50, v28, v24
    v_cvt_pk_bf16_f32 v51, v24, v24
    v_mov_b32 v30, v51
    s_branch H_T2
    H_T0:
    v_and_b32 v18, 31, v1
    v_lshlrev_b32 v18, 2, v18
    v_add_u32 v18, s77, v18
    v_lshrrev_b32 v19, 5, v1
    """)
    A0 = [1088, 1216, 1344, 1472, 2176, 2304, 2432, 2560]
    A1 = [0, 0, 3264, 3392, 3392, 3392, 3520, 4]
    for j in range(8):
        e(f"""
        s_movk_i32 s65, {A1[j]-A0[j]}
        v_add_u32 v22, {A0[j]}, v18
        v_mad_i32_i24 v22, v19, s65, v22
        ds_read2st64_b32 {vr(32+2*j,2)}, v22 offset0:0 offset1:18
        """)
    e(f"""
    v_cmp_eq_u32 s[68:69], 0, v1
    v_mov_b32 v23, s67
    s_nop 0
    v_cndmask_b32 v23, 0, v23, s[68:69]
    s_waitcnt lgkmcnt(0)
    """)
    for j in range(8): e(f"v_add_f32 v{32+2*j}, v{32+2*j}, v{33+2*j}")
    e("v_add_f32 v32, v32, v23\nv_mov_b32 v30, 0")
    for i in range(4): e(f"v_cvt_pk_bf16_f32 v{48+i}, v{32+2*(7-2*i)}, v{32+2*(6-2*i)}")
    e(f"""
    s_nop 1
    v_mov_b32_dpp v30, v48 wave_shr:1 row_mask:0xf bank_mask:0xf
    H_T2:
    v_add_f32 v16, v16, v17
    v_add_f32 v20, v20, v21
    v_cndmask_b32 v24, v16, v20, vcc
    v_cvt_pk_bf16_f32 v56, v20, v20
    v_cvt_pk_bf16_f32 v57, v20, v24
    v_cvt_pk_bf16_f32 v58, v16, v16
    v_cvt_pk_bf16_f32 v59, v16, v16
    v_alignbit_b32 v52, v49, v48, 16
    v_alignbit_b32 v53, v50, v49, 16
    v_alignbit_b32 v54, v51, v50, 16
    v_alignbit_b32 v55, v30, v51, 16
    v_alignbit_b32 v60, v57, v56, 16
    v_alignbit_b32 v61, v58, v57, 16
    v_mov_b32 v62, v58
    v_mov_b32 v63, v58
    v_sub_u32 v14, 127, v14
    v_lshlrev_b32 v14, 4, v14
    s_mul_i32 s77, s6, {ECH}
    s_add_u32 s77, s77, {XB}
    v_add_u32 v14, s77, v14
    H_XPOLL:
    s_waitcnt vmcnt(0)
    v_cmp_ne_u32 vcc, s60, v10
    s_cbranch_vccz H_XOK
    s_sub_u32 s61, s61, 1
    s_cbranch_scc1 BAIL
    s_sleep 2
    buffer_load_dword v10, v9, s[44:47], s81 offen sc1
    s_branch H_XPOLL
    H_XOK:
    v_lshrrev_b32 v16, 2, v1
    v_and_b32 v17, 3, v1
    v_lshlrev_b32 v18, 7, v16
    v_lshl_add_u32 v18, v17, 4, v18
    s_lshl_b32 s65, s76, 13
    s_lshl_b32 s66, s7, 12
    s_add_u32 s65, s65, s66
    s_lshl_b32 s66, s6, 6
    s_add_u32 s65, s65, s66
    s_add_u32 s65, s65, {XT2}
    buffer_load_dwordx4 v[64:67], v18, s[44:47], s65 offen sc1
    buffer_load_dwordx4 v[68:71], v18, s[44:47], s65 offen offset:2048 sc1
    v_mul_u32_u24 v17, 1536, v17
    v_lshl_add_u32 v17, v16, 4, v17
    s_mul_i32 s82, s6, {UCH}
    s_add_u32 s82, s82, {UB}
    s_lshl_b32 s65, s7, 8
    s_add_u32 s65, s65, s82
    v_add_u32 v19, s65, v17
    s_lshl_b32 s65, s7, 9
    s_add_u32 s65, s65, s82
    v_add_u32 v17, s65, v17
    v_mov_b32 v72, 0
    v_mov_b32 v73, 0
    v_mov_b32 v74, 0
    v_mov_b32 v75, 0
    s_mul_i32 s65, s7, {OOF}
    s_add_u32 s65, s65, s77
    v_add_u32 v20, s65, v2
    """)
    wait(e, XF_, 4)
    e(f"""
    ds_write_b128 v14, v[56:59]
    ds_write_b128 v14, v[60:63] offset:{OOF}
    ds_write_b128 v14, v[48:51] offset:2048
    ds_write_b128 v14, v[52:55] offset:{2048+OOF}
    ds_write_b128 v19, v[72:75]
    s_mov_b64 exec, 15
    ds_write_b128 v20, v[72:75] offset:4096
    s_mov_b64 exec, -1
    s_waitcnt vmcnt(0)
    ds_write_b128 v17, v[64:67] offset:512
    ds_write_b128 v17, v[68:71] offset:768
    """)
    signal(e, P2, "v6")
    wdma_voff(e, 7)
    e(f"""
    v_and_b32 v21, 31, v1
    v_lshrrev_b32 v22, 5, v1
    v_lshlrev_b32 v8, 3, v22
    v_sub_u32 v8, v8, v21
    v_add_u32 v8, 2047, v8
    v_and_b32 v9, 1, v8
    v_lshrrev_b32 v8, 1, v8
    v_mul_u32_u24 v9, {OOF}, v9
    v_lshl_add_u32 v8, v8, 2, v9
    s_lshl_b32 s65, s7, 10
    s_sub_u32 s65, s77, s65
    v_add_u32 v14, s65, v8
    v_subrev_u32 v15, 2048, v14
    v_mul_u32_u24 v8, 1536, v22
    v_lshl_add_u32 v8, v21, 4, v8
    s_lshl_b32 s65, s7, 8
    s_sub_u32 s65, s82, s65
    s_add_u32 s65, s65, 512
    v_add_u32 v16, s65, v8
    s_lshl_b32 s65, s3, 10
    s_add_u32 s69, s65, {WB}
    s_mul_i32 s68, s3, 3584
    s_mul_i32 s66, s5, 224
    s_add_u32 s68, s68, s66
    """)
    AC, CF = 64, (32, 48)
    for i in range(32): e(f"v_mov_b32 v{AC+i}, 0")
    wait(e, P2, 2, "v6")
    e("@S 4")
    def cread(h):
        c = CF[h]
        return [f"ds_read2_b32 {vr(c,2)}, v14 offset0:{8*h} offset1:{8*h+1}", f"ds_read2_b32 {vr(c+2,2)}, v14 offset0:{8*h+2} offset1:{8*h+3}",
                f"ds_read_b128 {vr(c+8,4)}, v16 offset:{3072*h}",
                f"ds_read2_b32 {vr(c+4,2)}, v15 offset0:{8*h} offset1:{8*h+1}", f"ds_read2_b32 {vr(c+6,2)}, v15 offset0:{8*h+2} offset1:{8*h+3}",
                f"ds_read_b128 {vr(c+12,4)}, v16 offset:{3072*h+512}"]
    def cm(h):
        c = CF[h]
        return [f"v_mfma_f32_32x32x16_bf16 {vr(AC,16)}, {vr(c,4)}, {vr(c+8,4)}, {vr(AC,16)}",
                f"v_mfma_f32_32x32x16_bf16 {vr(AC+16,16)}, {vr(c+4,4)}, {vr(c+8,4)}, {vr(AC+16,16)}",
                f"v_mfma_f32_32x32x16_bf16 {vr(AC+16,16)}, {vr(c,4)}, {vr(c+12,4)}, {vr(AC+16,16)}"]
    for r in cread(0): e(r)
    e(f"s_mov_b32 s79, {1 if 'noconv' in ABL else 16}\nH_CONV:")
    for r in cread(1): e(r)
    e(f"""
    v_subrev_u32 v14, 64, v14
    v_subrev_u32 v15, 64, v15
    v_subrev_u32 v16, 16, v16
    s_waitcnt lgkmcnt(6)
    """)
    for m in cm(0): e(m)
    for r in cread(0): e(r)
    e("s_waitcnt lgkmcnt(6)")
    for m in cm(1): e(m)
    e(f"""
    s_sub_u32 s79, s79, 1
    s_cmp_lg_u32 s79, 0
    s_cbranch_scc1 H_CONV
    s_mul_i32 s65, s3, {KGS}
    v_add_u32 v8, s65, v2
    s_xor_b32 s65, s3, 1
    s_mul_i32 s65, s65, {KGS}
    v_add_u32 v9, s65, v2
    s_waitcnt lgkmcnt(0)
    s_nop 7
    s_cmp_eq_u32 s7, 0
    s_cbranch_scc1 H_C0
    """)
    for i in range(4): e(f"ds_write_b128 v8, {vr(AC+4*i,4)} offset:{1024*i}")
    for i in range(16): e(f"v_mov_b32 v{AC+i}, v{AC+16+i}")
    e("s_branch H_C1\nH_C0:")
    for i in range(4): e(f"ds_write_b128 v8, {vr(AC+16+4*i,4)} offset:{1024*i}")
    e("H_C1:")
    signal(e, P3, "v6")
    DMA2 = """
    s_mov_b32 m0, s69
    s_add_u32 s69, s69, 4096
    buffer_load_dwordx4 v7, s[48:51], s68 offen lds
    s_mov_b32 m0, s69
    s_add_u32 s68, s68, 14336
    s_add_u32 s69, s69, 4096
    buffer_load_dwordx4 v7, s[48:51], s68 offen lds
    s_add_u32 s68, s68, 14336
    """
    wait(e, C5, 4, sleep=2)
    e(DMA2); e(DMA2)
    wait(e, P3, 2, "v6", sleep=2)
    for i in range(4): e(f"ds_read_b128 {vr(32+4*i,4)}, v9 offset:{1024*i}")
    e(f"""
    v_mul_u32_u24 v8, 28672, v21
    v_lshl_add_u32 v8, v22, 4, v8
    s_lshl_b32 s65, s76, 1
    s_add_u32 s65, s65, s6
    s_lshl_b32 s65, s65, 6
    s_mul_i32 s66, s7, {32*28672}
    s_add_u32 s65, s65, s66
    s_add_u32 s65, s65, {BT2}
    s_mov_b32 s75, 0xfffffffe
    s_waitcnt lgkmcnt(0)
    """)
    for i in range(16): e(f"v_add_f32 v{AC+i}, v{AC+i}, v{32+i}")
    for i in range(8): e(f"v_cvt_pk_bf16_f32 v{32+i}, v{AC+2*i}, v{AC+2*i+1}")
    for i in range(8): e(f"v_min_u32 v{32+i}, s75, v{32+i}")
    e(f"""
    s_cmp_ge_u32 s2, 224
    v_permlane32_swap_b32 v32, v34
    v_permlane32_swap_b32 v33, v35
    v_permlane32_swap_b32 v36, v38
    v_permlane32_swap_b32 v37, v39
    s_cbranch_scc1 H_NOBT
    buffer_store_dwordx4 v[32:35], v8, s[44:47], s65 offen sc1
    buffer_store_dwordx4 v[36:39], v8, s[44:47], s65 offen offset:32 sc1
    H_NOBT:
    @S 5
    s_mov_b32 s79, {1 if 'nowo' in ABL else 12}
    H_WO:
    s_waitcnt vmcnt(2)
    {DMA2}
    s_sub_u32 s79, s79, 1
    s_cmp_lg_u32 s79, 0
    s_cbranch_scc1 H_WO
    v_bfe_u32 v8, v1, 2, 2
    v_lshl_add_u32 v9, v22, 2, v8
    v_lshlrev_b32 v9, 8, v9
    v_bfe_u32 v10, v1, 4, 1
    v_lshlrev_b32 v10, 5, v10
    v_and_b32 v11, 3, v1
    v_lshl_add_u32 v10, v11, 3, v10
    s_lshl_b32 s65, s3, 6
    v_add_u32 v10, s65, v10
    v_lshlrev_b32 v8, 6, v8
    v_xor_b32 v10, v10, v8
    v_add_u32 v9, v9, v10
    """)
    for d in range(4):
        e(f"s_add_u32 s65, s5, {d}\ns_and_b32 s65, s65, 3\ns_mul_i32 s65, s65, 28672\ns_add_u32 s65, s65, {WB}\nv_add_u32 v{24+d}, s65, v9")
    e("s_waitcnt vmcnt(0)")
    signal(e, C6)
    wait(e, C6, 4, sleep=2)
    for h in range(16):
        for s in range(2):
            for i in range(2):
                e(f"ds_read_b64_tr_b16 {ar(8*h+4*s+2*i,2)}, v{24 + h//4} offset:{7168*(h%4)+4096*s+2048*i}")
    ID, BF, YA, OA = 40, 48, 64, 80
    e(f"""
    v_and_b32 v8, 1, v21
    v_lshlrev_b32 v8, 4, v8
    v_mov_b32 v9, 0x3f80
    v_lshlrev_b32 v9, v8, v9
    v_lshrrev_b32 v10, 1, v21
    v_lshlrev_b32 v11, 2, v22
    v_sub_u32 v10, v10, v11
    """)
    for s in range(2):
        for w in range(4):
            e(f"v_cmp_eq_u32 vcc, {8*s+w}, v10\ns_nop 1\nv_cndmask_b32 v{ID+4*s+w}, 0, v9, vcc")
    e(f"""
    v_lshlrev_b32 v8, 6, v21
    v_lshl_add_u32 v8, v22, 4, v8
    s_mul_i32 s65, s4, 28672
    s_mul_i32 s66, s5, 7168
    s_add_u32 s65, s65, s66
    s_lshl_b32 s66, s3, 11
    s_add_u32 s65, s65, s66
    s_add_u32 s65, s65, {BT2}
    v_mul_u32_u24 v12, 896, v21
    v_lshl_add_u32 v12, v22, 4, v12
    s_mul_i32 s66, s4, {32*896}
    s_mul_i32 s67, s5, 224
    s_add_u32 s66, s66, s67
    s_lshl_b32 s67, s3, 6
    s_add_u32 s66, s66, s67
    v_lshlrev_b32 v13, 2, v21
    v_add_u32 v14, {STG}, v2
    s_cmp_eq_u32 s3, 3
    s_cselect_b32 s70, 0xffff, -1
    s_mov_b32 s71, s70
    s_waitcnt lgkmcnt(0)
    """)
    signal(e, C7)
    srd(e, 48, 38, 2048 * 896)
    e(f"""
    ds_read_b32 v15, v13 offset:{GOF}
    @S 6
    @T 1
    H_YPOLL:
    buffer_load_dwordx4 {vr(BF,4)}, v8, s[44:47], s65 offen sc1
    buffer_load_dwordx4 {vr(BF+4,4)}, v8, s[44:47], s65 offen offset:32 sc1
    s_waitcnt vmcnt(0)
    v_max3_u32 v16, v{BF}, v{BF+1}, v{BF+2}
    v_max3_u32 v16, v16, v{BF+3}, v{BF+4}
    v_max3_u32 v16, v16, v{BF+5}, v{BF+6}
    v_max_u32 v16, v16, v{BF+7}
    v_cmp_eq_u32 vcc, -1, v16
    s_and_b64 vcc, vcc, s[70:71]
    s_cbranch_vccz H_YOK
    s_sub_u32 s61, s61, 1
    s_cbranch_scc1 BAIL
    s_sleep 8
    s_branch H_YPOLL
    H_YOK:
    v_mfma_f32_32x32x16_bf16 {vr(YA,16)}, {vr(BF,4)}, {vr(ID,4)}, 0
    v_mfma_f32_32x32x16_bf16 {vr(YA,16)}, {vr(BF+4,4)}, {vr(ID+4,4)}, {vr(YA,16)}
    s_waitcnt lgkmcnt(0)
    v_sub_f32 v16, 1.0, v15
    s_nop 10
    """)
    for i in range(16): e(f"v_mul_f32 v{YA+i}, v16, v{YA+i}")
    e("@T 2\ns_setprio 3\ns_barrier\n@T 3")
    FB = 96
    def block(d):
        for s in range(8): e(f"ds_read_b128 {vr(FB+4*s,4)}, v14 offset:{8192*d+1024*s}")
        for s in range(8):
            e(f"s_waitcnt lgkmcnt({7-s})")
            o = (OA, 32, 48, OA)[d]
            e(f"v_mfma_f32_32x32x16_bf16 {vr(o,16)}, {ar(32*d+4*s,4)}, {vr(FB+4*s,4)}, " + ("0" if s == 0 else vr(o,16)))
    wait(e, G0, 4)
    block(0)
    e("s_nop 11")
    for i in range(16): e(f"v_fmac_f32 v{YA+i}, v15, v{OA+i}")
    e(f"""
    @T 4
    s_mov_b32 s73, 14
    H_PICK:
    ds_read_b128 v[20:23], v3 offset:{G0}
    s_waitcnt lgkmcnt(0)
    v_readfirstlane_b32 s76, v21
    v_readfirstlane_b32 s77, v22
    v_readfirstlane_b32 s78, v23
    """)
    for d in range(1, 4):
        e(f"""
        s_bitcmp0_b32 s73, {d}
        s_cbranch_scc1 H_PN{d}
        s_cmp_ge_u32 s{75+d}, 4
        s_cbranch_scc1 H_B{d}
        H_PN{d}:
        """)
    e("""
    s_sub_u32 s61, s61, 1
    s_cbranch_scc1 BAIL
    s_sleep 1
    s_branch H_PICK
    """)
    for d in range(1, 4):
        e(f"H_B{d}:")
        block(d)
        e(f"s_bitset0_b32 s73, {d}\ns_cmp_lg_u32 s73, 0\ns_cbranch_scc1 H_PICK")
        if d < 3: e("s_branch H_FIN")
    e("H_FIN:\n@T 5")
    e("s_nop 10")
    for i in range(16): e(f"v_add_f32 v{32+i}, v{32+i}, v{48+i}")
    for i in range(16): e(f"v_add_f32 v{32+i}, v{32+i}, v{OA+i}")
    for i in range(16): e(f"v_fmac_f32 v{YA+i}, v15, v{32+i}")
    for i in range(8): e(f"v_cvt_pk_bf16_f32 v{32+i}, v{YA+2*i}, v{YA+2*i+1}")
    e(f"""
    s_cmp_eq_u32 s3, 3
    s_nop 0
    v_permlane32_swap_b32 v32, v34
    v_permlane32_swap_b32 v33, v35
    v_permlane32_swap_b32 v36, v38
    v_permlane32_swap_b32 v37, v39
    buffer_store_dwordx4 v[32:35], v12, s[48:51], s66 offen
    s_cbranch_scc1 H_END
    buffer_store_dwordx4 v[36:39], v12, s[48:51], s66 offen offset:32
    H_END:
    @E 0
    BAIL:
    s_endpgm
    CODE_END:
    """)

def main(out):
    e = A()
    hdr = f"""; gated mix of MQA attention and an S4 convolution: one launch, workgroups hand data over through d_ws
; @launch grid=(256,1,1) block=(512,1,1) lds={LDS}
.amdgcn_target "amdgcn-amd-amdhsa--gfx950"
.text
"""
    prologue(e); attn_path(e); helper_path(e)
    tail = f""".section .rodata,"a"
.p2align 6
.amdhsa_kernel {NAME}
  .amdhsa_next_free_vgpr 256
  .amdhsa_next_free_sgpr 102
  .amdhsa_accum_offset 128
  .amdhsa_group_segment_fixed_size 0
  .amdhsa_kernarg_size 144
  .amdhsa_user_sgpr_count 2
  .amdhsa_user_sgpr_kernarg_segment_ptr 1
  .amdhsa_system_sgpr_workgroup_id_x 1
.end_amdhsa_kernel
"""
    open(out, "w").write(hdr + e.text() + tail)

if __name__ == "__main__":
    main(sys.argv[1] if len(sys.argv) > 1 else "f2.s")
```

```python
import math, struct, sys, os

def f2u(x): return struct.unpack("<I", struct.pack("<f", x))[0]
LOG2E = 1.4426950408889634
QSCALE = (28 ** -0.5) * LOG2E
NAME = "gated_mix__grouped_kv_mqa__ssm_conv_s4__prompt_kernel"

KVF = 0x000000
FLG = 0x040000
FX  = 0x044000
XT2 = 0x080000
OX  = 0x280000
BT2 = 0x480000
WSZ = 0x640000
KGS = 4608
SY = 18432
XB = 18944
WB = 48128
WEND = WB + 448 * 256
LDS = 163840
IMG = WB + 336 * 256
ECH, OOF, UB, UCH = 8384, 4224, XB + 16768, 6144
C1, CA, C3, C4, C5, KVD, P1, P2, P3, C6, C7, CI, XF_, CB, G0, GOF = [SY + x for x in (0, 4, 8, 12, 16, 20, 24, 32, 40, 48, 52, 56, 60, 64, 80, 128)]
CX = WB + 49152
STG = WB + 53248
SAFE_BOUND = 80.0
SHIFT = 64.0

BUDGET = int(os.environ.get("BUDGET", "0x8000"), 0)
ABL = os.environ.get("ABL", "")
NPRE = int(os.environ.get("NPRE", "8"))
PREF = int(os.environ.get("PREF", "1"))
PSH = int(os.environ.get("PSH", "7"))
HPRIO = int(os.environ.get("HPRIO", "1"))
LPRIO = int(os.environ.get("LPRIO", "0"))
ROT = int(os.environ.get("ROT", "1"))
APRIO = int(os.environ.get("APRIO", "3"))
CPF = int(os.environ.get("CPF", "3"))
STAMP = int(os.environ.get("STAMP", "0"))
TSB = 0x1000000
def stamp(e, i):
    if STAMP: e(f"s_memrealtime s[{100-2*i}:{101-2*i}]\ns_waitcnt lgkmcnt(0)")
def stamp_end(e, kidx):
    if not STAMP: return
    e(f"""
    s_waitcnt vmcnt(0)
    s_memrealtime s[86:87]
    s_load_dwordx2 s[84:85], s[0:1], 136
    s_mov_b64 exec, 1
    v_lshrrev_b32 v2, 6, v0
    s_lshl_b32 s83, s2, 4
    v_add_u32 v2, s83, v2
    v_lshlrev_b32 v2, 6, v2
    v_add_u32 v2, {TSB + kidx*0x100000}, v2
    s_waitcnt lgkmcnt(0)
    """)
    for i in range(16): e(f"v_mov_b32 v{4+i}, s{86+i}")
    for i in range(4): e(f"global_store_dwordx4 v2, v[{4+4*i}:{7+4*i}], s[84:85] offset:{16*i}")

class A:
    def __init__(self): self.l = []; self.n = 0
    def __call__(self, s=""):
        for line in s.split("\n"):
            line = line.strip()
            if not line: continue
            if line.startswith("@S "):
                if STAMP == 1 or line == "@S 0": stamp(self, int(line[3:]))
                continue
            if line.startswith("@T "):
                if STAMP == 2: stamp(self, int(line[3:]))
                continue
            if line.startswith("@E "): stamp_end(self, int(line[3:])); continue
            if line.endswith(":") or line.startswith("."): self.l.append(line)
            else: self.l.append("    " + line)
    def lab(self, p="L"):
        self.n += 1; return f"{p}{self.n}"
    def text(self): return "\n".join(self.l) + "\n"

def vr(a, n): return f"v[{a}:{a+n-1}]"
def ar(a, n): return f"a[{a}:{a+n-1}]"
def sr(a, n): return f"s[{a}:{a+n-1}]"
def srd(e, d, base, nbytes):
    e(f"s_mov_b32 s{d}, s{base}\ns_mov_b32 s{d+1}, s{base+1}\ns_mov_b32 s{d+2}, {nbytes}\ns_mov_b32 s{d+3}, 0x00020000")

def signal(e, off, addr="v3", restore="s_mov_b64 exec, -1"):
    e(f"s_mov_b64 exec, 1\nds_add_u32 {addr}, v4 offset:{off}\n{restore}")
def wait(e, off, n, addr="v3", sleep=1):
    l = e.lab("W"); d = e.lab("D")
    e(f"""
    {l}:
    ds_read_b32 v5, {addr} offset:{off}
    s_waitcnt lgkmcnt(0)
    v_readfirstlane_b32 s64, v5
    s_cmp_ge_u32 s64, {n}
    s_cbranch_scc1 {d}
    s_sub_u32 s61, s61, 1
    s_cbranch_scc1 BAIL
    s_sleep {sleep}
    s_branch {l}
    {d}:
    """)
def nonce_issue(e, v): e(f"global_load_dword v{v}, v3, s[40:41] sc1")
def nonce_check(e, v):
    l = e.lab("N"); d = e.lab("D")
    e(f"""
    {l}:
    v_readfirstlane_b32 s60, v{v}
    s_cmp_lg_u32 s60, 0
    s_cbranch_scc1 {d}
    s_sub_u32 s61, s61, 1
    s_cbranch_scc1 BAIL
    global_load_dword v{v}, v3, s[40:41] sc1
    s_waitcnt vmcnt(0)
    s_branch {l}
    {d}:
    """)

def gemm_loop(e, nsteps, reads, mfma, depth, nper):
    for s in range(min(depth, nsteps)):
        for r in reads(s): e(r)
    for s in range(nsteps):
        if s + depth < nsteps:
            for r in reads(s + depth): e(r)
            out = depth * nper
        else:
            out = (nsteps - 1 - s) * nper
        e(f"s_waitcnt lgkmcnt({out})")
        e(mfma(s))

def cmul(e, z, x, y, t, conj=False):
    e(f"v_pk_mul_f32 {vr(t,2)}, {vr(x,2)}, {vr(y,2)} op_sel:[0,0] op_sel_hi:[1,0]")
    neg = "neg_hi:[1,0,0]" if conj else "neg_lo:[1,0,0]"
    e(f"v_pk_fma_f32 {vr(z,2)}, {vr(x,2)}, {vr(y,2)}, {vr(t,2)} op_sel:[1,1,0] op_sel_hi:[0,1,1] {neg}")

def wdma_voff(e, v):
    e(f"""
    v_lshrrev_b32 v8, 4, v1
    v_and_b32 v9, 15, v1
    v_lshlrev_b32 v10, 2, v8
    v_xor_b32 v9, v9, v10
    v_mul_u32_u24 v8, 896, v8
    v_lshl_add_u32 v{v}, v9, 4, v8
    """)

def prologue(e):
    e(f"""
    .globl {NAME}
    .p2align 8
    .type {NAME},@function
    {NAME}:
    s_cmp_ge_u32 s2, 256
    s_cbranch_scc1 BAIL
    """)
    if CPF >= 3:
        e(f"""
        s_getpc_b64 s[84:85]
        v_lshlrev_b32 v76, 7, v0
        v_min_u32 v76, CODE_END - {NAME} - 64, v76
        v_mov_b32 v77, s85
        v_add_co_u32 v76, vcc, s84, v76
        v_addc_co_u32 v77, vcc, 0, v77, vcc
        global_load_dword v79, v[76:77], off
        """)
    e(f"""
    @S 0
    s_load_dwordx16 s[8:23], s[0:1], 0
    s_load_dwordx16 s[24:39], s[0:1], 64
    s_load_dwordx4 s[40:43], s[0:1], 128
    v_lshrrev_b32 v2, 6, v0
    v_and_b32 v1, 63, v0
    v_readfirstlane_b32 s3, v2
    v_lshlrev_b32 v2, 4, v1
    v_mov_b32 v3, 0
    v_mov_b32 v4, 1
    s_and_b32 s4, s2, 7
    s_lshl_b32 s4, s4, 3
    s_bfe_u32 s5, s2, 0x30003
    s_add_u32 s4, s4, s5
    s_lshr_b32 s5, s2, 6
    s_mov_b32 s61, {BUDGET}
    s_mov_b32 s62, 0
    s_mov_b32 s63, -1
    s_cmp_lg_u32 s3, 0
    s_cbranch_scc1 NOZERO
    v_mov_b32 v8, 0
    v_mov_b32 v9, 0
    v_mov_b32 v10, 0
    v_mov_b32 v11, 0
    v_lshlrev_b32 v6, 3, v1
    v_add_u32 v7, {WEND}, v2
    ds_write_b64 v6, v[8:9] offset:{SY}
    ds_write_b128 v7, v[8:11]
    NOZERO:
    s_waitcnt lgkmcnt(0)
    """)
    srd(e, 44, 42, WSZ)
    e("s_cmp_ge_u32 s3, 4\ns_cbranch_scc1 HELPER")

class Lds:
    def __init__(self, e): self.e = e; self.n = 0; self.mark = {}
    def op(self, text, tag=None):
        self.e(text); self.n += 1
        if tag is not None: self.mark[tag] = self.n
    def wait(self, tag):
        self.e(f"s_waitcnt lgkmcnt({min(15, self.n - self.mark[tag])})")

def xfrag(s): return ar(64 + 4*s, 4) if s < 16 else vr(80 + 4*(s-16), 4)
def xfrag_addr(e, v):
    e(f"""
    v_lshrrev_b32 v12, 5, v1
    v_and_b32 v13, 31, v1
    v_mul_u32_u24 v14, 912, v13
    v_lshl_add_u32 v14, v12, 4, v14
    v_add_u32 v{v}, {XB}, v14
    """)
def xfrag_reads(e, v):
    if 'noxf' in ABL: return
    for s in range(28): e(f"ds_read_b128 {xfrag(s)}, v{v} offset:{32*s}")

def attn_path(e):
    Q, S, P, KV, CR = 16, (48, 64), (80, 88), (96, 112), 8
    e(f"s_setprio {APRIO}")
    if PREF:
        e(f"""
        s_lshr_b32 s64, s2, 3
        v_lshlrev_b32 v8, {PSH}, v1
        s_mov_b32 s55, 0x00020000
        s_cmp_lg_u32 s3, 0
        s_cbranch_scc1 A_P1
        s_mov_b32 s52, s8
        s_mov_b32 s53, s9
        s_lshl_b32 s65, s4, 2
        s_add_u32 s65, s65, s5
        s_mul_i32 s65, s65, 7168
        s_add_u32 s54, s65, 7168
        s_branch A_PGO
        A_P1:
        s_cmp_eq_u32 s3, 3
        s_cbranch_scc1 A_P3
        s_mov_b32 s52, s10
        s_mov_b32 s53, s11
        s_mul_i32 s65, s64, 12544
        s_add_u32 s54, s65, 12544
        s_cmp_eq_u32 s3, 1
        s_cselect_b32 s66, 0, 6272
        s_cselect_b32 s67, 6272, 0
        s_add_u32 s65, s65, s66
        s_sub_u32 s54, s54, s67
        s_branch A_PGO
        A_P3:
        s_cmp_lt_u32 s64, 16
        s_cselect_b32 s52, s12, s14
        s_cselect_b32 s53, s13, s15
        s_and_b32 s65, s64, 15
        s_mul_i32 s65, s65, 1664
        s_add_u32 s54, s65, 1664
        s_min_u32 s54, s54, {448*56}
        A_PGO:
        buffer_load_dword v100, v8, s[52:55], s65 offen
        """)
        if PSH == 6: e("v_add_u32 v8, 4096, v8\nbuffer_load_dword v100, v8, s[52:55], s65 offen")
    e("s_barrier")
    srd(e, 48, 8, 2048 * 896)
    e(f"""
    s_mul_i32 s64, s3, {8*912}
    s_add_u32 m0, s64, {XB}
    s_lshl_b32 s65, s4, 5
    s_lshl_b32 s66, s3, 3
    s_add_u32 s65, s65, s66
    s_mul_i32 s65, s65, 896
    s_mov_b32 exec_hi, 0x00ffffff
    """)
    for i in range(8):
        e("buffer_load_dwordx4 v2, s[48:51], s65 offen lds")
        if i < 7: e("s_add_u32 m0, m0, 912\ns_add_u32 s65, s65, 896")
    e(f"""
    s_mov_b32 exec_hi, -1
    s_cmp_ge_u32 s5, 2
    s_cbranch_scc1 A_NOIMG
    s_cmp_eq_u32 s5, 0
    s_cselect_b32 s52, s12, s14
    s_cselect_b32 s53, s13, s15
    s_mov_b32 s54, {448*56}
    s_mov_b32 s55, 0x00020000
    s_mul_i32 s65, s3, {7*1024}
    s_add_u32 m0, s65, {IMG}
    s_nop 0
    """)
    for i in range(7):
        e("buffer_load_dwordx4 v2, s[52:55], s65 offen lds")
        if i < 6: e("s_add_u32 m0, m0, 1024\ns_add_u32 s65, s65, 1024")
    e("A_NOIMG:\n@S 1")
    if ABL == "kgen": e("@E 0\ns_endpgm")
    if 'dmaonly' in ABL: e("s_cmp_lt_u32 s3, 2\ns_cbranch_scc1 BAIL")
    e("s_cmp_ge_u32 s3, 2\ns_cbranch_scc1 A_DMAW")
    srd(e, 56, 36, 896)
    GW = 12
    e(f"""
    buffer_load_dwordx4 {vr(GW,4)}, v2, s[56:59], 0 offen
    v_mov_b32 v8, -1
    v_mov_b32 v9, -1
    v_mov_b32 v10, -1
    v_mov_b32 v11, -1
    s_mul_i32 s65, s4, 28672
    s_mul_i32 s66, s5, 7168
    s_add_u32 s65, s65, s66
    s_lshl_b32 s66, s3, 12
    s_add_u32 s65, s65, s66
    s_add_u32 s65, s65, {BT2}
    s_lshl_b32 s67, s3, 10
    s_sub_u32 s67, s65, s67
    buffer_store_dwordx4 v[8:11], v2, s[44:47], s65 offen sc1
    buffer_store_dwordx4 v[8:11], v2, s[44:47], s65 offen offset:1024 sc1
    buffer_store_dwordx4 v[8:11], v2, s[44:47], s65 offen offset:2048 sc1
    buffer_store_dwordx4 v[8:11], v2, s[44:47], s67 offen offset:3072 sc1
    s_lshl_b32 s65, s4, 2
    s_add_u32 s65, s65, s5
    s_lshl_b32 s65, s65, 13
    s_add_u32 s65, s65, s66
    s_add_u32 s65, s65, {OX}
    """)
    for i in range(4): e(f"buffer_store_dwordx4 v[8:11], v2, s[44:47], s65 offen offset:{1024*i} sc1")
    XA, WA, XT = 6, 7, 60
    e(f"""
    v_and_b32 v16, 15, v1
    v_lshrrev_b32 v17, 4, v1
    s_lshl_b32 s65, s3, 4
    v_add_u32 v18, s65, v16
    v_mul_u32_u24 v18, 912, v18
    v_lshl_add_u32 v18, v17, 4, v18
    v_add_u32 v{XA}, {XB}, v18
    v_bfe_u32 v18, v1, 2, 2
    v_lshl_add_u32 v18, v17, 3, v18
    v_and_b32 v19, 3, v1
    v_lshlrev_b32 v19, 3, v19
    v_mad_u32_u24 v20, v18, 56, v19
    v_add_u32 v{WA}, {IMG}, v20
    v_mul_u32_u24 v18, 912, v18
    v_add_u32 v10, v18, v19
    s_mul_i32 s65, s5, 224
    s_lshl_b32 s66, s3, 7
    s_add_u32 s65, s65, s66
    s_add_u32 s65, s65, {XB}
    v_add_u32 v10, s65, v10
    v_and_b32 v18, 1, v17
    v_lshl_add_u32 v18, v18, 5, v16
    v_lshlrev_b32 v18, 4, v18
    v_lshrrev_b32 v19, 5, v1
    s_cmp_eq_u32 s5, 0
    s_cselect_b32 s65, 10, 8
    v_lshlrev_b32 v19, s65, v19
    v_add_u32 v9, v18, v19
    v_lshrrev_b32 v18, 1, v16
    v_lshlrev_b32 v18, 13, v18
    v_and_b32 v19, 1, v1
    v_lshl_add_u32 v18, v19, 6, v18
    v_lshl_add_u32 v11, v17, 4, v18
    v_lshrrev_b32 v18, 5, v1
    v_and_b32 v19, 31, v1
    v_mul_u32_u24 v19, 912, v19
    v_lshl_add_u32 v19, v18, 4, v19
    v_add_u32 v8, {XB}, v19
    s_mul_i32 s65, s5, 56
    s_lshl_b32 s66, s3, 5
    s_add_u32 s65, s65, s66
    s_lshl_b32 s65, s65, 13
    s_lshl_b32 s66, s4, 7
    s_add_u32 s65, s65, s66
    s_add_u32 s69, s65, {XT2}
    s_lshl_b32 s65, s5, 1
    s_add_u32 s65, s65, s3
    s_lshl_b32 s65, s65, 6
    s_add_u32 s65, s65, s4
    s_lshl_b32 s65, s65, 6
    s_add_u32 s70, s65, {FX}
    s_lshl_b32 s65, s4, 2
    s_lshl_b32 s66, s5, 1
    s_add_u32 s65, s65, s66
    s_add_u32 s65, s65, s3
    s_lshl_b32 s65, s65, 6
    s_add_u32 s71, s65, {FLG}
    s_lshl_b32 s68, s4, 12
    """)
    for i in range(64): e(f"v_accvgpr_write_b32 a{i}, 0")
    e("s_waitcnt vmcnt(9)")
    signal(e, C1)
    wait(e, C1, 4)
    e("@S 2")
    for g in range(4):
        e(f"ds_read_b64_tr_b16 {vr(XT+4*g,2)}, v10 offset:{32*g}\nds_read_b64_tr_b16 {vr(XT+2+4*g,2)}, v10 offset:{32*g+4*912}")
    e("s_waitcnt lgkmcnt(4)")
    for g in range(3):
        if g == 2: e("s_waitcnt lgkmcnt(0)")
        e(f"buffer_store_dwordx4 {vr(XT+4*g,4)}, v11, s[44:47], s69 offen sc1\ns_add_u32 s69, s69, 65536")
    e(f"""
    s_cmp_eq_u32 s3, 1
    s_cbranch_scc1 A_XT3
    buffer_store_dwordx4 {vr(XT+12,4)}, v11, s[44:47], s69 offen sc1
    A_XT3:
    """)
    nonce_issue(e, 30)
    e("s_cmp_ge_u32 s5, 2\ns_cbranch_scc1 A_NOKV")
    e("s_cmp_eq_u32 s5, 1\ns_cbranch_scc1 A_V")
    D, FB = 16, 32
    DD = 76
    def rd(s):
        b = 24 + 12 * (s % 3)
        if s % 3 == 0: b = 84
        return b
    def rds(s):
        b = rd(s)
        return [f"ds_read_b128 {vr(b+8,4)}, v{XA} offset:{64*s}"] + \
               [f"ds_read_b64_tr_b16 {vr(b+4*dt+2*i,2)}, v{WA} offset:{1792*s+224*i+32*dt}" for dt in range(2) for i in range(2)]
    def mfk(s):
        b = rd(s)
        return "\n".join(f"v_mfma_f32_16x16x32_bf16 {vr(D+4*dt,4)}, {vr(b+4*dt,4)}, {vr(b+8,4)}, " + ("0" if s == 0 else vr(D+4*dt,4)) for dt in range(2))
    def mfv(s):
        b = rd(s)
        return "\n".join(f"v_mfma_f32_16x16x32_bf16 {vr(D+4*dt,4)}, {vr(b+8,4)}, {vr(b+4*dt,4)}, " + ("0" if s == 0 else vr(D+4*dt,4)) for dt in range(2))
    gemm_loop(e, 14, rds, mfk, 2, 5)
    signal(e, KVD)
    e(f"""
    s_mov_b32 s66, 0
    s_mov_b32 s67, 0xffff0000
    s_lshl_b32 s65, s3, 8
    s_add_u32 s68, s68, s65
    v_mov_b32 v28, 0x3f803f80
    v_mov_b32 v29, 0x00003f80
    v_cvt_pk_bf16_f32 v24, v16, v17
    v_cvt_pk_bf16_f32 v25, v18, v19
    v_cvt_pk_bf16_f32 v26, v20, v21
    v_cvt_pk_bf16_f32 v27, v22, v23
    v_cndmask_b32 v26, v26, v28, s[66:67]
    v_cndmask_b32 v27, v27, v29, s[66:67]
    v_mul_f32 v28, v20, v20
    v_fmac_f32 v28, v21, v21
    v_permlane32_swap_b32 v24, v26
    v_permlane32_swap_b32 v25, v27
    v_fmac_f32 v28, v22, v22
    v_fmac_f32 v28, v23, v23
    buffer_store_dwordx4 v[24:27], v9, s[44:47], s68 offen sc1
    v_cndmask_b32 v28, v28, 0, s[66:67]
    v_fmac_f32 v28, v16, v16
    v_fmac_f32 v28, v17, v17
    v_fmac_f32 v28, v18, v18
    v_fmac_f32 v28, v19, v19
    v_mov_b32 v29, v28
    s_nop 1
    v_permlane16_swap_b32 v28, v29
    s_nop 1
    v_add_f32 v28, v28, v29
    v_mov_b32 v29, v28
    s_nop 1
    v_permlane32_swap_b32 v28, v29
    s_nop 1
    v_add_f32 v31, v28, v29
    """)
    for c in (1, 2, 4, 8): e(f"s_nop 1\nv_max_f32_dpp v31, v31, v31 row_ror:{c} row_mask:0xf bank_mask:0xf")
    e("s_branch A_KVFLAG\nA_V:")
    gemm_loop(e, 14, rds, mfv, 2, 5)
    signal(e, KVD)
    e(f"""
    v_and_b32 v28, 15, v1
    v_cmp_eq_u32 vcc, 12, v28
    s_lshl_b32 s65, s3, 10
    s_add_u32 s68, s68, s65
    v_mov_b32 v28, 0x3f803f80
    v_mov_b32 v31, 0
    v_cvt_pk_bf16_f32 v24, v16, v17
    v_cvt_pk_bf16_f32 v25, v18, v19
    v_cvt_pk_bf16_f32 v26, v20, v21
    v_cvt_pk_bf16_f32 v27, v22, v23
    v_cndmask_b32 v26, v26, v28, vcc
    v_cndmask_b32 v27, v27, v28, vcc
    s_nop 1
    v_permlane32_swap_b32 v24, v26
    v_permlane32_swap_b32 v25, v27
    s_nop 0
    buffer_store_dwordx4 v[24:27], v9, s[44:47], s68 offen offset:2048 sc1
    A_KVFLAG:
    s_waitcnt vmcnt(1)
    """)
    nonce_check(e, 30)
    e(f"""
    s_mov_b64 exec, 1
    buffer_store_dword v30, v3, s[44:47], s70 offen sc1
    s_mov_b64 exec, -1
    """)
    xfrag_reads(e, 8)
    e(f"""
    s_waitcnt vmcnt(1)
    s_mov_b64 exec, 1
    buffer_store_dwordx2 v[30:31], v3, s[44:47], s71 offen sc1
    s_mov_b64 exec, -1
    @S 3
    """)
    signal(e, XF_)
    e("s_cmp_eq_u32 s3, 0\ns_cbranch_scc1 A_QSYNC")
    wait(e, KVD, 2)
    e("s_branch A_GATE\nA_NOKV:")
    xfrag_reads(e, 8)
    signal(e, XF_)
    e("s_waitcnt vmcnt(0)")
    nonce_check(e, 30)
    e(f"""
    s_mov_b64 exec, 1
    buffer_store_dword v30, v3, s[44:47], s70 offen sc1
    s_mov_b64 exec, -1
    @S 3
    s_cmp_eq_u32 s3, 0
    s_cbranch_scc1 A_QSYNC
    A_GATE:
    v_lshlrev_b32 v8, 11, v1
    v_add_u32 v8, {WB}, v8
    s_mov_b32 exec_hi, 0x00ffffff
    """)
    for j in range(8):
        op = "ds_write_b16_d16_hi" if j & 1 else "ds_write_b16"
        e(f"{op} v8, v{GW + j//2} offset:{256*j + (224 ^ (64*(j&3)))}")
    e("s_mov_b32 exec_hi, -1")
    signal(e, CA)
    e("s_branch A_QSYNC\nA_DMAW:")
    srd(e, 56, 10, 448 * 896)
    wdma_voff(e, 6)
    xfrag_addr(e, 8)
    MASK = "s_mov_b32 exec_lo, 0xf3ff3fff\ns_mov_b32 exec_hi, 0xfff3ff3f"
    e(f"""
    s_sub_u32 s65, s3, 2
    s_lshl_b32 s66, s65, 10
    s_add_u32 m0, s66, {WB}
    s_mul_i32 s65, s65, 3584
    s_mul_i32 s66, s5, 224
    s_add_u32 s65, s65, s66
    {MASK}
    """)
    def dma_loop(n, lab):
        if 'nodma' in ABL: return
        e(f"""
        s_mov_b32 s66, {n//2}
        {lab}:
        buffer_load_dwordx4 v6, s[56:59], s65 offen lds
        s_add_u32 m0, m0, 2048
        s_add_u32 s65, s65, 7168
        buffer_load_dwordx4 v6, s[56:59], s65 offen lds
        s_add_u32 m0, m0, 2048
        s_add_u32 s65, s65, 7168
        s_sub_u32 s66, s66, 1
        s_cmp_lg_u32 s66, 0
        s_cbranch_scc1 {lab}
        """)
    dma_loop(NPRE, "A_DL1")
    e(f"s_waitcnt vmcnt({NPRE})")
    signal(e, C1)
    e("@S 2")
    if 'dmaonly' not in ABL: wait(e, C1, 4)
    xfrag_reads(e, 8)
    signal(e, XF_, restore=MASK)
    dma_loop(42 - NPRE, "A_DL2")
    e("s_cmp_ge_u32 s5, 2\ns_cbranch_scc1 A_DL3P")
    if 'dmaonly' not in ABL: wait(e, KVD, 2)
    e("A_DL3P:")
    dma_loop(14, "A_DL3")
    e("s_mov_b64 exec, -1\n@S 3")
    for i in range(64): e(f"v_accvgpr_write_b32 a{i}, 0")
    e("s_waitcnt vmcnt(14)")
    if 'dmaonly' in ABL: e("s_waitcnt vmcnt(0)\n@S 4\n@E 0\ns_endpgm")
    signal(e, CA)
    nonce_issue(e, 30)
    e("A_QSYNC:")
    e(f"""
    v_lshrrev_b32 v12, 5, v1
    v_bfe_u32 v13, v1, 2, 2
    v_lshl_add_u32 v14, v12, 3, v13
    v_lshlrev_b32 v14, 8, v14
    v_bfe_u32 v15, v1, 4, 1
    v_lshlrev_b32 v15, 5, v15
    v_and_b32 v16, 3, v1
    v_lshl_add_u32 v15, v16, 3, v15
    s_mul_i32 s65, s3, 56
    v_add_u32 v15, s65, v15
    v_lshlrev_b32 v13, 6, v13
    v_xor_b32 v15, v15, v13
    v_add_u32 v14, v14, v15
    v_add_u32 v7, {WB}, v14
    v_add_u32 v8, {WB + 65536}, v14
    s_mov_b32 s68, {f2u(QSCALE)}
    v_lshlrev_b32 v9, 6, v1
    s_lshl_b32 s69, s3, 12
    s_add_u32 s69, s69, {FLG}
    s_lshl_b32 s65, s3, 11
    s_add_u32 s65, s65, {WB}
    v_add_u32 v10, s65, v2
    v_lshlrev_b32 v11, 2, v1
    s_lshl_b32 s65, s3, 8
    s_add_u32 s65, s65, {WB + 8192}
    v_add_u32 v12, s65, v11
    """)
    wait(e, CA, 3)
    e("@S 4")
    ACC, FB = 48, 64
    WBUF = [16, 20, 24, 32, 36, 40]
    L = Lds(e); DEP = 5
    def rq(s):
        b = WBUF[s % 6]; w = 7 if s < 16 else 8; o = 4096 * (s % 16)
        L.op(f"ds_read_b64_tr_b16 {vr(b,2)}, v{w} offset:{o}")
        L.op(f"ds_read_b64_tr_b16 {vr(b+2,2)}, v{w} offset:{o+1024}", s)
    for s in range(DEP): rq(s)
    for s in range(28):
        if s == 11:
            e("s_cmp_lt_u32 s3, 2\ns_cbranch_scc1 A_NOCB\ns_waitcnt vmcnt(0)")
            signal(e, CB)
            e("A_NOCB:")
        if s == 14: L.op(f"ds_read_b32 v5, v3 offset:{CB}", "cb")
        if s + DEP == 21:
            L.wait("cb")
            e(f"""
            v_readfirstlane_b32 s64, v5
            s_cmp_ge_u32 s64, 2
            s_cbranch_scc1 A_CBOK
            """)
            wait(e, CB, 2)
            e("A_CBOK:")
        if s + DEP < 28: rq(s + DEP)
        L.wait(s)
        e(f"v_mfma_f32_32x32x16_bf16 {vr(ACC,16)}, {vr(WBUF[s%6],4)}, {xfrag(s)}, " + ("0" if s == 0 else vr(ACC,16)))
    signal(e, C3)
    e("s_waitcnt vmcnt(0)")
    nonce_check(e, 30)
    e(f"""
    buffer_load_dwordx2 v[14:15], v9, s[44:47], s69 offen sc1
    s_nop 3
    s_cmp_lg_u32 s3, 3
    s_cbranch_scc1 A_NOG
    v_mul_f32 v13, {f2u(-LOG2E)}, v{ACC+12}
    v_exp_f32 v13, v13
    s_nop 0
    v_add_f32 v13, 1.0, v13
    v_rcp_f32 v13, v13
    s_mov_b32 exec_lo, 0
    ds_write_b32 v11, v13 offset:{GOF - 128}
    s_mov_b32 exec_lo, -1
    A_NOG:
    """)
    for r in range(16): e(f"v_mul_f32 v{ACC+r}, s68, v{ACC+r}")
    for i in range(8): e(f"v_cvt_pk_bf16_f32 v{FB+i}, v{ACC+2*i}, v{ACC+2*i+1}")
    e(f"""
    v_cndmask_b32 v{FB+6}, v{FB+6}, 0, s[62:63]
    v_cndmask_b32 v{FB+7}, v{FB+7}, 0, s[62:63]
    v_mov_b32 v13, 0
    """)
    for i in range(8): e(f"v_dot2c_f32_bf16 v13, v{FB+i}, v{FB+i}")
    e("""
    s_nop 2
    v_mov_b32 v6, v13
    s_nop 1
    v_permlane32_swap_b32 v13, v6
    s_nop 1
    v_add_f32 v13, v13, v6
    """)
    wait(e, C3, 4)
    e(f"""
    ds_write_b128 v10, {vr(FB,4)}
    ds_write_b128 v10, {vr(FB+4,4)} offset:1024
    ds_write_b32 v12, v13
    """)
    signal(e, C4)
    wait(e, C4, 4)
    for j in range(4):
        e(f"""
        s_add_u32 s65, s3, {j+1}
        s_and_b32 s65, s65, 3
        s_lshl_b32 s66, s65, 11
        s_add_u32 s66, s66, {WB}
        v_add_u32 v10, s66, v2
        s_lshl_b32 s66, s65, 8
        s_add_u32 s66, s66, {WB + 8192}
        v_add_u32 v12, s66, v11
        ds_read_b128 {vr(Q+8*j,4)}, v10
        ds_read_b128 {vr(Q+8*j+4,4)}, v10 offset:1024
        ds_read_b32 v{48+j}, v12
        """)
    signal(e, C5)
    e(f"""
    @S 5
    s_lshl_b32 s65, s3, 16
    s_add_u32 s52, s42, s65
    s_addc_u32 s53, s43, 0
    s_mov_b32 s54, 0x10000
    s_mov_b32 s55, 0x00020000
    s_lshr_b32 s70, s2, 3
    s_add_u32 s70, s70, s5
    s_lshl_b32 s70, s70, 13
    s_and_b32 s70, s70, {0xffff if ROT else 0}
    A_POLL:
    s_waitcnt vmcnt(0)
    v_cmp_ne_u32 vcc, s60, v14
    s_cbranch_vccz A_GOT
    s_sub_u32 s61, s61, 1
    s_cbranch_scc1 BAIL
    buffer_load_dwordx2 v[14:15], v9, s[44:47], s69 offen sc1
    s_branch A_POLL
    A_GOT:
    buffer_load_dwordx4 {vr(KV[0],4)}, v2, s[52:55], s70 offen sc1
    buffer_load_dwordx4 {vr(KV[0]+4,4)}, v2, s[52:55], s70 offen offset:1024 sc1
    buffer_load_dwordx4 {vr(KV[0]+8,4)}, v2, s[52:55], s70 offen offset:2048 sc1
    buffer_load_dwordx4 {vr(KV[0]+12,4)}, v2, s[52:55], s70 offen offset:3072 sc1
    s_add_u32 s70, s70, 4096
    v_and_b32 v13, 7, v1
    v_lshlrev_b32 v13, 12, v13
    s_lshl_b32 s71, s4, 6
    s_add_u32 s71, s71, {FX}
    buffer_load_dword v12, v13, s[44:47], s71 offen sc1
    buffer_load_dwordx4 {vr(KV[1],4)}, v2, s[52:55], s70 offen sc1
    buffer_load_dwordx4 {vr(KV[1]+4,4)}, v2, s[52:55], s70 offen offset:1024 sc1
    """)
    for c in (1, 2, 4, 8): e(f"v_max_f32_dpp v15, v15, v15 row_ror:{c} row_mask:0xf bank_mask:0xf\ns_nop 1")
    e(f"""
    v_mov_b32 v14, v15
    s_nop 1
    v_permlane16_swap_b32 v15, v14
    s_nop 1
    v_max_f32 v15, v15, v14
    v_mov_b32 v14, v15
    s_nop 1
    v_permlane32_swap_b32 v15, v14
    s_nop 1
    v_max_f32 v15, v15, v14
    s_mov_b32 s72, {f2u(SAFE_BOUND)}
    s_waitcnt lgkmcnt(0)
    """)
    for j in range(4): e(f"v_mul_f32 v{48+j}, v15, v{48+j}")
    for j in range(4): e(f"v_sqrt_f32 v{48+j}, v{48+j}")
    for i in range(8): e(f"v_mov_b32 v{P[1]+i}, 0")
    e(f"""
    v_max_f32 v52, v48, v49
    v_max3_f32 v52, v52, v50, v51
    v_cmp_nle_f32 vcc, v52, s72
    """)
    for j in range(4): e(f"v_sub_f32 v{48+j}, {f2u(SHIFT)}, v{48+j}")
    for i in range(8): e(f"v_mov_b32 v{KV[1]+8+i}, 0")
    e("s_cbranch_vccnz A_FALLBACK")
    for j in range(4): e(f"v_cvt_pk_bf16_f32 v{48+j}, v{48+j}, 0")
    for j in range(4): e(f"v_cndmask_b32 v{Q+8*j+6}, v{Q+8*j+6}, v{48+j}, s[62:63]")
    for j in range(4): e(f"v_lshlrev_b32 v{CR+j}, 16, v{48+j}")
    e(f"""
    A_MAIN:
    s_mul_i32 s65, s3, 12288
    s_add_u32 s65, s65, {WB}
    v_add_u32 v6, s65, v2
    v_lshlrev_b32 v15, 2, v1
    s_waitcnt vmcnt(2)
    A_SIB:
    v_cmp_ne_u32 vcc, s60, v12
    s_cbranch_vccz A_SIBOK
    s_sub_u32 s61, s61, 1
    s_cbranch_scc1 BAIL
    buffer_load_dword v12, v13, s[44:47], s71 offen sc1
    s_waitcnt vmcnt(0)
    s_branch A_SIB
    A_SIBOK:
    s_setprio {LPRIO}
    @S 6
    """)
    def qk(i, tile):
        kb = KV[(tile >> 2) & 1]; s = S[tile & 1]; q = Q + 8 * (tile & 3)
        return f"v_mfma_f32_32x32x16_bf16 {vr(s,16)}, {vr(kb+4*i,4)}, {vr(q+4*i,4)}, " + ("0" if i == 0 else vr(s,16))
    def pv(i, tile):
        vb = KV[(tile >> 2) & 1] + 8; p = P[tile & 1]; o = 16 * (tile & 3)
        return f"v_mfma_f32_32x32x16_bf16 {ar(o,16)}, {vr(vb+4*i,4)}, {vr(p+4*i,4)}, {ar(o,16)}"
    def ld(reg, off): return f"buffer_load_dwordx4 {vr(reg,4)}, v2, s[52:55], s70 offen offset:{off} sc1"
    def pw(d, i): return f"ds_write_b128 v6, {ar(16*d+4*i,4)} offset:{4096*d+1024*i}"
    e(qk(0, 0)); e(qk(1, 0))
    e(f"v_mov_b32 v{S[1]+14}, 0\nv_mov_b32 v{S[1]+15}, 0\ns_mov_b32 s73, 7")
    for d in range(3):
        e(f"s_sub_u32 s65, s3, {d+1}\ns_and_b32 s65, s65, 3\ns_mul_i32 s65, s65, 12288\ns_add_u32 s65, s65, {WB + 4096*d}\nv_add_u32 v{12+d}, s65, v2")
    pat = "pCeeee" "qceecee" "Qceeceec" "Peeceec"
    def step(j, last):
        s = S[j & 1]; p = P[j & 1]; sp = S[(j + 1) & 1]; pp = P[(j + 1) & 1]
        ex = [f"v_exp_f32 v{s+i}, v{s+i}" for i in range(16)]
        cv = [f"v_cvt_pk_bf16_f32 v{p+i}, v{s+2*i}, v{s+2*i+1}" for i in range(7)]
        side = {"p": [], "q": [], "Q": [], "P": []}
        pre = {"p": [], "q": []}
        if j == 1: pre["p"] = ["s_waitcnt vmcnt(2)"]; side["q"] = [ld(KV[1] + 8, 2048)]; side["Q"] = [ld(KV[1] + 12, 3072)]; side["P"] = ["s_add_u32 s70, s70, 4096", "s_and_b32 s70, s70, 0xffff"]
        if j == 3: side["p"] = ["s_waitcnt vmcnt(2)"]
        if not last:
            if j == 3: side["Q"] = [ld(KV[0], 0)]; side["P"] = [ld(KV[0] + 4, 1024)]
            if j == 5: pre["p"] = ["s_waitcnt vmcnt(2)"]; side["q"] = [ld(KV[0] + 8, 2048)]; side["Q"] = [ld(KV[0] + 12, 3072)]; side["P"] = ["s_add_u32 s70, s70, 4096"]
            if j == 7: side["p"] = ["s_waitcnt vmcnt(2)"]; side["Q"] = [ld(KV[1], 0), "s_sub_u32 s73, s73, 1"]; side["P"] = [ld(KV[1] + 4, 1024), "s_cmp_lg_u32 s73, 0"]
        else:
            if j == 2: side["q"] = [f"ds_read_b32 v5, v3 offset:{C7}"]
            if j == 4: side["p"] = ["s_waitcnt lgkmcnt(0)"]; side["q"] = ["v_readfirstlane_b32 s64, v5"]; side["Q"] = ["s_cmp_ge_u32 s64, 4", "s_cbranch_scc0 A_C7WAIT", "A_C7OK:"]
            if j == 5:
                pre["p"] = ["s_waitcnt vmcnt(0)"]
                for k, ch in enumerate("pqQP"):
                    side[ch] = [f"s_add_u32 s65, s3, {k+1}", "s_and_b32 s65, s65, 3", "s_lshl_b32 s65, s65, 10", f"s_add_u32 s65, s65, {CX + 256*k}",
                                "v_add_u32 v7, s65, v15", f"ds_write_b32 v7, v{CR+k}"]
            if j >= 6: side["q"] = [pw(j-6, 0)]; side["Q"] = [pw(j-6, 1)]; side["P"] = [pw(j-6, 2), pw(j-6, 3)]
        for ch in pat:
            if ch == "p":
                for x in pre["p"]: e(x)
                e(pv(0, (j - 1) & 7))
            elif ch == "P": e(pv(1, (j - 1) & 7))
            elif ch == "q":
                if not (last and j == 7): e(qk(0, j + 1))
            elif ch == "Q":
                if not (last and j == 7): e(qk(1, j + 1))
            elif ch == "C": e(f"v_cvt_pk_bf16_f32 v{pp+7}, v{sp+14}, v{sp+15}")
            elif ch == "e": e(ex.pop(0))
            elif ch == "c": e(cv.pop(0))
            if ch in side:
                for x in side[ch]: e(x)
        assert not ex and not cv
    e(".p2align 6\nA_LOOP:")
    for j in range(8): step(j, False)
    e("s_cbranch_scc1 A_LOOP")
    for j in range(8): step(j, True)
    e("s_setprio 3")
    e(pv(0, 7))
    e(f"""
    v_cvt_pk_bf16_f32 v{P[1]+7}, v{S[1]+14}, v{S[1]+15}
    s_lshl_b32 s65, s3, 10
    s_add_u32 s65, s65, {CX}
    """)
    e(pv(1, 7))
    e(f"""
    v_add_u32 v7, s65, v15
    s_lshl_b32 s65, s4, 2
    s_add_u32 s65, s65, s5
    s_lshl_b32 s65, s65, 13
    """)
    for i in range(4): e(pw(2, i))
    e(f"""
    @T 1
    s_lshl_b32 s66, s3, 11
    s_add_u32 s74, s65, s66
    s_add_u32 s74, s74, {OX}
    s_add_u32 s65, s66, {STG}
    v_add_u32 v6, s65, v2
    s_nop 1
    """)
    for i in range(16): e(f"v_accvgpr_read_b32 v{16+i}, a{48+i}")
    e(f"""
    s_waitcnt lgkmcnt(0)
    s_barrier
    @T 2
    ds_read2st64_b32 v[32:33], v7 offset0:0 offset1:1
    ds_read2st64_b32 v[34:35], v7 offset0:2 offset1:3
    """)
    R = 48
    for d in range(3):
        for i in range(4): e(f"ds_read_b128 {vr(R+16*d+4*i,4)}, v{12+d} offset:{1024*i}")
    for d in range(1, 4):
        e(f"""
        s_add_u32 s65, s5, {d}
        s_and_b32 s65, s65, 3
        s_lshl_b32 s65, s65, 13
        s_add_u32 s65, s65, s66
        s_lshl_b32 s{75+d}, s4, 15
        s_add_u32 s{75+d}, s{75+d}, s65
        s_add_u32 s{75+d}, s{75+d}, {OX}
        """)
    e(f"""
    s_waitcnt lgkmcnt(12)
    v_min_f32 v36, v32, v33
    v_min3_f32 v36, v36, v34, v35
    """)
    for d in (3, 0, 1, 2): e(f"v_sub_f32 v{32+d}, v36, v{32+d}")
    for d in (3, 0, 1, 2): e(f"v_exp_f32 v{32+d}, v{32+d}")
    for i in range(16): e(f"v_mul_f32 v{16+i}, v35, v{16+i}")
    for d in range(3):
        e(f"s_waitcnt lgkmcnt({4*(2-d)})")
        for i in [12] + [i for i in range(16) if i != 12]: e(f"v_fmac_f32 v{16+i}, v{32+d}, v{R+16*d+i}" if (d < 2 or i == 12) else "")
    e(f"""
    v_mov_b32 v36, v28
    v_mov_b32 v37, v28
    v_fmac_f32 v16, v34, v{R+32}
    v_fmac_f32 v17, v34, v{R+33}
    v_permlane32_swap_b32 v36, v37
    v_fmac_f32 v18, v34, v{R+34}
    v_fmac_f32 v19, v34, v{R+35}
    v_rcp_f32 v37, v37
    """)
    for i in range(4, 16):
        if i != 12: e(f"v_fmac_f32 v{16+i}, v34, v{R+32+i}")
    e("s_mov_b32 s75, 0xfffffffe")
    for i in range(16): e(f"v_mul_f32 v{16+i}, v{16+i}, v37")
    for i in range(8): e(f"v_cvt_pk_bf16_f32 v{40+i}, v{16+2*i}, v{17+2*i}")
    e(f"v_cndmask_b32 v46, v46, 0, s[62:63]\nv_cndmask_b32 v47, v47, 0, s[62:63]")
    for i in range(8): e(f"v_min_u32 v{40+i}, s75, v{40+i}")
    e(f"""
    buffer_store_dwordx4 v[40:43], v2, s[44:47], s74 offen sc1
    buffer_store_dwordx4 v[44:47], v2, s[44:47], s74 offen offset:1024 sc1
    ds_write_b128 v6, v[40:43]
    ds_write_b128 v6, v[44:47] offset:1024
    """)
    signal(e, G0)
    e("@T 3\ns_mov_b32 s73, 14\nA_GATHER:")
    for d in range(1, 4):
        e(f"""
        s_bitcmp0_b32 s73, {d}
        s_cbranch_scc1 A_GL{d}
        buffer_load_dwordx4 {vr(40+8*d,4)}, v2, s[44:47], s{75+d} offen sc1
        buffer_load_dwordx4 {vr(44+8*d,4)}, v2, s[44:47], s{75+d} offen offset:1024 sc1
        A_GL{d}:
        """)
    e("s_waitcnt vmcnt(0)")
    for d in range(1, 4):
        b = 40 + 8*d
        e(f"""
        s_bitcmp0_b32 s73, {d}
        s_cbranch_scc1 A_GC{d}
        v_max3_u32 v16, v{b}, v{b+1}, v{b+2}
        v_max3_u32 v16, v16, v{b+3}, v{b+4}
        v_max3_u32 v16, v16, v{b+5}, v{b+6}
        v_max_u32 v16, v16, v{b+7}
        v_cmp_eq_u32 vcc, -1, v16
        s_cbranch_vccnz A_GC{d}
        ds_write_b128 v6, {vr(b,4)} offset:{8192*d}
        ds_write_b128 v6, {vr(b+4,4)} offset:{8192*d+1024}
        s_bitset0_b32 s73, {d}
        """)
        signal(e, G0 + 4*d)
        e(f"A_GC{d}:")
    e(f"""
    s_sub_u32 s61, s61, 1
    s_cbranch_scc1 BAIL
    s_cmp_lg_u32 s73, 0
    s_cbranch_scc1 A_GATHER
    s_waitcnt lgkmcnt(0)
    @T 4
    @E 0
    s_endpgm
    A_C7WAIT:
    """)
    wait(e, C7, 4)
    e("s_branch A_C7OK")
    T = 52
    e(f"""
    A_FALLBACK:
    s_lshl_b32 s74, s3, 16
    s_mov_b32 s75, 16
    """)
    for j in range(4): e(f"v_mov_b32 v{48+j}, 0xff800000")
    e(f"""
    A_FB_LOOP:
    buffer_load_dwordx4 {vr(T,4)}, v2, s[44:47], s74 offen sc1
    buffer_load_dwordx4 {vr(T+4,4)}, v2, s[44:47], s74 offen offset:1024 sc1
    s_add_u32 s74, s74, 4096
    s_waitcnt vmcnt(0)
    """)
    for j in range(4):
        e(f"v_mfma_f32_32x32x16_bf16 {vr(64,16)}, {vr(T,4)}, {vr(Q+8*j,4)}, 0")
        e(f"v_mfma_f32_32x32x16_bf16 {vr(64,16)}, {vr(T+4,4)}, {vr(Q+8*j+4,4)}, {vr(64,16)}")
        e("s_nop 11")
        for i in range(8): e(f"v_max3_f32 v{48+j}, v{48+j}, v{64+2*i}, v{65+2*i}")
    e(f"""
    s_sub_u32 s75, s75, 1
    s_cmp_lg_u32 s75, 0
    s_cbranch_scc1 A_FB_LOOP
    """)
    for j in range(4): e(f"v_mov_b32 v{52+j}, v{48+j}")
    e("s_nop 0")
    for j in range(4): e(f"v_permlane32_swap_b32 v{48+j}, v{52+j}")
    e("s_nop 0")
    for j in range(4):
        m = 48 + j; t = 56
        e(f"""
        v_max_f32 v{m}, v{m}, v{52+j}
        v_sub_f32 v{m}, 0, v{m}
        v_cvt_pk_bf16_f32 v{t}, v{m}, v{m}
        v_and_b32 v{t+4}, 0xffff0000, v{t}
        v_sub_f32 v{m}, v{m}, v{t+4}
        v_cvt_pk_bf16_f32 v{t+2}, v{m}, v{m}
        v_and_b32 v{t+1}, 0xffff0000, v{t+2}
        v_sub_f32 v{m}, v{m}, v{t+1}
        v_cvt_pk_bf16_f32 v{t+3}, v{m}, 0
        v_and_b32 v{t}, 0xffff, v{t}
        v_or_b32 v{t}, v{t}, v{t+1}
        v_cndmask_b32 v{Q+8*j+6}, v{Q+8*j+6}, v{t}, s[62:63]
        v_cndmask_b32 v{Q+8*j+7}, v{Q+8*j+7}, v{t+3}, s[62:63]
        v_lshlrev_b32 v{t+3}, 16, v{t+3}
        v_add_f32 v{t+1}, v{t+1}, v{t+3}
        v_add_f32 v{CR+j}, v{t+4}, v{t+1}
        """)
    e("s_branch A_MAIN")

def helper_path(e):
    e(f"""
    HELPER:
    s_setprio {HPRIO}
    s_sub_u32 s3, s3, 4
    s_lshr_b32 s6, s3, 1
    s_and_b32 s7, s3, 1
    s_min_u32 s76, s2, 223
    s_or_b32 s65, s2, s3
    s_cmp_lg_u32 s65, 0
    s_cbranch_scc1 H_NON
    s_memrealtime s[66:67]
    s_waitcnt lgkmcnt(0)
    s_or_b32 s66, s66, 1
    v_mov_b32 v5, s66
    global_store_dword v3, v5, s[40:41] sc0 sc1
    H_NON:
    s_lshl_b32 s65, s76, 2
    s_load_dword s66, s[32:33], s65
    s_load_dword s67, s[34:35], s65
    s_lshl_b32 s65, s76, 10
    s_lshl_b32 s68, s3, 8
    s_add_u32 s65, s65, s68
    v_lshl_add_u32 v8, v1, 2, s65
    """)
    for i in range(6): e(f"global_load_dword v{96+i}, v8, s[{20+2*i}:{21+2*i}]")
    if CPF in (1, 2):
        e(f"""
        s_cmp_eq_u32 s3, 3
        s_cbranch_scc0 H_NCPF
        s_getpc_b64 s[84:85]
        H_PC:
        s_sub_u32 s84, s84, H_PC - {NAME}
        s_subb_u32 s85, s85, 0
        """)
        if CPF == 1:
            e(f"""
            s_lshr_b32 s65, s2, 3
            s_mul_i32 s65, s65, {6*128}
            v_lshl_add_u32 v9, v1, 7, s65
            v_min_u32 v9, CODE_END - {NAME} - 4, v9
            s_mov_b64 exec, 63
            global_load_dword v90, v9, s[84:85]
            s_mov_b64 exec, -1
            """)
        else:
            for i in range(3):
                e(f"""
                v_lshlrev_b32 v9, 7, v1
                v_add_u32 v9, {8192*i}, v9
                v_min_u32 v9, CODE_END - {NAME} - 4, v9
                global_load_dword v{90+i}, v9, s[84:85]
                """)
        e("H_NCPF:")
    e("s_barrier")
    srd(e, 48, 16, 448 * 896)
    if 'noH' in ABL:
        signal(e, C7)
        e("@T 2\ns_barrier\n@E 0\ns_endpgm")
    e(f"""
    s_mul_i32 s77, s3, {KGS}
    s_mov_b32 m0, s77
    v_and_b32 v9, 15, v1
    v_lshrrev_b32 v10, 4, v1
    v_mul_u32_u24 v11, 288, v9
    v_lshl_add_u32 v11, v10, 4, v11
    v_add_u32 v11, s77, v11
    v_mul_u32_u24 v12, 1088, v10
    v_lshl_add_u32 v12, v9, 2, v12
    v_add_u32 v12, s77, v12
    s_lshl_b32 s68, s6, 4
    s_lshl_b32 s78, s6, 2
    v_mov_b32 v6, s78
    @S 1
    s_waitcnt lgkmcnt(0)
    s_lshr_b32 s66, s66, s68
    s_lshl_b32 s66, s66, 16
    s_lshr_b32 s67, s67, s68
    s_lshl_b32 s67, s67, 16
    v_mov_b32 v13, s66
    v_mul_f32 v13, {f2u(LOG2E)}, v13
    v_exp_f32 v13, v13
    s_nop 0
    v_cvt_pk_bf16_f32 v13, v13, v13
    v_and_b32 v13, 0xffff0000, v13
    """)
    P1_, P8, P256, P32 = 14, 16, 18, 20
    Y = [22, 24, 26, 28]
    X0, X2, X4, X6, XC = 30, 32, 34, 36, 38
    T0, T1 = 40, 42
    C = 44
    YF, XF, D = 48, 80, 112
    PR = 2
    for i in range(16): e(f"v_mov_b32 v{D+i}, 0")
    e("s_waitcnt vmcnt(0)\n@S 2")
    for i in range(6): e(f"v_and_b32 v{102+i}, 0xffff0000, v{96+i}")
    for i in range(6): e(f"v_accvgpr_write_b32 a{i}, v{102+i}")
    for i in range(6): e(f"v_lshlrev_b32 v{96+i}, 16, v{96+i}")
    e(f"s_mov_b32 s79, {1 if 'half' in ABL else 2}\nH_UNIT:")
    AR, AI, BR, BI, CRE, CIM = 96, 97, 98, 99, 100, 101
    e(f"""
    v_mul_f32 v{AR}, v13, v{AR}
    v_mul_f32 v{AI}, v13, v{AI}
    v_mul_f32 v{AR}, {f2u(LOG2E)}, v{AR}
    v_mul_f32 v{AI}, 0.15915494, v{AI}
    v_mul_f32 v{BR}, v13, v{BR}
    v_mul_f32 v{BI}, v13, v{BI}
    """)
    def anchor(dst, l, t):
        if l == 1:
            e(f"v_fract_f32 v{t+1}, v{AI}\nv_exp_f32 v{t}, v{AR}")
        else:
            e(f"v_mul_f32 v{t+1}, {f2u(float(l))}, v{AI}\nv_mul_f32 v{t}, {f2u(float(l))}, v{AR}\nv_fract_f32 v{t+1}, v{t+1}\nv_exp_f32 v{t}, v{t}")
        e(f"v_cos_f32 v{dst}, v{t+1}\nv_sin_f32 v{dst+1}, v{t+1}\ns_nop 0")
        e(f"v_pk_mul_f32 {vr(dst,2)}, {vr(dst,2)}, {vr(t,2)} op_sel:[0,0] op_sel_hi:[1,0]")
    anchor(P8, 8, T0)
    anchor(P1_, 1, T1)
    anchor(P256, 256, T0)
    cmul(e, X0, CRE, BR, T1)
    e(f"v_xor_b32 v{X0+1}, 0x80000000, v{X0+1}")
    cnt = [0]
    def put(src, row):
        c = C + (cnt[0] % 4); cnt[0] += 1
        e(f"v_cvt_pk_bf16_f32 v{c}, v{src}, v{src+1}")
        e(f"ds_write_addtid_b32 v{c} offset:{row*288}")
    tt = [0]
    def mul(z, x, y, conj=False):
        t = (T0, T1)[tt[0] % 2]; tt[0] += 1
        cmul(e, z, x, y, t, conj)
    def frags(dst):
        for ks in range(4): e(f"ds_read_b128 {vr(dst+4*ks,4)}, v11 offset:{64*ks}")
    e(f"v_mov_b32 v{C+3}, 0x3f80\nds_write_addtid_b32 v{C+3} offset:0")
    put(P8, 1)
    mul(Y[2], P8, P8); put(Y[2], 2)
    mul(Y[3], Y[2], P8); mul(P32, Y[2], Y[2]); put(Y[3], 3); put(P32, 4)
    mul(Y[1], P8, P32); put(Y[1], 5)
    mul(Y[2], Y[2], P32); put(Y[2], 6)
    mul(Y[3], Y[3], P32); put(Y[3], 7)
    mul(Y[0], P32, P32); put(Y[0], 8)
    for c in range(9, 32):
        if c == 16: frags(YF)
        mul(Y[c % 4], Y[c % 4], P32); put(Y[c % 4], c % 16)
    frags(YF + 16)
    put(X0, 4)
    mul(XC, X0, P1_, True); put(XC, 5)
    mul(X2, XC, P1_, True); put(X2, 6)
    mul(XC, X2, P1_, True); put(XC, 7)
    mul(X4, XC, P1_, True); put(X4, 8)
    mul(XC, X4, P1_, True); put(XC, 9)
    mul(X6, XC, P1_, True); put(X6, 10)
    mul(XC, X6, P1_, True); put(XC, 11)
    mul(X0, X0, P256, True); put(X0, 0)
    mul(X2, X2, P256, True); put(X2, 12)
    mul(X4, X4, P256, True); put(X4, 13)
    mul(X6, X6, P256, True); put(X6, 14)
    mul(X0, X0, P256, True); put(X0, 1)
    mul(X4, X4, P256, True); put(X4, 15)
    mul(X0, X0, P256, True); put(X0, 2)
    mul(X4, X4, P256, True)
    mul(X0, X0, P256, True); put(X0, 3)
    frags(XF)
    put(X4, 12)
    for r in range(4):
        mul(X0, X0, P256, True); put(X0, r)
    frags(XF + 16)
    e("s_waitcnt lgkmcnt(4)")
    def mm(rt, ct, ks):
        d = D + 4 * (2 * rt + ct)
        e(f"v_mfma_f32_16x16x32_bf16 {vr(d,4)}, {vr(XF+16*rt+4*ks,4)}, {vr(YF+16*ct+4*ks,4)}, {vr(d,4)}")
    for ks in range(4):
        for ct in range(2): mm(0, ct, ks)
    e("s_waitcnt lgkmcnt(0)")
    for ks in range(4):
        for ct in range(2): mm(1, ct, ks)
    for i in range(6): e(f"v_accvgpr_read_b32 v{96+i}, a{i}")
    e("s_sub_u32 s79, s79, 1\ns_cmp_lg_u32 s79, 0\ns_cbranch_scc1 H_UNIT")
    nonce_issue(e, 8)
    e(f"""
    s_lshr_b32 s65, s2, 3
    s_mul_i32 s65, s65, 12544
    s_lshl_b32 s68, s3, 12
    s_add_u32 s65, s65, s68
    v_lshlrev_b32 v9, 6, v1
    buffer_load_dword v7, v9, s[48:51], s65 offen
    """)
    for rt in range(2):
        for ct in range(2):
            for r in range(4):
                e(f"ds_write_b32 v12, v{D+4*(2*rt+ct)+r} offset:{(4*rt+r)*128+ct*64}")
    signal(e, P1, "v6")
    e("@S 3")
    if ABL == "kgen" or 'dmaonly' in ABL: e("@E 0\ns_endpgm")
    e(f"""
    s_mul_i32 s80, s76, 1171
    s_lshr_b32 s80, s80, 16
    s_mul_i32 s65, s80, 56
    s_sub_u32 s65, s76, s65
    s_lshr_b32 s65, s65, 5
    s_lshl_b32 s66, s80, 1
    s_add_u32 s65, s65, s66
    s_lshl_b32 s65, s65, 12
    s_add_u32 s81, s65, {FX}
    v_lshlrev_b32 v9, 6, v1
    s_mul_i32 s77, s6, {2*KGS}
    s_waitcnt vmcnt(0)
    """)
    nonce_check(e, 8)
    e("buffer_load_dword v10, v9, s[44:47], s81 offen sc1")
    wait(e, P1, 2, "v6")
    e(f"""
    s_lshl_b32 s65, s7, 6
    v_add_u32 v14, s65, v1
    v_lshlrev_b32 v15, 2, v14
    v_add_u32 v15, s77, v15
    ds_read2st64_b32 v[16:17], v15 offset0:{(512-128)//256} offset1:{(512-128)//256+18}
    """)
    e.l.pop()
    e(f"""
    v_add_u32 v18, 384, v15
    v_add_u32 v19, 388, v15
    ds_read2st64_b32 v[16:17], v18 offset0:0 offset1:18
    ds_read2st64_b32 v[20:21], v19 offset0:0 offset1:18
    v_and_b32 v22, 1, v1
    v_cmp_eq_u32 vcc, 1, v22
    s_cmp_eq_u32 s7, 0
    s_cbranch_scc1 H_T0
    v_subrev_u32 v18, 128, v15
    v_subrev_u32 v19, 124, v15
    v_add_u32 v22, {3648-256}, v15
    ds_read2st64_b32 v[24:25], v18 offset0:0 offset1:18
    ds_read2st64_b32 v[26:27], v19 offset0:0 offset1:18
    ds_read2st64_b32 v[28:29], v22 offset0:0 offset1:18
    s_waitcnt lgkmcnt(0)
    v_add_f32 v24, v24, v25
    v_add_f32 v26, v26, v27
    v_add_f32 v28, v28, v29
    v_cvt_pk_bf16_f32 v48, v26, v26
    v_cvt_pk_bf16_f32 v49, v28, v28
    v_cvt_pk_bf16_f32 v50, v28, v24
    v_cvt_pk_bf16_f32 v51, v24, v24
    v_mov_b32 v30, v51
    s_branch H_T2
    H_T0:
    v_and_b32 v18, 31, v1
    v_lshlrev_b32 v18, 2, v18
    v_add_u32 v18, s77, v18
    v_lshrrev_b32 v19, 5, v1
    """)
    A0 = [1088, 1216, 1344, 1472, 2176, 2304, 2432, 2560]
    A1 = [0, 0, 3264, 3392, 3392, 3392, 3520, 4]
    for j in range(8):
        e(f"""
        s_movk_i32 s65, {A1[j]-A0[j]}
        v_add_u32 v22, {A0[j]}, v18
        v_mad_i32_i24 v22, v19, s65, v22
        ds_read2st64_b32 {vr(32+2*j,2)}, v22 offset0:0 offset1:18
        """)
    e(f"""
    v_cmp_eq_u32 s[68:69], 0, v1
    v_mov_b32 v23, s67
    s_nop 0
    v_cndmask_b32 v23, 0, v23, s[68:69]
    s_waitcnt lgkmcnt(0)
    """)
    for j in range(8): e(f"v_add_f32 v{32+2*j}, v{32+2*j}, v{33+2*j}")
    e("v_add_f32 v32, v32, v23\nv_mov_b32 v30, 0")
    for i in range(4): e(f"v_cvt_pk_bf16_f32 v{48+i}, v{32+2*(7-2*i)}, v{32+2*(6-2*i)}")
    e(f"""
    s_nop 1
    v_mov_b32_dpp v30, v48 wave_shr:1 row_mask:0xf bank_mask:0xf
    H_T2:
    v_add_f32 v16, v16, v17
    v_add_f32 v20, v20, v21
    v_cndmask_b32 v24, v16, v20, vcc
    v_cvt_pk_bf16_f32 v56, v20, v20
    v_cvt_pk_bf16_f32 v57, v20, v24
    v_cvt_pk_bf16_f32 v58, v16, v16
    v_cvt_pk_bf16_f32 v59, v16, v16
    v_alignbit_b32 v52, v49, v48, 16
    v_alignbit_b32 v53, v50, v49, 16
    v_alignbit_b32 v54, v51, v50, 16
    v_alignbit_b32 v55, v30, v51, 16
    v_alignbit_b32 v60, v57, v56, 16
    v_alignbit_b32 v61, v58, v57, 16
    v_mov_b32 v62, v58
    v_mov_b32 v63, v58
    v_sub_u32 v14, 127, v14
    v_lshlrev_b32 v14, 4, v14
    s_mul_i32 s77, s6, {ECH}
    s_add_u32 s77, s77, {XB}
    v_add_u32 v14, s77, v14
    H_XPOLL:
    s_waitcnt vmcnt(0)
    v_cmp_ne_u32 vcc, s60, v10
    s_cbranch_vccz H_XOK
    s_sub_u32 s61, s61, 1
    s_cbranch_scc1 BAIL
    s_sleep 2
    buffer_load_dword v10, v9, s[44:47], s81 offen sc1
    s_branch H_XPOLL
    H_XOK:
    v_lshrrev_b32 v16, 2, v1
    v_and_b32 v17, 3, v1
    v_lshlrev_b32 v18, 7, v16
    v_lshl_add_u32 v18, v17, 4, v18
    s_lshl_b32 s65, s76, 13
    s_lshl_b32 s66, s7, 12
    s_add_u32 s65, s65, s66
    s_lshl_b32 s66, s6, 6
    s_add_u32 s65, s65, s66
    s_add_u32 s65, s65, {XT2}
    buffer_load_dwordx4 v[64:67], v18, s[44:47], s65 offen sc1
    buffer_load_dwordx4 v[68:71], v18, s[44:47], s65 offen offset:2048 sc1
    v_mul_u32_u24 v17, 1536, v17
    v_lshl_add_u32 v17, v16, 4, v17
    s_mul_i32 s82, s6, {UCH}
    s_add_u32 s82, s82, {UB}
    s_lshl_b32 s65, s7, 8
    s_add_u32 s65, s65, s82
    v_add_u32 v19, s65, v17
    s_lshl_b32 s65, s7, 9
    s_add_u32 s65, s65, s82
    v_add_u32 v17, s65, v17
    v_mov_b32 v72, 0
    v_mov_b32 v73, 0
    v_mov_b32 v74, 0
    v_mov_b32 v75, 0
    s_mul_i32 s65, s7, {OOF}
    s_add_u32 s65, s65, s77
    v_add_u32 v20, s65, v2
    """)
    wait(e, XF_, 4)
    e(f"""
    ds_write_b128 v14, v[56:59]
    ds_write_b128 v14, v[60:63] offset:{OOF}
    ds_write_b128 v14, v[48:51] offset:2048
    ds_write_b128 v14, v[52:55] offset:{2048+OOF}
    ds_write_b128 v19, v[72:75]
    s_mov_b64 exec, 15
    ds_write_b128 v20, v[72:75] offset:4096
    s_mov_b64 exec, -1
    s_waitcnt vmcnt(0)
    ds_write_b128 v17, v[64:67] offset:512
    ds_write_b128 v17, v[68:71] offset:768
    """)
    signal(e, P2, "v6")
    wdma_voff(e, 7)
    e(f"""
    v_and_b32 v21, 31, v1
    v_lshrrev_b32 v22, 5, v1
    v_lshlrev_b32 v8, 3, v22
    v_sub_u32 v8, v8, v21
    v_add_u32 v8, 2047, v8
    v_and_b32 v9, 1, v8
    v_lshrrev_b32 v8, 1, v8
    v_mul_u32_u24 v9, {OOF}, v9
    v_lshl_add_u32 v8, v8, 2, v9
    s_lshl_b32 s65, s7, 10
    s_sub_u32 s65, s77, s65
    v_add_u32 v14, s65, v8
    v_subrev_u32 v15, 2048, v14
    v_mul_u32_u24 v8, 1536, v22
    v_lshl_add_u32 v8, v21, 4, v8
    s_lshl_b32 s65, s7, 8
    s_sub_u32 s65, s82, s65
    s_add_u32 s65, s65, 512
    v_add_u32 v16, s65, v8
    s_lshl_b32 s65, s3, 10
    s_add_u32 s69, s65, {WB}
    s_mul_i32 s68, s3, 3584
    s_mul_i32 s66, s5, 224
    s_add_u32 s68, s68, s66
    """)
    AC, CF = 64, (32, 48)
    for i in range(32): e(f"v_mov_b32 v{AC+i}, 0")
    wait(e, P2, 2, "v6")
    e("@S 4")
    def cread(h):
        c = CF[h]
        return [f"ds_read2_b32 {vr(c,2)}, v14 offset0:{8*h} offset1:{8*h+1}", f"ds_read2_b32 {vr(c+2,2)}, v14 offset0:{8*h+2} offset1:{8*h+3}",
                f"ds_read_b128 {vr(c+8,4)}, v16 offset:{3072*h}",
                f"ds_read2_b32 {vr(c+4,2)}, v15 offset0:{8*h} offset1:{8*h+1}", f"ds_read2_b32 {vr(c+6,2)}, v15 offset0:{8*h+2} offset1:{8*h+3}",
                f"ds_read_b128 {vr(c+12,4)}, v16 offset:{3072*h+512}"]
    def cm(h):
        c = CF[h]
        return [f"v_mfma_f32_32x32x16_bf16 {vr(AC,16)}, {vr(c,4)}, {vr(c+8,4)}, {vr(AC,16)}",
                f"v_mfma_f32_32x32x16_bf16 {vr(AC+16,16)}, {vr(c+4,4)}, {vr(c+8,4)}, {vr(AC+16,16)}",
                f"v_mfma_f32_32x32x16_bf16 {vr(AC+16,16)}, {vr(c,4)}, {vr(c+12,4)}, {vr(AC+16,16)}"]
    for r in cread(0): e(r)
    e(f"s_mov_b32 s79, {1 if 'noconv' in ABL else 16}\nH_CONV:")
    for r in cread(1): e(r)
    e(f"""
    v_subrev_u32 v14, 64, v14
    v_subrev_u32 v15, 64, v15
    v_subrev_u32 v16, 16, v16
    s_waitcnt lgkmcnt(6)
    """)
    for m in cm(0): e(m)
    for r in cread(0): e(r)
    e("s_waitcnt lgkmcnt(6)")
    for m in cm(1): e(m)
    e(f"""
    s_sub_u32 s79, s79, 1
    s_cmp_lg_u32 s79, 0
    s_cbranch_scc1 H_CONV
    s_mul_i32 s65, s3, {KGS}
    v_add_u32 v8, s65, v2
    s_xor_b32 s65, s3, 1
    s_mul_i32 s65, s65, {KGS}
    v_add_u32 v9, s65, v2
    s_waitcnt lgkmcnt(0)
    s_nop 7
    s_cmp_eq_u32 s7, 0
    s_cbranch_scc1 H_C0
    """)
    for i in range(4): e(f"ds_write_b128 v8, {vr(AC+4*i,4)} offset:{1024*i}")
    for i in range(16): e(f"v_mov_b32 v{AC+i}, v{AC+16+i}")
    e("s_branch H_C1\nH_C0:")
    for i in range(4): e(f"ds_write_b128 v8, {vr(AC+16+4*i,4)} offset:{1024*i}")
    e("H_C1:")
    signal(e, P3, "v6")
    DMA2 = """
    s_mov_b32 m0, s69
    s_add_u32 s69, s69, 4096
    buffer_load_dwordx4 v7, s[48:51], s68 offen lds
    s_mov_b32 m0, s69
    s_add_u32 s68, s68, 14336
    s_add_u32 s69, s69, 4096
    buffer_load_dwordx4 v7, s[48:51], s68 offen lds
    s_add_u32 s68, s68, 14336
    """
    wait(e, C5, 4, sleep=2)
    e(DMA2); e(DMA2)
    wait(e, P3, 2, "v6", sleep=2)
    for i in range(4): e(f"ds_read_b128 {vr(32+4*i,4)}, v9 offset:{1024*i}")
    e(f"""
    v_mul_u32_u24 v8, 28672, v21
    v_lshl_add_u32 v8, v22, 4, v8
    s_lshl_b32 s65, s76, 1
    s_add_u32 s65, s65, s6
    s_lshl_b32 s65, s65, 6
    s_mul_i32 s66, s7, {32*28672}
    s_add_u32 s65, s65, s66
    s_add_u32 s65, s65, {BT2}
    s_mov_b32 s75, 0xfffffffe
    s_waitcnt lgkmcnt(0)
    """)
    for i in range(16): e(f"v_add_f32 v{AC+i}, v{AC+i}, v{32+i}")
    for i in range(8): e(f"v_cvt_pk_bf16_f32 v{32+i}, v{AC+2*i}, v{AC+2*i+1}")
    for i in range(8): e(f"v_min_u32 v{32+i}, s75, v{32+i}")
    e(f"""
    s_cmp_ge_u32 s2, 224
    v_permlane32_swap_b32 v32, v34
    v_permlane32_swap_b32 v33, v35
    v_permlane32_swap_b32 v36, v38
    v_permlane32_swap_b32 v37, v39
    s_cbranch_scc1 H_NOBT
    buffer_store_dwordx4 v[32:35], v8, s[44:47], s65 offen sc1
    buffer_store_dwordx4 v[36:39], v8, s[44:47], s65 offen offset:32 sc1
    H_NOBT:
    @S 5
    s_mov_b32 s79, {1 if 'nowo' in ABL else 12}
    H_WO:
    s_waitcnt vmcnt(2)
    {DMA2}
    s_sub_u32 s79, s79, 1
    s_cmp_lg_u32 s79, 0
    s_cbranch_scc1 H_WO
    v_bfe_u32 v8, v1, 2, 2
    v_lshl_add_u32 v9, v22, 2, v8
    v_lshlrev_b32 v9, 8, v9
    v_bfe_u32 v10, v1, 4, 1
    v_lshlrev_b32 v10, 5, v10
    v_and_b32 v11, 3, v1
    v_lshl_add_u32 v10, v11, 3, v10
    s_lshl_b32 s65, s3, 6
    v_add_u32 v10, s65, v10
    v_lshlrev_b32 v8, 6, v8
    v_xor_b32 v10, v10, v8
    v_add_u32 v9, v9, v10
    """)
    for d in range(4):
        e(f"s_add_u32 s65, s5, {d}\ns_and_b32 s65, s65, 3\ns_mul_i32 s65, s65, 28672\ns_add_u32 s65, s65, {WB}\nv_add_u32 v{24+d}, s65, v9")
    e("s_waitcnt vmcnt(0)")
    signal(e, C6)
    wait(e, C6, 4, sleep=2)
    for h in range(16):
        for s in range(2):
            for i in range(2):
                e(f"ds_read_b64_tr_b16 {ar(8*h+4*s+2*i,2)}, v{24 + h//4} offset:{7168*(h%4)+4096*s+2048*i}")
    ID, BF, YA, OA = 40, 48, 64, 80
    e(f"""
    v_and_b32 v8, 1, v21
    v_lshlrev_b32 v8, 4, v8
    v_mov_b32 v9, 0x3f80
    v_lshlrev_b32 v9, v8, v9
    v_lshrrev_b32 v10, 1, v21
    v_lshlrev_b32 v11, 2, v22
    v_sub_u32 v10, v10, v11
    """)
    for s in range(2):
        for w in range(4):
            e(f"v_cmp_eq_u32 vcc, {8*s+w}, v10\ns_nop 1\nv_cndmask_b32 v{ID+4*s+w}, 0, v9, vcc")
    e(f"""
    v_lshlrev_b32 v8, 6, v21
    v_lshl_add_u32 v8, v22, 4, v8
    s_mul_i32 s65, s4, 28672
    s_mul_i32 s66, s5, 7168
    s_add_u32 s65, s65, s66
    s_lshl_b32 s66, s3, 11
    s_add_u32 s65, s65, s66
    s_add_u32 s65, s65, {BT2}
    v_mul_u32_u24 v12, 896, v21
    v_lshl_add_u32 v12, v22, 4, v12
    s_mul_i32 s66, s4, {32*896}
    s_mul_i32 s67, s5, 224
    s_add_u32 s66, s66, s67
    s_lshl_b32 s67, s3, 6
    s_add_u32 s66, s66, s67
    v_lshlrev_b32 v13, 2, v21
    v_add_u32 v14, {STG}, v2
    s_cmp_eq_u32 s3, 3
    s_cselect_b32 s70, 0xffff, -1
    s_mov_b32 s71, s70
    s_waitcnt lgkmcnt(0)
    """)
    signal(e, C7)
    srd(e, 48, 38, 2048 * 896)
    e(f"""
    ds_read_b32 v15, v13 offset:{GOF}
    @S 6
    @T 1
    H_YPOLL:
    buffer_load_dwordx4 {vr(BF,4)}, v8, s[44:47], s65 offen sc1
    buffer_load_dwordx4 {vr(BF+4,4)}, v8, s[44:47], s65 offen offset:32 sc1
    s_waitcnt vmcnt(0)
    v_max3_u32 v16, v{BF}, v{BF+1}, v{BF+2}
    v_max3_u32 v16, v16, v{BF+3}, v{BF+4}
    v_max3_u32 v16, v16, v{BF+5}, v{BF+6}
    v_max_u32 v16, v16, v{BF+7}
    v_cmp_eq_u32 vcc, -1, v16
    s_and_b64 vcc, vcc, s[70:71]
    s_cbranch_vccz H_YOK
    s_sub_u32 s61, s61, 1
    s_cbranch_scc1 BAIL
    s_sleep 8
    s_branch H_YPOLL
    H_YOK:
    v_mfma_f32_32x32x16_bf16 {vr(YA,16)}, {vr(BF,4)}, {vr(ID,4)}, 0
    v_mfma_f32_32x32x16_bf16 {vr(YA,16)}, {vr(BF+4,4)}, {vr(ID+4,4)}, {vr(YA,16)}
    s_waitcnt lgkmcnt(0)
    v_sub_f32 v16, 1.0, v15
    s_nop 10
    """)
    for i in range(16): e(f"v_mul_f32 v{YA+i}, v16, v{YA+i}")
    e("@T 2\ns_setprio 3\ns_barrier\n@T 3")
    FB = 96
    def block(d):
        for s in range(8): e(f"ds_read_b128 {vr(FB+4*s,4)}, v14 offset:{8192*d+1024*s}")
        for s in range(8):
            e(f"s_waitcnt lgkmcnt({7-s})")
            o = (OA, 32, 48, OA)[d]
            e(f"v_mfma_f32_32x32x16_bf16 {vr(o,16)}, {ar(32*d+4*s,4)}, {vr(FB+4*s,4)}, " + ("0" if s == 0 else vr(o,16)))
    wait(e, G0, 4)
    block(0)
    e("s_nop 11")
    for i in range(16): e(f"v_fmac_f32 v{YA+i}, v15, v{OA+i}")
    e(f"""
    @T 4
    s_mov_b32 s73, 14
    H_PICK:
    ds_read_b128 v[20:23], v3 offset:{G0}
    s_waitcnt lgkmcnt(0)
    v_readfirstlane_b32 s76, v21
    v_readfirstlane_b32 s77, v22
    v_readfirstlane_b32 s78, v23
    """)
    for d in range(1, 4):
        e(f"""
        s_bitcmp0_b32 s73, {d}
        s_cbranch_scc1 H_PN{d}
        s_cmp_ge_u32 s{75+d}, 4
        s_cbranch_scc1 H_B{d}
        H_PN{d}:
        """)
    e("""
    s_sub_u32 s61, s61, 1
    s_cbranch_scc1 BAIL
    s_sleep 1
    s_branch H_PICK
    """)
    for d in range(1, 4):
        e(f"H_B{d}:")
        block(d)
        e(f"s_bitset0_b32 s73, {d}\ns_cmp_lg_u32 s73, 0\ns_cbranch_scc1 H_PICK")
        if d < 3: e("s_branch H_FIN")
    e("H_FIN:\n@T 5")
    e("s_nop 10")
    for i in range(16): e(f"v_add_f32 v{32+i}, v{32+i}, v{48+i}")
    for i in range(16): e(f"v_add_f32 v{32+i}, v{32+i}, v{OA+i}")
    for i in range(16): e(f"v_fmac_f32 v{YA+i}, v15, v{32+i}")
    for i in range(8): e(f"v_cvt_pk_bf16_f32 v{32+i}, v{YA+2*i}, v{YA+2*i+1}")
    e(f"""
    s_cmp_eq_u32 s3, 3
    s_nop 0
    v_permlane32_swap_b32 v32, v34
    v_permlane32_swap_b32 v33, v35
    v_permlane32_swap_b32 v36, v38
    v_permlane32_swap_b32 v37, v39
    buffer_store_dwordx4 v[32:35], v12, s[48:51], s66 offen
    s_cbranch_scc1 H_END
    buffer_store_dwordx4 v[36:39], v12, s[48:51], s66 offen offset:32
    H_END:
    @E 0
    BAIL:
    s_endpgm
    CODE_END:
    """)

def main(out):
    e = A()
    hdr = f"""; gated mix of MQA attention and an S4 convolution: one launch, workgroups hand data over through d_ws
; @launch grid=(256,1,1) block=(512,1,1) lds={LDS}
.amdgcn_target "amdgcn-amd-amdhsa--gfx950"
.text
"""
    prologue(e); attn_path(e); helper_path(e)
    tail = f""".section .rodata,"a"
.p2align 6
.amdhsa_kernel {NAME}
  .amdhsa_next_free_vgpr 256
  .amdhsa_next_free_sgpr 102
  .amdhsa_accum_offset 128
  .amdhsa_group_segment_fixed_size 0
  .amdhsa_kernarg_size 144
  .amdhsa_user_sgpr_count 2
  .amdhsa_user_sgpr_kernarg_segment_ptr 1
  .amdhsa_system_sgpr_workgroup_id_x 1
.end_amdhsa_kernel
"""
    open(out, "w").write(hdr + e.text() + tail)

if __name__ == "__main__":
    main(sys.argv[1] if len(sys.argv) > 1 else "f2.s")
```

```python
import math, struct, sys, os

def f2u(x): return struct.unpack("<I", struct.pack("<f", x))[0]
LOG2E = 1.4426950408889634
QSCALE = (28 ** -0.5) * LOG2E
NAME = "gated_mix__grouped_kv_mqa__ssm_conv_s4__prompt_kernel"

KVF = 0x000000
FLG = 0x040000
FX  = 0x044000
FXT = 0x048000
FC  = 0x060000
XT2 = 0x080000
OX  = 0x280000
BT2 = 0x480000
OF  = 0x640000
FO  = 0x050000
WSZ = 0x840000
KGS = 4608
SY = 18432
XB = 18944
WB = 48128
WEND = WB + 448 * 256
LDS = 163840
IMG = WB + 336 * 256
ECH, OOF, UB, UCH = 8384, 4224, XB + 16768, 6144
C1, CA, ISS, C4, C5, KVD, P1, P2, P3, C6, C7, XF_, CB, C3, G0, QN, KN, GOF = [SY + x for x in (0, 4, 8, 12, 16, 20, 24, 32, 40, 48, 52, 60, 64, 68, 80, 96, 112, 128)]
CX = WB + 49152
STG = WB + 53248
SAFE_BOUND = 80.0
SHIFT = 64.0

BUDGET = int(os.environ.get("BUDGET", "0x8000"), 0)
ABL = os.environ.get("ABL", "")
NPRE = int(os.environ.get("NPRE", "8"))
PREF = int(os.environ.get("PREF", "1"))
PSH = int(os.environ.get("PSH", "7"))
HPRIO = int(os.environ.get("HPRIO", "2"))
LPRIO = int(os.environ.get("LPRIO", "1"))
ROT = int(os.environ.get("ROT", "1"))
APRIO = int(os.environ.get("APRIO", "3"))
KVCHK = int(os.environ.get("KVCHK", "12"))
CPRIO = int(os.environ.get("CPRIO", "0"))
KG = os.environ.get("KG", "ss")
WOC = int(os.environ.get("WOC", "1"))
XTE = int(os.environ.get("XTE", "1"))
ORD = int(os.environ.get("ORD", "1"))
CYC = int(os.environ.get("CYC", "0"))
LSEL = [6, 5, 4, 3, 2, 0]
FCIT = int(os.environ.get("FCIT", "3"))
CLR = int(os.environ.get("CLR", "0"))
KC, KNP = SY + 72, SY + 256
HPRIO2 = int(os.environ.get("HPRIO2", "2"))
NOFAST = int(os.environ.get("NOFAST", "0"))
CPF = int(os.environ.get("CPF", "3"))
STAMP = int(os.environ.get("STAMP", "0"))
TSB = 0x1000000
def stamp(e, i):
    if STAMP: e(f"s_memrealtime s[{100-2*i}:{101-2*i}]\ns_waitcnt lgkmcnt(0)")
def stamp_end(e, kidx):
    if not STAMP: return
    e(f"""
    s_waitcnt vmcnt(0)
    s_memrealtime s[86:87]
    s_load_dwordx2 s[84:85], s[0:1], 136
    s_mov_b64 exec, 1
    v_lshrrev_b32 v2, 6, v0
    s_lshl_b32 s83, s2, 4
    v_add_u32 v2, s83, v2
    v_lshlrev_b32 v2, 6, v2
    v_add_u32 v2, {TSB + kidx*0x100000}, v2
    s_waitcnt lgkmcnt(0)
    """)
    for i in range(16): e(f"v_mov_b32 v{4+i}, s{86+i}")
    for i in range(4): e(f"global_store_dwordx4 v2, v[{4+4*i}:{7+4*i}], s[84:85] offset:{16*i}")

class A:
    def __init__(self): self.l = []; self.n = 0; self.h = False
    def __call__(self, s=""):
        for line in s.split("\n"):
            line = line.strip()
            if not line: continue
            if line.startswith("@S "):
                if STAMP == 1 or line == "@S 0" or (STAMP == 4 and self.h): stamp(self, int(line[3:]))
                continue
            if line.startswith("@T "):
                if STAMP == 2: stamp(self, int(line[3:]))
                continue
            if line.startswith("@U "):
                if STAMP == 3: stamp(self, int(line[3:]))
                continue
            if line.startswith("@V "):
                if STAMP == 5: stamp(self, int(line[3:]))
                continue
            if line.startswith("@E "): stamp_end(self, int(line[3:])); continue
            if line.endswith(":") or line.startswith("."): self.l.append(line)
            else: self.l.append("    " + line)
    def lab(self, p="L"):
        self.n += 1; return f"{p}{self.n}"
    def text(self): return "\n".join(self.l) + "\n"

def vr(a, n): return f"v[{a}:{a+n-1}]"
def ar(a, n): return f"a[{a}:{a+n-1}]"
def sr(a, n): return f"s[{a}:{a+n-1}]"
def srd(e, d, base, nbytes):
    e(f"s_mov_b32 s{d}, s{base}\ns_mov_b32 s{d+1}, s{base+1}\ns_mov_b32 s{d+2}, {nbytes}\ns_mov_b32 s{d+3}, 0x00020000")

def signal(e, off, addr="v3", restore="s_mov_b64 exec, -1"):
    e(f"s_mov_b64 exec, 1\nds_add_u32 {addr}, v4 offset:{off}\n{restore}")
def wait(e, off, n, addr="v3", sleep=1):
    l = e.lab("W"); d = e.lab("D")
    e(f"""
    {l}:
    ds_read_b32 v5, {addr} offset:{off}
    s_waitcnt lgkmcnt(0)
    v_readfirstlane_b32 s64, v5
    s_cmp_ge_u32 s64, {n}
    s_cbranch_scc1 {d}
    s_sub_u32 s61, s61, 1
    s_cbranch_scc1 BAIL
    s_sleep {sleep}
    s_branch {l}
    {d}:
    """)
def nonce_issue(e, v): e(f"global_load_dword v{v}, v3, s[40:41] sc1")
def nonce_check(e, v):
    l = e.lab("N"); d = e.lab("D")
    e(f"""
    {l}:
    v_readfirstlane_b32 s60, v{v}
    s_cmp_lg_u32 s60, 0
    s_cbranch_scc1 {d}
    s_sub_u32 s61, s61, 1
    s_cbranch_scc1 BAIL
    global_load_dword v{v}, v3, s[40:41] sc1
    s_waitcnt vmcnt(0)
    s_branch {l}
    {d}:
    """)

def gemm_loop(e, nsteps, reads, mfma, depth, nper):
    for s in range(min(depth, nsteps)):
        for r in reads(s): e(r)
    for s in range(nsteps):
        if s + depth < nsteps:
            for r in reads(s + depth): e(r)
            out = depth * nper
        else:
            out = (nsteps - 1 - s) * nper
        e(f"s_waitcnt lgkmcnt({out})")
        e(mfma(s))

def cmul(e, z, x, y, t, conj=False):
    e(f"v_pk_mul_f32 {vr(t,2)}, {vr(x,2)}, {vr(y,2)} op_sel:[0,0] op_sel_hi:[1,0]")
    neg = "neg_hi:[1,0,0]" if conj else "neg_lo:[1,0,0]"
    e(f"v_pk_fma_f32 {vr(z,2)}, {vr(x,2)}, {vr(y,2)}, {vr(t,2)} op_sel:[1,1,0] op_sel_hi:[0,1,1] {neg}")

def wdma_voff(e, v):
    e(f"""
    v_lshrrev_b32 v8, 4, v1
    v_and_b32 v9, 15, v1
    v_lshlrev_b32 v10, 2, v8
    v_xor_b32 v9, v9, v10
    v_mul_u32_u24 v8, 896, v8
    v_lshl_add_u32 v{v}, v9, 4, v8
    """)

def prologue(e):
    e(f"""
    .globl {NAME}
    .p2align 8
    .type {NAME},@function
    {NAME}:
    s_cmp_ge_u32 s2, 256
    s_cbranch_scc1 BAIL
    """)
    if CPF >= 3:
        e(f"""
        s_getpc_b64 s[84:85]
        v_lshlrev_b32 v76, 7, v0
        v_min_u32 v76, CODE_END - {NAME} - 64, v76
        v_mov_b32 v77, s85
        v_add_co_u32 v76, vcc, s84, v76
        v_addc_co_u32 v77, vcc, 0, v77, vcc
        global_load_dword v79, v[76:77], off
        """)
    e(f"""
    @S 0
    s_load_dwordx16 s[8:23], s[0:1], 0
    s_load_dwordx16 s[24:39], s[0:1], 64
    s_load_dwordx4 s[40:43], s[0:1], 128
    v_lshrrev_b32 v2, 6, v0
    v_and_b32 v1, 63, v0
    v_readfirstlane_b32 s3, v2
    v_lshlrev_b32 v2, 4, v1
    v_mov_b32 v3, 0
    v_mov_b32 v4, 1
    s_and_b32 s4, s2, 7
    s_lshl_b32 s4, s4, 3
    s_bfe_u32 s5, s2, 0x30003
    s_add_u32 s4, s4, s5
    s_lshr_b32 s5, s2, 6
    s_mov_b32 s61, {BUDGET}
    s_mov_b32 s62, 0
    s_mov_b32 s63, -1
    s_cmp_lg_u32 s3, 0
    s_cbranch_scc1 NOZERO
    v_mov_b32 v8, 0
    v_mov_b32 v9, 0
    v_mov_b32 v10, 0
    v_mov_b32 v11, 0
    v_lshlrev_b32 v6, 3, v1
    v_add_u32 v7, {WEND}, v2
    ds_write_b64 v6, v[8:9] offset:{SY}
    ds_write_b128 v7, v[8:11]
    NOZERO:
    s_waitcnt lgkmcnt(0)
    """)
    srd(e, 44, 42, WSZ)
    e("s_cmp_ge_u32 s3, 4\ns_cbranch_scc1 HELPER")

class Lds:
    def __init__(self, e): self.e = e; self.n = 0; self.mark = {}
    def op(self, text, tag=None):
        self.e(text); self.n += 1
        if tag is not None: self.mark[tag] = self.n
    def wait(self, tag):
        self.e(f"s_waitcnt lgkmcnt({min(15, self.n - self.mark[tag])})")

def xfrag(s): return vr(80 + 4*s, 4) if s < 12 else ar(64 + 4*(s-12), 4)
def xfrag_reads(e, v):
    if 'noxf' in ABL: return
    for s in range(28): e(f"ds_read_b128 {xfrag(s)}, v{v} offset:{32*s}")
def flag_store(e, regs, soff, x2=False):
    e(f"s_mov_b64 exec, 1\nbuffer_store_dword{'x2' if x2 else ''} {regs}, v3, s[44:47], {soff} offen sc1\ns_mov_b64 exec, -1")

def attn_path(e):
    Q, S, P, KV, CR = 16, (48, 64), (80, 88), (96, 112), 8
    e(f"s_setprio {APRIO}")
    if PREF:
        e(f"""
        s_lshr_b32 s64, s2, 3
        v_lshlrev_b32 v8, 7, v1
        s_mov_b32 s55, 0x00020000
        s_cmp_lg_u32 s3, 0
        s_cbranch_scc1 A_P1
        s_mov_b32 s52, s8
        s_mov_b32 s53, s9
        s_lshl_b32 s65, s4, 2
        s_add_u32 s65, s65, s5
        s_mul_i32 s65, s65, 7168
        s_add_u32 s54, s65, 7168
        s_branch A_PGO
        A_P1:
        s_cmp_eq_u32 s3, 3
        s_cbranch_scc1 A_P3
        s_mov_b32 s52, s10
        s_mov_b32 s53, s11
        s_mul_i32 s65, s64, 12544
        s_add_u32 s54, s65, 12544
        s_cmp_eq_u32 s3, 1
        s_cselect_b32 s66, 0, 6272
        s_cselect_b32 s67, 6272, 0
        s_add_u32 s65, s65, s66
        s_sub_u32 s54, s54, s67
        s_branch A_PGO
        A_P3:
        s_cmp_lt_u32 s64, 16
        s_cselect_b32 s52, s12, s14
        s_cselect_b32 s53, s13, s15
        s_and_b32 s65, s64, 15
        s_mul_i32 s65, s65, 1664
        s_add_u32 s54, s65, 1664
        s_min_u32 s54, s54, {448*56}
        A_PGO:
        buffer_load_dword v79, v8, s[52:55], s65 offen
        """)
    e(f"""
    s_barrier
    v_lshrrev_b32 v16, 5, v1
    v_and_b32 v17, 31, v1
    v_mul_u32_u24 v17, 912, v17
    v_lshl_add_u32 v17, v16, 4, v17
    v_add_u32 v78, {XB}, v17
    v_lshrrev_b32 v16, 4, v1
    v_and_b32 v17, 15, v1
    v_lshlrev_b32 v16, 12, v16
    v_lshl_add_u32 v77, v17, 6, v16
    s_lshl_b32 s79, s3, 10
    s_add_u32 s79, s79, {FX}
    s_cmp_ge_u32 s3, 2
    s_cbranch_scc1 A_DMAW
    """)
    srd(e, 56, 36, 896)
    GW = 12
    e(f"""
    buffer_load_dwordx4 {vr(GW,4)}, v2, s[56:59], 0 offen
    s_and_b32 s74, s5, 1
    s_cmp_lt_u32 s5, 2
    s_cselect_b32 s65, s3, s74
    s_cselect_b32 s66, s74, s3
    s_cselect_b32 s67, 0, 2048
    s_lshl_b32 s65, s65, 10
    s_lshl_b32 s66, s66, 8
    s_lshl_b32 s68, s4, 12
    s_add_u32 s68, s68, s65
    s_add_u32 s68, s68, s66
    s_add_u32 s68, s68, s67
    v_lshrrev_b32 v16, 4, v1
    v_lshl_add_u32 v18, v16, 5, v17
    v_lshlrev_b32 v9, 4, v18
    v_mov_b32 v20, -1
    v_mov_b32 v21, -1
    v_mov_b32 v22, -1
    v_mov_b32 v23, -1
    s_mov_b32 exec_hi, 0
    buffer_store_dwordx4 v[20:23], v9, s[44:47], s68 offen sc1
    """)
    srd(e, 48, 8, 2048 * 896)
    e(f"""
    s_mul_i32 s64, s3, {16*912}
    s_add_u32 m0, s64, {XB}
    s_lshl_b32 s65, s4, 5
    s_lshl_b32 s66, s3, 4
    s_add_u32 s65, s65, s66
    s_mul_i32 s65, s65, 896
    s_mov_b32 exec_hi, 0x00ffffff
    """)
    for i in range(16):
        e("buffer_load_dwordx4 v2, s[48:51], s65 offen lds")
        if i < 15: e("s_add_u32 m0, m0, 912\ns_add_u32 s65, s65, 896")
    e(f"""
    s_mov_b32 exec_hi, -1
    s_cmp_lt_u32 s5, 2
    s_cselect_b32 s52, s12, s14
    s_cselect_b32 s53, s13, s15
    s_mov_b32 s54, {448*56}
    s_mov_b32 s55, 0x00020000
    s_mul_i32 s65, s3, {13*1024}
    s_add_u32 m0, s65, {IMG}
    s_nop 0
    """)
    for i in range(13):
        e("buffer_load_dwordx4 v2, s[52:55], s65 offen lds")
        if i < 12: e("s_add_u32 m0, m0, 1024\ns_add_u32 s65, s65, 1024")
    signal(e, ISS)
    e("@S 1")
    if ABL == "kgen": e("@E 0\ns_endpgm")
    nonce_issue(e, 30)
    XA, WA, XT = 6, 7, 60
    e(f"""
    v_and_b32 v16, 15, v1
    v_lshrrev_b32 v17, 4, v1
    s_lshl_b32 s65, s74, 4
    v_add_u32 v18, s65, v16
    v_mul_u32_u24 v18, 912, v18
    v_lshl_add_u32 v18, v17, 4, v18
    v_add_u32 v{XA}, {XB}, v18
    v_bfe_u32 v18, v1, 2, 2
    v_lshl_add_u32 v18, v17, 3, v18
    v_and_b32 v19, 3, v1
    v_lshlrev_b32 v19, 3, v19
    v_mad_u32_u24 v24, v18, 56, v19
    s_lshl_b32 s65, s3, 5
    s_add_u32 s65, s65, {IMG}
    v_add_u32 v{WA}, s65, v24
    v_mul_u32_u24 v18, 912, v18
    v_add_u32 v10, v18, v19
    s_mul_i32 s65, s5, 224
    s_lshl_b32 s66, s3, 7
    s_add_u32 s65, s65, s66
    s_add_u32 s65, s65, {XB}
    v_add_u32 v10, s65, v10
    v_lshrrev_b32 v18, 1, v16
    v_lshlrev_b32 v18, 13, v18
    v_and_b32 v19, 1, v1
    v_lshl_add_u32 v18, v19, 6, v18
    v_lshl_add_u32 v11, v17, 4, v18
    s_mul_i32 s65, s5, 56
    s_lshl_b32 s66, s3, 5
    s_add_u32 s65, s65, s66
    s_lshl_b32 s65, s65, 13
    s_lshl_b32 s66, s4, 7
    s_add_u32 s65, s65, s66
    s_add_u32 s69, s65, {XT2}
    s_lshl_b32 s65, s5, 6
    s_add_u32 s65, s65, s4
    s_lshl_b32 s65, s65, 6
    s_add_u32 s70, s65, {FX}
    s_lshl_b32 s65, s4, 1
    s_add_u32 s65, s65, s74
    s_lshl_b32 s65, s65, 6
    s_add_u32 s71, s65, {FLG}
    s_mov_b32 s72, {f2u(QSCALE)}
    s_mov_b32 s75, 0xfffffffe
    s_lshl_b32 s65, s5, 1
    s_add_u32 s65, s65, s3
    s_lshl_b32 s65, s65, 6
    s_add_u32 s65, s65, s4
    s_lshl_b32 s65, s65, 6
    s_add_u32 s83, s65, {FXT}
    """)
    for i in range(64): e(f"v_accvgpr_write_b32 a{i}, 0")
    e("s_waitcnt vmcnt(1)")
    signal(e, C1)
    wait(e, C1, 2)
    e("@S 2\n@U 1")
    D = 16
    KB = [80 + 8*i for i in range(6)]
    def kvgemm(kfirst):
        L = Lds(e)
        def rd(s):
            b = KB[s % 6]
            L.op(f"ds_read_b128 {vr(b+4,4)}, v{XA} offset:{64*s}")
            L.op(f"ds_read_b64_tr_b16 {vr(b,2)}, v{WA} offset:{1792*s}")
            L.op(f"ds_read_b64_tr_b16 {vr(b+2,2)}, v{WA} offset:{1792*s+224}", s)
        for s in range(5): rd(s)
        lab = e.lab("F")
        e(f"s_cmp_lg_u32 s3, 0\ns_cbranch_scc1 {lab}\ns_waitcnt vmcnt(0)")
        nonce_check(e, 30)
        flag_store(e, "v30", "s70")
        e(f"{lab}:")
        for s in range(14):
            L.wait(s)
            b = KB[s % 6]
            a_, b_ = (vr(b,4), vr(b+4,4)) if kfirst else (vr(b+4,4), vr(b,4))
            e(f"v_mfma_f32_16x16x32_bf16 {vr(D,4)}, {a_}, {b_}, " + ("0" if s == 0 else vr(D,4)))
            if s + 5 < 14: rd(s + 5)
        signal(e, KVD)
    def kvstore():
        e(f"""
        v_mov_b32 v26, v24
        v_mov_b32 v27, v25
        s_nop 1
        v_permlane32_swap_b32 v24, v26
        v_permlane32_swap_b32 v25, v27
        s_nop 0
        v_min_u32 v24, s75, v24
        s_mov_b32 exec_hi, 0
        buffer_store_dwordx4 v[24:27], v9, s[44:47], s68 offen sc1
        s_mov_b32 exec_hi, -1
        """)
    e("s_cmp_ge_u32 s5, 2\ns_cbranch_scc1 A_V")
    kvgemm(True)
    e(f"""
    s_mov_b32 s66, 0
    s_cmp_eq_u32 s3, 1
    s_cselect_b32 s67, 0xffff0000, 0
    v_mov_b32 v28, 0x3f803f80
    v_mov_b32 v29, 0x00003f80
    s_nop 1
    """)
    for i in range(4): e(f"v_mul_f32 v{16+i}, s72, v{16+i}")
    e(f"""
    v_cvt_pk_bf16_f32 v24, v16, v17
    v_cvt_pk_bf16_f32 v25, v18, v19
    v_cndmask_b32 v24, v24, v28, s[66:67]
    v_cndmask_b32 v25, v25, v29, s[66:67]
    """)
    kvstore()
    e(f"""
    v_mul_f32 v28, v16, v16
    v_fmac_f32 v28, v17, v17
    v_fmac_f32 v28, v18, v18
    v_fmac_f32 v28, v19, v19
    v_cndmask_b32 v28, v28, 0, s[66:67]
    v_mov_b32 v29, v28
    s_nop 1
    v_permlane16_swap_b32 v28, v29
    s_nop 1
    v_add_f32 v28, v28, v29
    v_mov_b32 v29, v28
    s_nop 1
    v_permlane32_swap_b32 v28, v29
    v_lshlrev_b32 v8, 2, v1
    v_add_f32 v31, v28, v29
    s_cmp_eq_u32 s3, 1
    s_cbranch_scc1 A_KVFLAG
    ds_write_b32 v8, v31 offset:{KNP}
    """)
    signal(e, KC)
    e("s_branch A_KVFLAG\nA_V:")
    kvgemm(False)
    e(f"""
    v_and_b32 v28, 15, v1
    s_lshl_b32 s65, s3, 4
    v_add_u32 v28, s65, v28
    v_cmp_eq_u32 vcc, 28, v28
    v_mov_b32 v28, 0x3f803f80
    s_nop 0
    v_cvt_pk_bf16_f32 v24, v16, v17
    v_cvt_pk_bf16_f32 v25, v18, v19
    v_cndmask_b32 v24, v24, v28, vcc
    v_cndmask_b32 v25, v25, v28, vcc
    """)
    kvstore()
    e("A_KVFLAG:\n@U 2")
    for g in range(4):
        e(f"ds_read_b64_tr_b16 {vr(XT+4*g,2)}, v10 offset:{32*g}\nds_read_b64_tr_b16 {vr(XT+2+4*g,2)}, v10 offset:{32*g+4*912}")
    e("s_waitcnt lgkmcnt(4)")
    for g in range(4):
        if g == 2: e("s_waitcnt lgkmcnt(0)")
        if g == 3: e("s_cmp_eq_u32 s3, 1\ns_cbranch_scc1 A_XT3")
        e(f"buffer_store_dwordx4 {vr(XT+4*g,4)}, v11, s[44:47], s69 offen sc1")
        if g < 3: e("s_add_i32 s69, s69, 65536")
    e("A_XT3:")
    xfrag_reads(e, 78)
    signal(e, XF_)
    e("@U 3\ns_cmp_eq_u32 s3, 0\ns_cbranch_scc1 A_NG1")
    e("s_waitcnt vmcnt(4)")
    nonce_check(e, 30)
    wait(e, KVD, 2)
    e(f"v_lshlrev_b32 v9, 11, v1\nv_add_u32 v9, {WB}, v9\ns_mov_b32 exec_hi, 0x00ffffff")
    for j in range(8):
        op = "ds_write_b16_d16_hi" if j & 1 else "ds_write_b16"
        e(f"{op} v9, v{GW + j//2} offset:{256*j + (224 ^ (64*(j&3)))}")
    e("s_mov_b32 exec_hi, -1")
    signal(e, CA)
    e("s_cmp_ge_u32 s5, 2\ns_cbranch_scc1 A_NG1")
    wait(e, KC, 1)
    e(f"ds_read_b32 v29, v8 offset:{KNP}\ns_waitcnt lgkmcnt(0)\nv_add_f32 v31, v31, v29")
    for c in (1, 2, 4, 8): e(f"s_nop 1\nv_max_f32_dpp v31, v31, v31 row_ror:{c} row_mask:0xf bank_mask:0xf")
    flag_store(e, "v[30:31]", "s71", True)
    e("A_NG1:\n@S 3\n@U 4")
    if XTE:
        e("s_waitcnt vmcnt(0)")
        flag_store(e, "v30", "s83")
    e("s_branch A_QSYNC\nA_DMAW:")
    srd(e, 56, 10, 448 * 896)
    wdma_voff(e, 6)
    for i in range(64): e(f"v_accvgpr_write_b32 a{i}, 0")
    MASK = "s_mov_b32 exec_lo, 0xf3ff3fff\ns_mov_b32 exec_hi, 0xfff3ff3f"
    e(f"""
    s_sub_u32 s65, s3, 2
    s_lshl_b32 s66, s65, 10
    s_add_u32 m0, s66, {WB}
    s_mul_i32 s65, s65, 3584
    s_mul_i32 s66, s5, 224
    s_add_u32 s65, s65, s66
    """)
    wait(e, ISS, 2)
    e("@S 1")
    if ABL == "kgen": e("@E 0\ns_endpgm")
    e(MASK)
    def dma_loop(n, lab):
        if 'nodma' in ABL: return
        e(f"""
        s_mov_b32 s66, {n//2}
        {lab}:
        buffer_load_dwordx4 v6, s[56:59], s65 offen lds
        s_add_u32 m0, m0, 2048
        s_add_u32 s65, s65, 7168
        buffer_load_dwordx4 v6, s[56:59], s65 offen lds
        s_add_u32 m0, m0, 2048
        s_add_u32 s65, s65, 7168
        s_sub_u32 s66, s66, 1
        s_cmp_lg_u32 s66, 0
        s_cbranch_scc1 {lab}
        """)
    dma_loop(42, "A_DL2")
    e("s_mov_b64 exec, -1")
    nonce_issue(e, 30)
    e("@S 2\n@U 1")
    if ORD == 0:
        wait(e, C1, 2)
        xfrag_reads(e, 78)
        signal(e, XF_)
    wait(e, KVD, 2)
    e("@U 2")
    e(MASK)
    dma_loop(14, "A_DL3")
    e("s_mov_b64 exec, -1\n@S 3\n@U 3")
    if ORD == 1:
        xfrag_reads(e, 78)
        signal(e, XF_)
    e("s_waitcnt vmcnt(14)\n@U 4")
    signal(e, CA)
    nonce_check(e, 30)
    e("A_QSYNC:")
    e(f"""
    buffer_load_dword v14, v77, s[44:47], s79 offen sc1
    v_lshrrev_b32 v12, 5, v1
    v_bfe_u32 v13, v1, 2, 2
    v_lshl_add_u32 v10, v12, 3, v13
    v_lshlrev_b32 v10, 8, v10
    v_bfe_u32 v11, v1, 4, 1
    v_lshlrev_b32 v11, 5, v11
    v_and_b32 v16, 3, v1
    v_lshl_add_u32 v11, v16, 3, v11
    s_mul_i32 s65, s3, 56
    v_add_u32 v11, s65, v11
    v_lshlrev_b32 v13, 6, v13
    v_xor_b32 v11, v11, v13
    v_add_u32 v10, v10, v11
    v_add_u32 v7, {WB}, v10
    v_add_u32 v8, {WB + 65536}, v10
    s_lshl_b32 s65, s3, 11
    s_add_u32 s65, s65, {WB}
    v_add_u32 v10, s65, v2
    v_lshlrev_b32 v11, 2, v1
    s_lshl_b32 s65, s3, 16
    s_add_u32 s52, s42, s65
    s_addc_u32 s53, s43, 0
    s_mov_b32 s54, 0x10000
    s_mov_b32 s55, 0x00020000
    s_lshr_b32 s80, s2, 3
    s_add_u32 s80, s80, s5
    s_lshl_b32 s80, s80, 13
    s_and_b32 s80, s80, {0xffff if ROT else 0}
    s_mov_b32 s81, 0
    s_mov_b32 s82, 0
    s_lshl_b32 s65, s3, 2
    v_mov_b32 v9, s65
    """)
    wait(e, CA, 3)
    e("@S 4\n@V 1")
    def kv_first():
        e(f"""
        s_add_u32 s70, s80, 4096
        buffer_load_dwordx4 {vr(KV[0],4)}, v2, s[52:55], s80 offen sc1
        buffer_load_dwordx4 {vr(KV[0]+4,4)}, v2, s[52:55], s80 offen offset:1024 sc1
        buffer_load_dwordx4 {vr(KV[0]+8,4)}, v2, s[52:55], s80 offen offset:2048 sc1
        buffer_load_dwordx4 {vr(KV[0]+12,4)}, v2, s[52:55], s80 offen offset:3072 sc1
        buffer_load_dwordx4 {vr(KV[1],4)}, v2, s[52:55], s70 offen sc1
        buffer_load_dwordx4 {vr(KV[1]+4,4)}, v2, s[52:55], s70 offen offset:1024 sc1
        """)
    ACC, FB = 48, 64
    WBUF = [16, 20, 24, 32, 36, 40]
    L = Lds(e); DEP = 5
    def rq(s):
        b = WBUF[s % 6]; w = 7 if s < 16 else 8; o = 4096 * (s % 16)
        L.op(f"ds_read_b64_tr_b16 {vr(b,2)}, v{w} offset:{o}")
        L.op(f"ds_read_b64_tr_b16 {vr(b+2,2)}, v{w} offset:{o+1024}", s)
    for s in range(DEP): rq(s)
    L.op(f"s_mov_b64 exec, 1\nds_add_u32 v3, v4 offset:{C3}\ns_mov_b64 exec, -1")
    for s in range(28):
        if s == 11:
            e("s_cmp_lt_u32 s3, 2\ns_cbranch_scc1 A_NOCB\ns_waitcnt vmcnt(1)")
            signal(e, CB)
            e("A_NOCB:")
        if s == 14: L.op(f"ds_read_b64 v[44:45], v3 offset:{CB}", "cb")
        if s + DEP == 21:
            L.wait("cb")
            e(f"""
            @V 2
            v_readfirstlane_b32 s64, v44
            v_readfirstlane_b32 s65, v45
            s_cmp_ge_u32 s64, 2
            s_cbranch_scc1 A_CBOK
            """)
            wait(e, CB, 2)
            e("A_CBOK:\ns_cmp_ge_u32 s65, 4\ns_cbranch_scc1 A_C3OK")
            wait(e, C3, 4)
            e("A_C3OK:\n@V 3")
        if s == KVCHK:
            e(f"""
            s_waitcnt vmcnt(0)
            """)
            if not XTE: e(f"""
            s_cmp_ge_u32 s3, 2
            s_cbranch_scc1 A_NOXF
            s_mov_b64 exec, 1
            buffer_store_dword v30, v3, s[44:47], s83 offen sc1
            s_mov_b64 exec, -1
            A_NOXF:
            """)
            e(f"""
            v_cmp_ne_u32 vcc, s60, v14
            s_cbranch_vccnz A_NOTYET
            """)
            kv_first()
            e(f"""
            s_mov_b32 s81, 1
            s_branch A_YET
            A_NOTYET:
            buffer_load_dword v14, v77, s[44:47], s79 offen sc1
            A_YET:
            """)
        if s + DEP < 28: rq(s + DEP)
        L.wait(s)
        e(f"v_mfma_f32_32x32x16_bf16 {vr(ACC,16)}, {vr(WBUF[s%6],4)}, {xfrag(s)}, " + ("0" if s == 0 else vr(ACC,16)))
    e("@V 4")
    for i in range(8): e(f"v_mov_b32 v{P[1]+i}, 0")
    for i in range(4): e(f"v_mov_b32 v{KV[1]+8+i}, 0")
    for i in range(8): e(f"v_cvt_pk_bf16_f32 v{FB+i}, v{ACC+2*i}, v{ACC+2*i+1}")
    e(f"""
    v_cndmask_b32 v{FB+6}, v{FB+6}, 0, s[62:63]
    v_cndmask_b32 v{FB+7}, v{FB+7}, 0, s[62:63]
    ds_write_b128 v10, {vr(FB,4)}
    ds_write_b128 v10, {vr(FB+4,4)} offset:1024
    """)
    signal(e, C4)
    e(f"""
    s_cmp_lg_u32 s3, 3
    s_cbranch_scc1 A_NOG
    v_mul_f32 v6, {f2u(-LOG2E)}, v{ACC+12}
    v_exp_f32 v6, v6
    s_nop 0
    v_add_f32 v6, 1.0, v6
    v_rcp_f32 v6, v6
    s_mov_b32 exec_lo, 0
    ds_write_b32 v11, v6 offset:{GOF - 128}
    s_mov_b32 exec_lo, -1
    A_NOG:
    v_mov_b32 v6, 0
    """)
    for i in range(4): e(f"v_mov_b32 v{KV[1]+12+i}, 0")
    for i in range(8): e(f"v_dot2c_f32_bf16 v6, v{FB+i}, v{FB+i}")
    e("""
    s_nop 2
    v_mov_b32 v7, v6
    s_nop 1
    v_permlane32_swap_b32 v6, v7
    s_nop 1
    v_add_f32 v6, v6, v7
    """)
    def rowmax(v, t, full):
        for c in (1, 2, 4, 8): e(f"s_nop 1\nv_max_f32_dpp v{v}, v{v}, v{v} row_ror:{c} row_mask:0xf bank_mask:0xf")
        e(f"v_mov_b32 v{t}, v{v}\ns_nop 1\nv_permlane16_swap_b32 v{v}, v{t}\ns_nop 1\nv_max_f32 v{v}, v{v}, v{t}")
        if full: e(f"v_mov_b32 v{t}, v{v}\ns_nop 1\nv_permlane32_swap_b32 v{v}, v{t}\ns_nop 1\nv_max_f32 v{v}, v{v}, v{t}")
    rowmax(6, 7, False)
    e(f"s_mov_b64 exec, 1\nds_write_b32 v9, v6 offset:{QN}\ns_mov_b64 exec, -1")
    for j in range(4):
        e(f"""
        s_add_u32 s65, s3, {j+1}
        s_and_b32 s65, s65, 3
        s_lshl_b32 s66, s65, 11
        s_add_u32 s66, s66, {WB}
        v_add_u32 v{44+j}, s66, v2
        """)
    e("@V 5")
    wait(e, C4, 4)
    for j in range(4):
        e(f"ds_read_b128 {vr(Q+8*j,4)}, v{44+j}\nds_read_b128 {vr(Q+8*j+4,4)}, v{44+j} offset:1024" if j < 3 else
          f"ds_read_b128 {vr(Q+8*j,4)}, v{44+j}\nds_read_b128 {vr(48,4)}, v{44+j} offset:1024")
    e(f"""
    @S 5
    s_cmp_lg_u32 s81, 0
    s_cbranch_scc1 A_GOT
    A_POLL:
    s_waitcnt vmcnt(0)
    v_cmp_ne_u32 vcc, s60, v14
    s_cbranch_vccz A_GOT0
    s_sub_u32 s61, s61, 1
    s_cbranch_scc1 BAIL
    buffer_load_dword v14, v77, s[44:47], s79 offen sc1
    s_branch A_POLL
    A_GOT0:
    @U 5
    """)
    kv_first()
    e("A_GOT:")
    signal(e, C5)
    e(f"""
    s_mul_i32 s65, s3, 12288
    s_add_u32 s65, s65, {WB}
    v_add_u32 v6, s65, v2
    v_lshlrev_b32 v15, 2, v1
    s_waitcnt lgkmcnt(1)
    """)
    for i in range(4): e(f"v_mov_b32 v{44+i}, v{48+i}")
    for d in range(3):
        e(f"s_sub_u32 s65, s3, {d+1}\ns_and_b32 s65, s65, 3\ns_mul_i32 s65, s65, 12288\ns_add_u32 s65, s65, {WB + 4096*d}\nv_add_u32 v{12+d}, s65, v2")
    e(f"""
    s_waitcnt vmcnt(2)
    A_MAIN:
    s_setprio {LPRIO}
    @S 6
    """)
    def qk(i, tile):
        kb = KV[(tile >> 2) & 1]; s = S[tile & 1]; q = Q + 8 * (tile & 3)
        return f"v_mfma_f32_32x32x16_bf16 {vr(s,16)}, {vr(kb+4*i,4)}, {vr(q+4*i,4)}, " + ("0" if i == 0 else vr(s,16))
    def pv(i, tile):
        vb = KV[(tile >> 2) & 1] + 8; p = P[tile & 1]; o = 16 * (tile & 3)
        return f"v_mfma_f32_32x32x16_bf16 {ar(o,16)}, {vr(vb+4*i,4)}, {vr(p+4*i,4)}, {ar(o,16)}"
    def ld(reg, off): return f"buffer_load_dwordx4 {vr(reg,4)}, v2, s[52:55], s70 offen offset:{off} sc1"
    def pw(d, i): return f"ds_write_b128 v6, {ar(16*d+4*i,4)} offset:{4096*d+1024*i}"
    stubs = []
    def chk(reg): return [f"v_max_u32 v7, v{reg}, v{reg+4}", "v_cmp_eq_u32 vcc, -1, v7"]
    def br(reg, off):
        n = len(stubs); stubs.append((reg, off))
        return [f"s_cbranch_vccnz A_RL{n}", f"A_RB{n}:"]
    for x in chk(KV[0]) + ["s_nop 0"] + br(KV[0], 0): e(x)
    e("@U 6\n@V 6")
    e(qk(0, 0)); e(qk(1, 0))
    e(f"v_mov_b32 v{S[1]+14}, 0\nv_mov_b32 v{S[1]+15}, 0\ns_mov_b32 s73, 7\ns_mov_b32 s72, {f2u(SAFE_BOUND**2)}\ns_nop 5")
    pat = "pCeeee" "qceecee" "Qceeceec" "Peeceec"
    def step(j, last):
        s = S[j & 1]; p = P[j & 1]; sp = S[(j + 1) & 1]; pp = P[(j + 1) & 1]
        ex = [f"v_exp_f32 v{s+i}, v{s+i}" for i in range(16)]
        cv = [f"v_cvt_pk_bf16_f32 v{p+i}, v{s+2*i}, v{s+2*i+1}" for i in range(7)]
        side = {"p": [], "q": [], "Q": [], "P": []}
        pre = {"p": [], "q": []}
        if j == 0: side["P"] = ["s_waitcnt vmcnt(2)"] + chk(KV[0] + 8)
        if j == 1: pre["p"] = br(KV[0] + 8, 2048); side["q"] = [ld(KV[1] + 8, 2048)]; side["Q"] = [ld(KV[1] + 12, 3072)]; side["P"] = ["s_add_u32 s70, s70, 4096", "s_and_b32 s70, s70, 0xffff"]
        if j == 3: side["p"] = ["s_waitcnt vmcnt(2)"] + chk(KV[1]); pre["q"] = br(KV[1], 0)
        if not last:
            if j == 4: side["P"] = ["s_waitcnt vmcnt(2)"] + chk(KV[1] + 8)
            if j == 3: side["Q"] = [ld(KV[0], 0)]; side["P"] = [ld(KV[0] + 4, 1024)]
            if j == 5: pre["p"] = br(KV[1] + 8, 2048); side["q"] = [ld(KV[0] + 8, 2048)]; side["Q"] = [ld(KV[0] + 12, 3072)]; side["P"] = ["s_add_u32 s70, s70, 4096"]
            if j == 7: side["p"] = ["s_waitcnt vmcnt(2)"] + chk(KV[0]); pre["q"] = br(KV[0], 0); side["Q"] = [ld(KV[1], 0), "s_sub_u32 s73, s73, 1"]; side["P"] = [ld(KV[1] + 4, 1024), "s_cmp_lg_u32 s73, 0"]
        else:
            if j == 0: side["q"] = [f"ds_read_b32 v5, v3 offset:{C7}"]
            if j == 2:
                side["p"] = ["s_waitcnt lgkmcnt(0)"]; side["q"] = ["v_readfirstlane_b32 s64, v5"]
                side["Q"] = ["s_cmp_ge_u32 s64, 4", "s_cbranch_scc0 A_C7WAIT", "A_C7OK:", f"ds_read_b128 {vr(KV[0],4)}, v3 offset:{QN}"]
                side["P"] = [f"ds_read_b128 {vr(KV[0]+4,4)}, v3 offset:{KN}"]
            if j == 4:
                k = KV[0]
                side["p"] = ["s_waitcnt lgkmcnt(0)", f"v_max3_f32 v{k}, v{k}, v{k+1}, v{k+2}", f"v_max3_f32 v{k+4}, v{k+4}, v{k+5}, v{k+6}"]
                side["q"] = [f"v_max_f32 v{k}, v{k}, v{k+3}", f"v_max_f32 v{k+4}, v{k+4}, v{k+7}"]
                side["Q"] = [f"v_mul_f32 v{k}, v{k}, v{k+4}"]
                side["P"] = [f"v_cmp_nle_f32 s[76:77], v{k}, s72", "s_waitcnt vmcnt(0)"] + chk(KV[1] + 8)
            if j == 5:
                pre["p"] = br(KV[1] + 8, 2048)
                side["p"] = ["s_cmp_lg_u64 s[76:77], 0", "s_cbranch_scc1 A_UNSAFE", "A_SAFE:"]
            if j >= 6: side["q"] = [pw(j-6, 0)]; side["Q"] = [pw(j-6, 1)]; side["P"] = [pw(j-6, 2), pw(j-6, 3)]
        for ch in pat:
            if ch == "p":
                for x in pre["p"]: e(x)
                e(pv(0, (j - 1) & 7))
            elif ch == "P": e(pv(1, (j - 1) & 7))
            elif ch == "q":
                for x in pre["q"]: e(x)
                if not (last and j == 7): e(qk(0, j + 1))
            elif ch == "Q":
                if not (last and j == 7): e(qk(1, j + 1))
            elif ch == "C": e(f"v_cvt_pk_bf16_f32 v{pp+7}, v{sp+14}, v{sp+15}")
            elif ch == "e": e(ex.pop(0))
            elif ch == "c": e(cv.pop(0))
            if ch in side:
                for x in side[ch]: e(x)
        assert not ex and not cv
    if STAMP == 4 and CYC: e("s_memtime s[86:87]\ns_waitcnt lgkmcnt(0)")
    e(".p2align 6\nA_LOOP:")
    for j in range(8): step(j, False)
    if STAMP == 4: e(("s_memtime" if CYC else "s_memrealtime") + " s[84:85]\ns_waitcnt lgkmcnt(0)\ns_mov_b32 m0, s73\nv_writelane_b32 v8, s84, m0")
    e("s_cbranch_scc1 A_LOOP")
    if STAMP == 4:
        if CYC: e("v_subrev_u32 v8, s86, v8\nv_add_u32 v8, s100, v8\ns_nop 1")
        for i in range(1, 7): e(f"v_readlane_b32 s{100-2*i}, v8, {LSEL[i-1]}\ns_mov_b32 s{101-2*i}, s101")
    for j in range(8): step(j, True)
    e("s_setprio 3")
    e(pv(0, 7))
    e(f"""
    v_cvt_pk_bf16_f32 v{P[1]+7}, v{S[1]+14}, v{S[1]+15}
    s_lshl_b32 s65, s3, 10
    s_add_u32 s65, s65, {CX}
    """)
    e(pv(1, 7))
    e(f"""
    v_add_u32 v7, s65, v15
    s_lshl_b32 s65, s4, 2
    s_add_u32 s65, s65, s5
    s_lshl_b32 s65, s65, 13
    """)
    for i in range(4): e(pw(2, i))
    e(f"""
    @T 1
    s_lshl_b32 s66, s3, 11
    s_add_u32 s74, s65, s66
    s_add_u32 s74, s74, {OF}
    s_add_u32 s65, s66, {STG}
    v_add_u32 v6, s65, v2
    s_nop 1
    """)
    for i in range(16): e(f"v_accvgpr_read_b32 v{16+i}, a{48+i}")
    e(f"""
    s_waitcnt lgkmcnt(0)
    s_barrier
    @T 2
    """)
    R = 48
    for d in range(3):
        for i in range(4): e(f"ds_read_b128 {vr(R+16*d+4*i,4)}, v{12+d} offset:{1024*i}")
    for d in range(1, 4):
        e(f"""
        s_add_u32 s65, s5, {d}
        s_and_b32 s65, s65, 3
        s_lshl_b32 s65, s65, 13
        s_add_u32 s65, s65, s66
        s_lshl_b32 s{75+d}, s4, 15
        s_add_u32 s{75+d}, s{75+d}, s65
        s_add_u32 s{75+d}, s{75+d}, {OF}
        """)
    e("s_cmp_lg_u32 s82, 0\ns_cbranch_scc1 A_RESCALE\nA_SUM:")
    for d in range(3):
        e(f"s_waitcnt lgkmcnt({4*(2-d)})")
        for i in [12] + [i for i in range(16) if i != 12]: e(f"v_add_f32 v{16+i}, v{16+i}, v{R+16*d+i}" if (d < 2 or i == 12) else "")
    e(f"""
    v_mov_b32 v36, v28
    v_mov_b32 v37, v28
    v_add_f32 v16, v16, v{R+32}
    v_add_f32 v17, v17, v{R+33}
    v_permlane32_swap_b32 v36, v37
    v_add_f32 v18, v18, v{R+34}
    v_add_f32 v19, v19, v{R+35}
    v_rcp_f32 v37, v37
    """)
    for i in range(4, 16):
        if i != 12: e(f"v_add_f32 v{16+i}, v{16+i}, v{R+32+i}")
    e("s_mov_b32 s75, 0xfffffffe")
    for i in range(16): e(f"v_mul_f32 v{16+i}, v{16+i}, v37")
    for i in range(8): e(f"v_cvt_pk_bf16_f32 v{40+i}, v{16+2*i}, v{17+2*i}")
    e(f"v_cndmask_b32 v46, v46, 0, s[62:63]\nv_cndmask_b32 v47, v47, 0, s[62:63]")
    for i in range(8): e(f"v_min_u32 v{40+i}, s75, v{40+i}")
    e(f"""
    {"" if NOFAST else "buffer_store_dwordx4 v[40:43], v2, s[44:47], s74 offen"}
    {"" if NOFAST else "buffer_store_dwordx4 v[44:47], v2, s[44:47], s74 offen offset:1024"}
    ds_write_b128 v6, v[40:43]
    ds_write_b128 v6, v[44:47] offset:1024
    """)
    signal(e, G0)
    e("@T 3\ns_mov_b32 s73, 14\ns_mov_b32 s72, 0\nA_GATHER:")
    for d in range(1, 4):
        e(f"""
        s_bitcmp0_b32 s73, {d}
        s_cbranch_scc1 A_GL{d}
        buffer_load_dwordx4 {vr(40+8*d,4)}, v2, s[44:47], s{75+d} offen sc1
        buffer_load_dwordx4 {vr(44+8*d,4)}, v2, s[44:47], s{75+d} offen offset:1024 sc1
        A_GL{d}:
        """)
    e("s_waitcnt vmcnt(0)")
    for d in range(1, 4):
        b = 40 + 8*d
        e(f"""
        s_bitcmp0_b32 s73, {d}
        s_cbranch_scc1 A_GC{d}
        v_max3_u32 v16, v{b}, v{b+1}, v{b+2}
        v_max3_u32 v16, v16, v{b+3}, v{b+4}
        v_max3_u32 v16, v16, v{b+5}, v{b+6}
        v_max_u32 v16, v16, v{b+7}
        v_cmp_eq_u32 vcc, -1, v16
        s_cbranch_vccnz A_GC{d}
        ds_write_b128 v6, {vr(b,4)} offset:{8192*d}
        ds_write_b128 v6, {vr(b+4,4)} offset:{8192*d+1024}
        s_bitset0_b32 s73, {d}
        """)
        signal(e, G0 + 4*d)
        e(f"A_GC{d}:")
    e(f"""
    s_cmp_eq_u32 s73, 0
    s_cbranch_scc1 A_DONE
    s_sub_u32 s61, s61, 1
    s_cbranch_scc1 BAIL
    s_add_u32 s72, s72, 1
    s_and_b32 s65, s72, 7
    s_cmp_lg_u32 s65, 0
    s_cbranch_scc1 A_GATHER
    v_add_u32 v16, s5, v1
    v_and_b32 v16, 3, v16
    v_lshlrev_b32 v16, 8, v16
    s_lshl_b32 s65, s4, 10
    s_lshl_b32 s66, s3, 6
    s_add_u32 s65, s65, s66
    s_add_u32 s65, s65, {FO}
    buffer_load_dword v17, v16, s[44:47], s65 offen sc1
    s_waitcnt vmcnt(0)
    """)
    for d in range(1, 4):
        e(f"""
        v_readlane_b32 s65, v17, {d}
        s_cmp_eq_u32 s65, s60
        s_cselect_b32 s65, {OF - OX}, 0
        s_cmp_ge_u32 s{75+d}, {OF}
        s_cselect_b32 s65, s65, 0
        s_sub_u32 s{75+d}, s{75+d}, s65
        """)
    e(f"""
    s_branch A_GATHER
    A_DONE:
    s_waitcnt lgkmcnt(0)
    @T 4
    @E 0
    s_endpgm
    A_C7WAIT:
    """)
    wait(e, C7, 4)
    e("s_branch A_C7OK")
    for n, (reg, off) in enumerate(stubs):
        e(f"""
        A_RL{n}:
        s_sub_u32 s61, s61, 1
        s_cbranch_scc1 BAIL
        s_sub_u32 s65, s70, 4096
        s_and_b32 s65, s65, 0xffff
        s_waitcnt vmcnt(0)
        buffer_load_dwordx4 {vr(reg,4)}, v2, s[52:55], s65 offen offset:{off} sc1
        buffer_load_dwordx4 {vr(reg+4,4)}, v2, s[52:55], s65 offen offset:{off+1024} sc1
        s_waitcnt vmcnt(0)
        v_max_u32 v7, v{reg}, v{reg+4}
        v_cmp_eq_u32 vcc, -1, v7
        s_cbranch_vccnz A_RL{n}
        s_branch A_RB{n}
        """)
    e(f"""
    A_RESCALE:
    ds_read2st64_b32 v[32:33], v7 offset0:0 offset1:1
    ds_read2st64_b32 v[34:35], v7 offset0:2 offset1:3
    s_waitcnt lgkmcnt(0)
    v_min_f32 v36, v32, v33
    v_min3_f32 v36, v36, v34, v35
    """)
    for d in range(4): e(f"v_sub_f32 v{32+d}, v36, v{32+d}")
    for d in range(4): e(f"v_exp_f32 v{32+d}, v{32+d}")
    e("s_nop 0")
    for i in range(16): e(f"v_mul_f32 v{16+i}, v35, v{16+i}")
    for d in range(3):
        for i in range(16): e(f"v_mul_f32 v{R+16*d+i}, v{32+d}, v{R+16*d+i}")
    e("s_branch A_SUM")
    e("A_UNSAFE:\ns_cmp_eq_u32 s82, 0\ns_cbranch_scc1 A_FALLBACK")
    for k in range(4):
        e(f"""
        s_add_u32 s65, s3, {k+1}
        s_and_b32 s65, s65, 3
        s_lshl_b32 s65, s65, 10
        s_add_u32 s65, s65, {CX + 256*k}
        v_add_u32 v7, s65, v15
        ds_write_b32 v7, v{CR+k}
        """)
    e("s_branch A_SAFE")
    T = 52
    e(f"""
    A_FALLBACK:
    s_mov_b32 s82, 1
    s_mov_b32 s74, 0
    s_mov_b32 s75, 16
    s_nop 15
    """)
    for j in range(4): e(f"v_mov_b32 v{48+j}, 0xff800000")
    e(f"""
    A_FB_LOOP:
    buffer_load_dwordx4 {vr(T,4)}, v2, s[52:55], s74 offen sc1
    buffer_load_dwordx4 {vr(T+4,4)}, v2, s[52:55], s74 offen offset:1024 sc1
    s_add_u32 s74, s74, 4096
    s_waitcnt vmcnt(0)
    """)
    for j in range(4):
        e(f"v_mfma_f32_32x32x16_bf16 {vr(64,16)}, {vr(T,4)}, {vr(Q+8*j,4)}, 0")
        e(f"v_mfma_f32_32x32x16_bf16 {vr(64,16)}, {vr(T+4,4)}, {vr(Q+8*j+4,4)}, {vr(64,16)}")
        e("s_nop 11")
        for i in range(8): e(f"v_max3_f32 v{48+j}, v{48+j}, v{64+2*i}, v{65+2*i}")
    e(f"""
    s_sub_u32 s75, s75, 1
    s_cmp_lg_u32 s75, 0
    s_cbranch_scc1 A_FB_LOOP
    s_add_u32 s70, s80, 4096
    buffer_load_dwordx4 {vr(KV[0],4)}, v2, s[52:55], s80 offen sc1
    buffer_load_dwordx4 {vr(KV[0]+4,4)}, v2, s[52:55], s80 offen offset:1024 sc1
    buffer_load_dwordx4 {vr(KV[0]+8,4)}, v2, s[52:55], s80 offen offset:2048 sc1
    buffer_load_dwordx4 {vr(KV[0]+12,4)}, v2, s[52:55], s80 offen offset:3072 sc1
    buffer_load_dwordx4 {vr(KV[1],4)}, v2, s[52:55], s70 offen sc1
    buffer_load_dwordx4 {vr(KV[1]+4,4)}, v2, s[52:55], s70 offen offset:1024 sc1
    """)
    for j in range(4): e(f"v_mov_b32 v{52+j}, v{48+j}")
    e("s_nop 0")
    for j in range(4): e(f"v_permlane32_swap_b32 v{48+j}, v{52+j}")
    e("s_nop 0")
    for j in range(4):
        m = 48 + j; t = 56
        e(f"""
        v_max_f32 v{m}, v{m}, v{52+j}
        v_sub_f32 v{m}, 0, v{m}
        v_cvt_pk_bf16_f32 v{t}, v{m}, v{m}
        v_and_b32 v{t+4}, 0xffff0000, v{t}
        v_sub_f32 v{m}, v{m}, v{t+4}
        v_cvt_pk_bf16_f32 v{t+2}, v{m}, v{m}
        v_and_b32 v{t+1}, 0xffff0000, v{t+2}
        v_sub_f32 v{m}, v{m}, v{t+1}
        v_cvt_pk_bf16_f32 v{t+3}, v{m}, 0
        v_and_b32 v{t}, 0xffff, v{t}
        v_or_b32 v{t}, v{t}, v{t+1}
        v_cndmask_b32 v{Q+8*j+6}, v{Q+8*j+6}, v{t}, s[62:63]
        v_cndmask_b32 v{Q+8*j+7}, v{Q+8*j+7}, v{t+3}, s[62:63]
        v_lshlrev_b32 v{t+3}, 16, v{t+3}
        v_add_f32 v{t+1}, v{t+1}, v{t+3}
        v_add_f32 v{CR+j}, v{t+4}, v{t+1}
        """)
    for i in range(64): e(f"v_accvgpr_write_b32 a{i}, 0")
    for i in range(8): e(f"v_mov_b32 v{P[1]+i}, 0\nv_mov_b32 v{KV[1]+8+i}, 0")
    e("s_waitcnt vmcnt(2)\ns_branch A_MAIN")

def helper_path(e):
    e.h = True
    e(f"""
    HELPER:
    s_setprio {HPRIO}
    s_sub_u32 s3, s3, 4
    s_lshr_b32 s6, s3, 1
    s_and_b32 s7, s3, 1
    s_min_u32 s76, s2, 223
    s_or_b32 s65, s2, s3
    s_cmp_lg_u32 s65, 0
    s_cbranch_scc1 H_NON
    s_memrealtime s[66:67]
    s_waitcnt lgkmcnt(0)
    s_or_b32 s66, s66, 1
    v_mov_b32 v5, s66
    global_store_dword v3, v5, s[40:41] sc0 sc1
    H_NON:
    s_lshl_b32 s65, s76, 2
    s_load_dword s66, s[32:33], s65
    s_load_dword s67, s[34:35], s65
    s_lshl_b32 s65, s76, 10
    s_lshl_b32 s68, s3, 8
    s_add_u32 s65, s65, s68
    v_lshl_add_u32 v8, v1, 2, s65
    """)
    for i in range(6): e(f"global_load_dword v{96+i}, v8, s[{20+2*i}:{21+2*i}]")
    if CPF in (1, 2):
        e(f"""
        s_cmp_eq_u32 s3, 3
        s_cbranch_scc0 H_NCPF
        s_getpc_b64 s[84:85]
        H_PC:
        s_sub_u32 s84, s84, H_PC - {NAME}
        s_subb_u32 s85, s85, 0
        """)
        if CPF == 1:
            e(f"""
            s_lshr_b32 s65, s2, 3
            s_mul_i32 s65, s65, {6*128}
            v_lshl_add_u32 v9, v1, 7, s65
            v_min_u32 v9, CODE_END - {NAME} - 4, v9
            s_mov_b64 exec, 63
            global_load_dword v90, v9, s[84:85]
            s_mov_b64 exec, -1
            """)
        else:
            for i in range(3):
                e(f"""
                v_lshlrev_b32 v9, 7, v1
                v_add_u32 v9, {8192*i}, v9
                v_min_u32 v9, CODE_END - {NAME} - 4, v9
                global_load_dword v{90+i}, v9, s[84:85]
                """)
        e("H_NCPF:")
    e("s_barrier")
    srd(e, 48, 16, 448 * 896)
    if 'noH' in ABL:
        signal(e, C7)
        e("@T 2\ns_barrier\n@E 0\ns_endpgm")
    e(f"""
    s_mul_i32 s77, s3, {KGS}
    v_and_b32 v9, 15, v1
    v_lshrrev_b32 v10, 4, v1
    s_mov_b32 s8, 0xaaaaaaaa
    s_mov_b32 s9, s8
    s_mov_b32 s10, 0xcccccccc
    s_mov_b32 s11, s10
    s_mov_b32 s12, 0xf0f0f0f0
    s_mov_b32 s13, s12
    s_mov_b32 s14, 0xff00ff00
    s_mov_b32 s15, s14
    v_mul_u32_u24 v12, 1088, v10
    v_lshl_add_u32 v12, v9, 2, v12
    v_add_u32 v12, s77, v12
    s_lshl_b32 s68, s6, 4
    s_lshl_b32 s78, s6, 2
    v_mov_b32 v6, s78
    @S 1
    s_waitcnt lgkmcnt(0)
    s_lshr_b32 s66, s66, s68
    s_lshl_b32 s66, s66, 16
    s_lshr_b32 s67, s67, s68
    s_lshl_b32 s67, s67, 16
    v_mov_b32 v13, s66
    v_mul_f32 v13, {f2u(LOG2E)}, v13
    v_exp_f32 v13, v13
    s_nop 0
    v_cvt_pk_bf16_f32 v13, v13, v13
    v_and_b32 v13, 0xffff0000, v13
    """)
    P1_, P8, P256, P32 = 14, 16, 18, 20
    Y = [22, 24, 26, 28]
    X0, X2, X4, X6, XC = 30, 32, 34, 36, 38
    T0, T1 = 40, 42
    C = 44
    YF, XF, D = 48, 80, 112
    PR = 2
    e("s_waitcnt vmcnt(0)\n@S 2\n@U 1")
    for i in range(6): e(f"v_and_b32 v{102+i}, 0xffff0000, v{96+i}")
    for i in range(6): e(f"v_accvgpr_write_b32 a{i}, v{102+i}")
    for i in range(6): e(f"v_lshlrev_b32 v{96+i}, 16, v{96+i}")
    AR, AI, BR, BI, CRE, CIM = 96, 97, 98, 99, 100, 101
    def unit(mode, first):
        e(f"""
        v_mul_f32 v{AR}, v13, v{AR}
        v_mul_f32 v{AI}, v13, v{AI}
        v_mul_f32 v{AR}, {f2u(LOG2E)}, v{AR}
        v_mul_f32 v{AI}, 0.15915494, v{AI}
        v_mul_f32 v{BR}, v13, v{BR}
        v_mul_f32 v{BI}, v13, v{BI}
        """)
        R = {}
        free = [(r, r + 1) for r in range(14, 44, 2)]
        def alloc(): return free.pop(0)
        def anchor(name, l):
            t = alloc(); d = alloc(); R[name] = d
            if l == 1:
                e(f"v_fract_f32 v{t[1]}, v{AI}\nv_exp_f32 v{t[0]}, v{AR}")
            else:
                e(f"v_mul_f32 v{t[1]}, {f2u(float(l))}, v{AI}\nv_mul_f32 v{t[0]}, {f2u(float(l))}, v{AR}\nv_fract_f32 v{t[1]}, v{t[1]}\nv_exp_f32 v{t[0]}, v{t[0]}")
            e(f"v_cos_f32 v{d[0]}, v{t[1]}\nv_sin_f32 v{d[1]}, v{t[1]}\ns_nop 0")
            e(f"v_mul_f32 v{d[0]}, v{d[0]}, v{t[0]}\nv_mul_f32 v{d[1]}, v{d[1]}, v{t[0]}")
            free.append(t)
        UB_ = 96
        DP1 = ["quad_perm:[1,0,3,2]", "quad_perm:[2,3,0,1]", "row_ror:12", "row_ror:8"]
        DP0 = ["quad_perm:[1,0,3,2]", "quad_perm:[2,3,0,1]", "row_ror:4", "row_ror:8"]
        class Tile:
            def __init__(t, T, rows):
                t.T = T; valid = set(rows); t.plan = []; moves = [0] * 16
                for b in range(4):
                    g1, g0 = [], []
                    for A_ in range(16):
                        if A_ >> b & 1: continue
                        B_ = A_ | 1 << b
                        va, vb = A_ in valid, B_ in valid
                        if va and vb: g1.append(("c", B_, A_)); g0.append(("c", A_, B_)); moves[B_] += 1
                        elif va: g1.append(("m", B_, A_)); moves[B_] = 0
                        elif vb: g0.append(("m", A_, B_)); moves[A_] = 0
                        if va or vb: valid |= {A_, B_}
                    t.plan.append((g1, g0))
                t.left = moves
                t.loc = {r: (T + r if moves[r] % 2 == 0 else UB_ + r) for r in range(16)}
            def ops(t):
                out = []
                for b, (g1, g0) in enumerate(t.plan):
                    new = {}
                    if any(k == "c" for k, _, _ in g1): out.append(f"s_mov_b64 vcc, s[{8+2*b}:{9+2*b}]")
                    for k, B_, A_ in g1:
                        if k == "c":
                            d = (t.T + B_) + (UB_ + B_) - t.loc[B_]; new[B_] = d
                            out.append(f"v_cndmask_b32_dpp v{d}, v{t.loc[A_]}, v{t.loc[B_]}, vcc {DP1[b]} row_mask:0xf bank_mask:0xf")
                        else: out.append(f"v_mov_b32_dpp v{t.loc[B_]}, v{t.loc[A_]} {DP1[b]} row_mask:0xf bank_mask:0xf")
                    if any(k == "c" for k, _, _ in g0): out.append("s_not_b64 vcc, vcc")
                    for k, A_, B_ in g0:
                        if k == "c": out.append(f"v_cndmask_b32_dpp v{t.loc[A_]}, v{t.loc[B_]}, v{t.loc[A_]}, vcc {DP0[b]} row_mask:0xf bank_mask:0xf")
                        else: out.append(f"v_mov_b32_dpp v{t.loc[A_]}, v{t.loc[B_]} {DP0[b]} row_mask:0xf bank_mask:0xf")
                    t.loc.update(new)
                assert all(t.loc[r] == t.T + r for r in range(16))
                return out
        pend = []; cur = [None]
        def op(x): return f"v{x}" if isinstance(x, int) else x
        def flush():
            while pend:
                src, d = pend.pop(0)
                e(f"v_cvt_pk_bf16_f32 v{d}, {op(src[0])}, {op(src[1])}")
        def rel(p): free.append(p)
        def mul(z, x, y, conj=False):
            X, Y_ = R[x], R[y]
            t = alloc()
            if mode == "p":
                if z in R and all(p[0] != R[z] for p in pend): d = R[z]
                else: d = alloc()
                cmul(e, d[0], X[0], Y_[0], t[0], conj)
                rel(t)
            else:
                d = t
                e(f"v_mul_f32 v{d[0]}, v{X[0]}, v{Y_[0]}\nv_mul_f32 v{d[1]}, v{X[1]}, v{Y_[0]}")
                n0, n1 = ("", "-") if conj else ("-", "")
                e(f"v_fma_f32 v{d[0]}, {n0}v{X[1]}, v{Y_[1]}, v{d[0]}")
                e(f"v_fma_f32 v{d[1]}, {n1}v{X[0]}, v{Y_[1]}, v{d[1]}" if conj else f"v_fmac_f32 v{d[1]}, v{X[0]}, v{Y_[1]}")
            flush()
            if z in R and R[z] != d: rel(R[z])
            R[z] = d
        def put(name, row): pend.append((R[name], cur[0].loc[row]))
        def turn(nxt):
            flush()
            e("s_nop 0")
            hist = [None, None]
            for x in cur[0].ops():
                if "_dpp" in x:
                    w = x.replace(",", " ").split()
                    if w[2] == hist[1]: e("s_nop 1"); hist = [None, None]
                    elif w[2] == hist[0]: e("s_nop 0"); hist = [None, None]
                    hist = [hist[1], w[1]]
                else: hist = [hist[1], None]
                e(x)
            cur[0] = nxt
        def mm(rt, xf):
            e("s_nop 1")
            for ks in range(4):
                for ct in range(2):
                    d = D + 4 * (2 * rt + ct)
                    e(f"v_mfma_f32_16x16x32_bf16 {vr(d,4)}, {vr(xf+4*ks,4)}, {vr(YF+16*ct+4*ks,4)}, " + ("0" if first and ks == 0 else vr(d,4)))
        anchor("P8", 8)
        anchor("P1", 1)
        anchor("P256", 256)
        R["C"] = (CRE, CIM); R["B"] = (BR, BI); R["one"] = ("1.0", "0")
        mul("X0", "C", "B")
        e(f"v_xor_b32 v{R['X0'][1]}, 0x80000000, v{R['X0'][1]}")
        cur[0] = Tile(YF, range(16))
        put("one", 0); put("P8", 1)
        mul("Y2", "P8", "P8"); put("Y2", 2)
        mul("Y3", "Y2", "P8"); put("Y3", 3)
        mul("P32", "Y2", "Y2"); put("P32", 4)
        mul("Y1", "P8", "P32"); put("Y1", 5)
        rel(R.pop("P8"))
        mul("Y2", "Y2", "P32"); put("Y2", 6)
        mul("Y3", "Y3", "P32"); put("Y3", 7)
        mul("Y0", "P32", "P32"); put("Y0", 8)
        for c in range(9, 32):
            mul(f"Y{c%4}", f"Y{c%4}", "P32")
            if c == 16: turn(Tile(YF + 16, range(16)))
            put(f"Y{c%4}", c % 16)
        mul("XC", "X0", "P1", True)
        turn(Tile(XF, range(16)))
        e("@U 2" if first else "@U 4")
        for n in ("Y0", "Y1", "Y2", "Y3", "P32"): rel(R.pop(n))
        put("X0", 4); put("XC", 5)
        mul("Z0", "X0", "P256", True); put("Z0", 0)
        mul("X2", "XC", "P1", True); put("X2", 6)
        mul("Z0", "Z0", "P256", True); put("Z0", 1)
        mul("XC", "X2", "P1", True); put("XC", 7)
        mul("Z0", "Z0", "P256", True); put("Z0", 2)
        mul("X4", "XC", "P1", True); put("X4", 8)
        mul("Z0", "Z0", "P256", True); put("Z0", 3)
        mul("XC", "X4", "P1", True); put("XC", 9)
        mul("X2", "X2", "P256", True); put("X2", 12)
        mul("X6", "XC", "P1", True); put("X6", 10)
        mul("X4", "X4", "P256", True); put("X4", 13)
        mul("XC", "X6", "P1", True); put("XC", 11)
        mul("X6", "X6", "P256", True); put("X6", 14)
        mul("X4", "X4", "P256", True); put("X4", 15)
        mul("Z0", "Z0", "P256", True)
        turn(None)
        mm(0, XF)
        mul("Z1", "Z0", "P256", True)
        mul("X4", "X4", "P256", True)
        mul("Z2", "Z1", "P256", True)
        mul("Z3", "Z2", "P256", True)
        cur[0] = Tile(XF, [0, 1, 2, 3, 12])
        put("Z0", 0); put("Z1", 1); put("X4", 12); put("Z2", 2); put("Z3", 3)
        turn(None)
        mm(1, XF)
        e("@U 3" if first else "@U 5")
    unit(KG[0], True)
    if 'half' not in ABL:
        for i in range(6): e(f"v_accvgpr_read_b32 v{96+i}, a{i}")
        unit(KG[1], False)
    nonce_issue(e, 8)
    e(f"""
    s_lshr_b32 s65, s2, 3
    s_mul_i32 s65, s65, 12544
    s_lshl_b32 s68, s3, 12
    s_add_u32 s65, s65, s68
    v_lshlrev_b32 v9, 6, v1
    buffer_load_dword v7, v9, s[48:51], s65 offen
    """)
    for rt in range(2):
        for ct in range(2):
            for r in range(4):
                e(f"ds_write_b32 v12, v{D+4*(2*rt+ct)+r} offset:{(4*rt+r)*128+ct*64}")
    signal(e, P1, "v6")
    e("@S 3")
    if ABL == "kgen" or 'dmaonly' in ABL: e("@E 0\ns_endpgm")
    e(f"""
    s_mul_i32 s80, s76, 1171
    s_lshr_b32 s80, s80, 16
    s_mul_i32 s65, s80, 56
    s_sub_u32 s65, s76, s65
    s_lshr_b32 s66, s65, 4
    s_lshr_b32 s65, s65, 5
    s_lshl_b32 s81, s80, 2
    s_add_u32 s66, s66, s81
    s_lshl_b32 s66, s66, 12
    s_add_u32 s84, s66, {FC}
    s_lshl_b32 s66, s80, 1
    s_add_u32 s65, s65, s66
    s_lshl_b32 s65, s65, 12
    s_add_u32 s81, s65, {FXT}
    v_lshlrev_b32 v9, 6, v1
    s_mul_i32 s77, s6, {2*KGS}
    s_waitcnt vmcnt(0)
    """)
    nonce_check(e, 8)
    e("buffer_load_dword v10, v9, s[44:47], s81 offen sc1")
    wait(e, P1, 2, "v6")
    e(f"""
    s_lshl_b32 s65, s7, 6
    v_add_u32 v14, s65, v1
    v_lshlrev_b32 v15, 2, v14
    v_add_u32 v15, s77, v15
    ds_read2st64_b32 v[16:17], v15 offset0:{(512-128)//256} offset1:{(512-128)//256+18}
    """)
    e.l.pop()
    e(f"""
    v_add_u32 v18, 384, v15
    v_add_u32 v19, 388, v15
    ds_read2st64_b32 v[16:17], v18 offset0:0 offset1:18
    ds_read2st64_b32 v[20:21], v19 offset0:0 offset1:18
    v_and_b32 v22, 1, v1
    v_cmp_eq_u32 vcc, 1, v22
    s_cmp_eq_u32 s7, 0
    s_cbranch_scc1 H_T0
    v_subrev_u32 v18, 128, v15
    v_subrev_u32 v19, 124, v15
    v_add_u32 v22, {3648-256}, v15
    ds_read2st64_b32 v[24:25], v18 offset0:0 offset1:18
    ds_read2st64_b32 v[26:27], v19 offset0:0 offset1:18
    ds_read2st64_b32 v[28:29], v22 offset0:0 offset1:18
    s_waitcnt lgkmcnt(0)
    v_add_f32 v24, v24, v25
    v_add_f32 v26, v26, v27
    v_add_f32 v28, v28, v29
    v_cvt_pk_bf16_f32 v48, v26, v26
    v_cvt_pk_bf16_f32 v49, v28, v28
    v_cvt_pk_bf16_f32 v50, v28, v24
    v_cvt_pk_bf16_f32 v51, v24, v24
    v_mov_b32 v30, v51
    s_branch H_T2
    H_T0:
    v_and_b32 v18, 31, v1
    v_lshlrev_b32 v18, 2, v18
    v_add_u32 v18, s77, v18
    v_lshrrev_b32 v19, 5, v1
    """)
    A0 = [1088, 1216, 1344, 1472, 2176, 2304, 2432, 2560]
    A1 = [0, 0, 3264, 3392, 3392, 3392, 3520, 4]
    for j in range(8):
        e(f"""
        s_movk_i32 s65, {A1[j]-A0[j]}
        v_add_u32 v22, {A0[j]}, v18
        v_mad_i32_i24 v22, v19, s65, v22
        ds_read2st64_b32 {vr(32+2*j,2)}, v22 offset0:0 offset1:18
        """)
    e(f"""
    v_cmp_eq_u32 s[68:69], 0, v1
    v_mov_b32 v23, s67
    s_nop 0
    v_cndmask_b32 v23, 0, v23, s[68:69]
    s_waitcnt lgkmcnt(0)
    """)
    for j in range(8): e(f"v_add_f32 v{32+2*j}, v{32+2*j}, v{33+2*j}")
    e("v_add_f32 v32, v32, v23\nv_mov_b32 v30, 0")
    for i in range(4): e(f"v_cvt_pk_bf16_f32 v{48+i}, v{32+2*(7-2*i)}, v{32+2*(6-2*i)}")
    e(f"""
    s_nop 1
    v_mov_b32_dpp v30, v48 wave_shr:1 row_mask:0xf bank_mask:0xf
    H_T2:
    v_add_f32 v16, v16, v17
    v_add_f32 v20, v20, v21
    v_cndmask_b32 v24, v16, v20, vcc
    v_cvt_pk_bf16_f32 v56, v20, v20
    v_cvt_pk_bf16_f32 v57, v20, v24
    v_cvt_pk_bf16_f32 v58, v16, v16
    v_cvt_pk_bf16_f32 v59, v16, v16
    v_alignbit_b32 v52, v49, v48, 16
    v_alignbit_b32 v53, v50, v49, 16
    v_alignbit_b32 v54, v51, v50, 16
    v_alignbit_b32 v55, v30, v51, 16
    v_alignbit_b32 v60, v57, v56, 16
    v_alignbit_b32 v61, v58, v57, 16
    v_mov_b32 v62, v58
    v_mov_b32 v63, v58
    v_sub_u32 v14, 127, v14
    v_lshlrev_b32 v14, 4, v14
    s_mul_i32 s77, s6, {ECH}
    s_add_u32 s77, s77, {XB}
    v_add_u32 v14, s77, v14
    H_XPOLL:
    s_waitcnt vmcnt(0)
    v_cmp_ne_u32 vcc, s60, v10
    s_cbranch_vccz H_XOK
    s_sub_u32 s61, s61, 1
    s_cbranch_scc1 BAIL
    s_sleep 2
    buffer_load_dword v10, v9, s[44:47], s81 offen sc1
    s_branch H_XPOLL
    H_XOK:
    v_lshrrev_b32 v16, 2, v1
    v_and_b32 v17, 3, v1
    v_lshlrev_b32 v18, 7, v16
    v_lshl_add_u32 v18, v17, 4, v18
    s_lshl_b32 s65, s76, 13
    s_lshl_b32 s66, s7, 12
    s_add_u32 s65, s65, s66
    s_lshl_b32 s66, s6, 6
    s_add_u32 s65, s65, s66
    s_add_u32 s83, s65, {XT2}
    buffer_load_dwordx4 v[64:67], v18, s[44:47], s83 offen sc1
    buffer_load_dwordx4 v[68:71], v18, s[44:47], s83 offen offset:2048 sc1
    s_mul_i32 s82, s6, {UCH}
    s_add_u32 s82, s82, {UB}
    v_and_b32 v19, 0x1f0, v2
    v_add_u32 v19, s82, v19
    s_lshl_b32 s65, s7, 11
    s_add_u32 s65, s65, s82
    v_add_u32 v17, s65, v2
    v_mov_b32 v72, 0
    v_mov_b32 v73, 0
    v_mov_b32 v74, 0
    v_mov_b32 v75, 0
    s_mul_i32 s65, s7, {OOF}
    s_add_u32 s65, s65, s77
    v_add_u32 v20, s65, v2
    """)
    e("@U 6")
    wait(e, XF_, 4)
    e(f"""
    ds_write_b128 v14, v[56:59]
    ds_write_b128 v14, v[60:63] offset:{OOF}
    ds_write_b128 v14, v[48:51] offset:2048
    ds_write_b128 v14, v[52:55] offset:{2048+OOF}
    ds_write_b128 v19, v[72:75]
    s_mov_b64 exec, 15
    ds_write_b128 v20, v[72:75] offset:4096
    s_mov_b64 exec, -1
    s_waitcnt vmcnt(0)
    ds_write_b128 v17, v[64:67] offset:512
    ds_write_b128 v17, v[68:71] offset:1536
    """)
    signal(e, P2, "v6")
    wdma_voff(e, 7)
    e(f"""
    v_and_b32 v21, 31, v1
    v_lshrrev_b32 v22, 5, v1
    v_and_b32 v10, 15, v1
    v_lshrrev_b32 v11, 4, v1
    v_lshlrev_b32 v8, 3, v11
    v_sub_u32 v8, v8, v10
    v_add_u32 v8, 2031, v8
    v_and_b32 v9, 1, v8
    v_lshrrev_b32 v8, 1, v8
    v_mul_u32_u24 v9, {OOF}, v9
    v_lshl_add_u32 v8, v8, 2, v9
    s_lshl_b32 s65, s7, 8
    s_sub_u32 s65, s77, s65
    s_sub_u32 s65, s65, 512
    v_add_u32 v12, s65, v8
    v_subrev_u32 v13, 1024, v12
    v_subrev_u32 v14, 2048, v12
    v_subrev_u32 v15, 3072, v12
    v_lshlrev_b32 v8, 5, v10
    v_lshl_add_u32 v8, v11, 4, v8
    s_lshl_b32 s65, s7, 8
    s_sub_u32 s65, s82, s65
    s_add_u32 s65, s65, 480
    v_add_u32 v16, s65, v8
    s_lshl_b32 s65, s3, 10
    s_add_u32 s69, s65, {WB}
    s_mul_i32 s68, s3, 3584
    s_mul_i32 s66, s5, 224
    s_add_u32 s68, s68, s66
    """)
    AC, CF = 64, (32, 48)
    e(f"""
    v_mov_b32 v24, -1
    v_mov_b32 v25, -1
    v_mov_b32 v26, -1
    v_mov_b32 v27, -1
    s_lshl_b32 s70, s3, 1
    s_add_u32 s71, s70, 1
    s_min_u32 s71, s71, 6
    s_lshl_b32 s70, s70, 10
    s_lshl_b32 s71, s71, 10
    s_mul_i32 s65, s4, 28672
    s_mul_i32 s66, s5, 7168
    s_add_u32 s65, s65, s66
    s_add_u32 s65, s65, {BT2}
    s_add_u32 s70, s70, s65
    s_add_u32 s71, s71, s65
    s_lshl_b32 s65, s4, 2
    s_add_u32 s65, s65, s5
    s_lshl_b32 s65, s65, 13
    s_lshl_b32 s66, s3, 11
    s_add_u32 s65, s65, s66
    s_add_u32 s65, s65, {OF}
    buffer_store_dwordx4 v[24:27], v2, s[44:47], s70 offen sc1
    buffer_store_dwordx4 v[24:27], v2, s[44:47], s71 offen sc1
    buffer_store_dwordx4 v[24:27], v2, s[44:47], s65 offen sc1
    buffer_store_dwordx4 v[24:27], v2, s[44:47], s65 offen offset:1024 sc1
    s_lshl_b32 s65, s5, 2
    s_add_u32 s65, s65, s3
    s_lshl_b32 s65, s65, 6
    s_add_u32 s65, s65, s4
    s_lshl_b32 s65, s65, 6
    s_add_u32 s85, s65, {FC}
    v_mov_b32 v28, s60
    v_lshlrev_b32 v29, 6, v1
    """)
    for i in range(32): e(f"v_mov_b32 v{AC+i}, 0")
    wait(e, P2, 2, "v6")
    e(f"s_setprio {CPRIO}\n@S 4")
    DMA1 = """
    s_mov_b32 m0, s69
    s_add_u32 s69, s69, 4096
    buffer_load_dwordx4 v7, s[48:51], s68 offen lds
    s_add_u32 s68, s68, 14336
    """
    DMA2 = DMA1 + DMA1
    BFR, AFR = 32, 96
    def rdA(L, a):
        r = AFR + 4 * (a % 4); v = 12 + (a % 8) // 2; o = 0 if a & 1 else 128
        L.op(f"ds_read2_b32 {vr(r,2)}, v{v} offset0:{o} offset1:{o+1}")
        L.op(f"ds_read2_b32 {vr(r+2,2)}, v{v} offset0:{o+2} offset1:{o+3}", ("A", a))
    def rdB(L, d, tag): L.op(f"ds_read_b128 {vr(BFR+4*d,4)}, v16 offset:{512*d}", ("B", tag, d))
    if WOC: wait(e, C5, 4)
    L = Lds(e)
    for d in range(8): rdB(L, d, 0)
    rdA(L, 0); rdA(L, 1); rdA(L, 2)
    e(f"s_mov_b32 s79, {1 if 'noconv' in ABL else 4}\ns_waitcnt lgkmcnt(0)\nH_CONV:")
    class Mute:
        def __call__(self, t): pass
    L = Lds(Mute())
    for it in range(2):
        if it == 1: L.e = e
        em = L.e
        for a in range(8):
            for d in range(7 - a, -1, -1):
                need = []
                if d == 7 - a: need.append(("A", 8 * it + a))
                if a == 0: need.append(("B", it, d))
                need = [t for t in need if t in L.mark]
                if need:
                    t = max(need, key=lambda t: L.mark[t])
                    if L.n - L.mark[t] < 16: L.wait(t)
                em(f"v_mfma_f32_16x16x32_bf16 {vr(AC+4*(a+d),4)}, {vr(AFR+4*(a%4),4)}, {vr(BFR+4*d,4)}, {vr(AC+4*(a+d),4)}")
                if d == 7 - a:
                    if a == 0: em("v_subrev_u32 v16, 64, v16\nv_subrev_u32 v12, 64, v12")
                    elif a % 2 == 0: em(f"v_subrev_u32 v{12 + a//2}, 64, v{12 + a//2}")
                    rdB(L, d, it + 1)
                    rdA(L, 8 * it + a + 3)
                    if WOC and a < 7: em(DMA1)
    e(f"""
    s_sub_u32 s79, s79, 1
    s_cmp_eq_u32 s79, {FCIT}
    s_cbranch_scc1 H_FC
    H_FCB:
    s_cmp_lg_u32 s79, 0
    s_cbranch_scc1 H_CONV
    buffer_load_dword v30, v29, s[44:47], s84 offen sc1
    s_setprio {HPRIO2}
    s_mul_i32 s65, s3, {KGS}
    v_add_u32 v8, s65, v2
    s_xor_b32 s65, s3, 1
    s_mul_i32 s65, s65, {KGS}
    v_add_u32 v9, s65, v2
    s_waitcnt lgkmcnt(0)
    s_nop 7
    s_cmp_eq_u32 s7, 0
    s_cbranch_scc1 H_C0
    """)
    for i in range(4): e(f"ds_write_b128 v8, {vr(AC+4*i,4)} offset:{1024*i}")
    for i in range(16): e(f"v_mov_b32 v{AC+i}, v{AC+16+i}")
    e("s_branch H_C1\nH_C0:")
    for i in range(4): e(f"ds_write_b128 v8, {vr(AC+16+4*i,4)} offset:{1024*i}")
    e("H_C1:")
    signal(e, P3, "v6")
    if not WOC:
        wait(e, C5, 4, sleep=2)
        e(DMA2); e(DMA2)
    wait(e, P3, 2, "v6", sleep=2)
    for i in range(4): e(f"ds_read_b128 {vr(32+4*i,4)}, v9 offset:{1024*i}")
    e(f"""
    v_and_b32 v8, 1, v11
    v_lshlrev_b32 v8, 3, v8
    v_lshrrev_b32 v12, 1, v10
    v_add_u32 v8, v8, v12
    v_mul_u32_u24 v8, 28672, v8
    v_and_b32 v12, 1, v1
    v_lshl_add_u32 v8, v12, 5, v8
    v_lshl_add_u32 v8, v22, 4, v8
    s_lshl_b32 s65, s76, 1
    s_add_u32 s65, s65, s6
    s_lshl_b32 s65, s65, 6
    s_mul_i32 s66, s7, {32*28672}
    s_add_u32 s65, s65, s66
    s_add_u32 s65, s65, {BT2}
    s_add_u32 s66, s65, {16*28672}
    s_mov_b32 s75, 0xfffffffe
    s_waitcnt lgkmcnt(0)
    """)
    for i in range(16): e(f"v_add_f32 v{AC+i}, v{AC+i}, v{32+i}")
    for i in range(8): e(f"v_cvt_pk_bf16_f32 v{32+i}, v{AC+2*i}, v{AC+2*i+1}")
    for i in range(8): e(f"v_min_u32 v{32+i}, s75, v{32+i}")
    e(f"""
    s_cmp_ge_u32 s2, 224
    v_permlane16_swap_b32 v32, v34
    v_permlane16_swap_b32 v33, v35
    v_permlane16_swap_b32 v36, v38
    v_permlane16_swap_b32 v37, v39
    s_cbranch_scc1 H_NOBT
    s_waitcnt vmcnt({0 if WOC else 4})
    H_FCP:
    v_cmp_ne_u32 vcc, s60, v30
    s_cbranch_vccz H_FCOK
    s_sub_u32 s61, s61, 1
    s_cbranch_scc1 BAIL
    buffer_load_dword v30, v29, s[44:47], s84 offen sc1
    s_waitcnt vmcnt(0)
    s_branch H_FCP
    H_FCOK:
    buffer_store_dwordx4 v[32:35], v8, s[44:47], s65 offen sc1
    buffer_store_dwordx4 v[36:39], v8, s[44:47], s66 offen sc1
    H_NOBT:
    v_lshlrev_b32 v28, 6, v21
    s_lshl_b32 s80, s3, 11
    s_add_u32 s80, s80, {FLG}
    buffer_load_dwordx2 v[30:31], v28, s[44:47], s80 offen sc1
    v_and_b32 v29, 15, v1
    v_lshlrev_b32 v29, 12, v29
    s_lshl_b32 s84, s4, 6
    s_add_u32 s84, s84, {FC}
    buffer_load_dword v23, v29, s[44:47], s84 offen sc1
    @S 5
    """)
    if not WOC: e(f"""
    s_mov_b32 s79, {1 if 'nowo' in ABL else 12}
    H_WO:
    s_waitcnt vmcnt(2)
    {DMA2}
    s_sub_u32 s79, s79, 1
    s_cmp_lg_u32 s79, 0
    s_cbranch_scc1 H_WO
    """)
    e(f"""
    v_bfe_u32 v8, v1, 2, 2
    v_lshl_add_u32 v9, v22, 2, v8
    v_lshlrev_b32 v9, 8, v9
    v_bfe_u32 v10, v1, 4, 1
    v_lshlrev_b32 v10, 5, v10
    v_and_b32 v11, 3, v1
    v_lshl_add_u32 v10, v11, 3, v10
    s_lshl_b32 s65, s3, 6
    v_add_u32 v10, s65, v10
    v_lshlrev_b32 v8, 6, v8
    v_xor_b32 v10, v10, v8
    v_add_u32 v9, v9, v10
    """)
    for d in range(4):
        e(f"s_add_u32 s65, s5, {d}\ns_and_b32 s65, s65, 3\ns_mul_i32 s65, s65, 28672\ns_add_u32 s65, s65, {WB}\nv_add_u32 v{24+d}, s65, v9")
    e("s_waitcnt vmcnt(0)")
    signal(e, C6)
    e("""
    H_KN:
    v_cmp_ne_u32 vcc, s60, v30
    v_cmp_ne_u32 s[70:71], s60, v23
    s_or_b64 vcc, vcc, s[70:71]
    s_cbranch_vccz H_KNOK
    s_sub_u32 s61, s61, 1
    s_cbranch_scc1 BAIL
    buffer_load_dwordx2 v[30:31], v28, s[44:47], s80 offen sc1
    buffer_load_dword v23, v29, s[44:47], s84 offen sc1
    s_waitcnt vmcnt(0)
    s_branch H_KN
    H_KNOK:
    """)
    for c in (1, 2, 4, 8): e(f"s_nop 1\nv_max_f32_dpp v31, v31, v31 row_ror:{c} row_mask:0xf bank_mask:0xf")
    e(f"""
    v_mov_b32 v30, v31
    s_lshl_b32 s65, s3, 2
    v_mov_b32 v28, s65
    v_permlane16_swap_b32 v31, v30
    s_nop 1
    v_max_f32 v31, v31, v30
    s_mov_b64 exec, 1
    ds_write_b32 v28, v31 offset:{KN}
    s_mov_b64 exec, -1
    """)
    wait(e, C6, 4, sleep=2)
    for h in range(16):
        for s in range(2):
            for i in range(2):
                e(f"ds_read_b64_tr_b16 {ar(8*h+4*s+2*i,2)}, v{24 + h//4} offset:{7168*(h%4)+4096*s+2048*i}")
    ID, BF, YA, OA = 40, 48, 64, 80
    e(f"""
    v_and_b32 v8, 1, v21
    v_lshlrev_b32 v8, 4, v8
    v_mov_b32 v9, 0x3f80
    v_lshlrev_b32 v9, v8, v9
    v_lshrrev_b32 v10, 1, v21
    v_lshlrev_b32 v11, 2, v22
    v_sub_u32 v10, v10, v11
    """)
    for s in range(2):
        for w in range(4):
            e(f"v_cmp_eq_u32 vcc, {8*s+w}, v10\ns_nop 1\nv_cndmask_b32 v{ID+4*s+w}, 0, v9, vcc")
    e(f"""
    v_lshlrev_b32 v8, 6, v21
    v_lshl_add_u32 v8, v22, 4, v8
    s_mul_i32 s65, s4, 28672
    s_mul_i32 s66, s5, 7168
    s_add_u32 s65, s65, s66
    s_lshl_b32 s66, s3, 11
    s_add_u32 s65, s65, s66
    s_add_u32 s65, s65, {BT2}
    v_mul_u32_u24 v12, 896, v21
    v_lshl_add_u32 v12, v22, 4, v12
    s_mul_i32 s66, s4, {32*896}
    s_mul_i32 s67, s5, 224
    s_add_u32 s66, s66, s67
    s_lshl_b32 s67, s3, 6
    s_add_u32 s66, s66, s67
    v_lshlrev_b32 v13, 2, v21
    v_add_u32 v14, {STG}, v2
    s_cmp_eq_u32 s3, 3
    s_cselect_b32 s70, 0xffff, -1
    s_mov_b32 s71, s70
    s_waitcnt lgkmcnt(0)
    """)
    signal(e, C7)
    srd(e, 48, 38, 2048 * 896)
    e(f"""
    ds_read_b32 v15, v13 offset:{GOF}
    @S 6
    @T 1
    H_YPOLL:
    buffer_load_dwordx4 {vr(BF,4)}, v8, s[44:47], s65 offen sc1
    buffer_load_dwordx4 {vr(BF+4,4)}, v8, s[44:47], s65 offen offset:32 sc1
    s_waitcnt vmcnt(0)
    v_max3_u32 v16, v{BF}, v{BF+1}, v{BF+2}
    v_max3_u32 v16, v16, v{BF+3}, v{BF+4}
    v_max3_u32 v16, v16, v{BF+5}, v{BF+6}
    v_max_u32 v16, v16, v{BF+7}
    v_cmp_eq_u32 vcc, -1, v16
    s_and_b64 vcc, vcc, s[70:71]
    s_cbranch_vccz H_YOK
    s_sub_u32 s61, s61, 1
    s_cbranch_scc1 BAIL
    s_sleep 8
    s_branch H_YPOLL
    H_YOK:
    v_mfma_f32_32x32x16_bf16 {vr(YA,16)}, {vr(BF,4)}, {vr(ID,4)}, 0
    v_mfma_f32_32x32x16_bf16 {vr(YA,16)}, {vr(BF+4,4)}, {vr(ID+4,4)}, {vr(YA,16)}
    s_waitcnt lgkmcnt(0)
    v_sub_f32 v16, 1.0, v15
    s_nop 10
    """)
    for i in range(16): e(f"v_mul_f32 v{YA+i}, v16, v{YA+i}")
    e(f"""
    s_lshl_b32 s80, s3, 11
    v_add_u32 v17, s80, v14
    s_lshl_b32 s81, s4, 2
    s_add_u32 s81, s81, s5
    s_lshl_b32 s79, s81, 13
    s_add_u32 s80, s80, s79
    s_add_u32 s80, s80, {OX}
    s_lshl_b32 s81, s81, 8
    s_lshl_b32 s79, s3, 6
    s_add_u32 s81, s81, s79
    s_add_u32 s81, s81, {FO}
    v_mov_b32 v18, s60
    """)
    e("@T 2\ns_setprio 3\ns_barrier\n@T 3")
    FB = 96
    def block(d):
        for s in range(8): e(f"ds_read_b128 {vr(FB+4*s,4)}, v14 offset:{8192*d+1024*s}")
        for s in range(8):
            e(f"s_waitcnt lgkmcnt({7-s})")
            o = (OA, 32, 48, OA)[d]
            e(f"v_mfma_f32_32x32x16_bf16 {vr(o,16)}, {ar(32*d+4*s,4)}, {vr(FB+4*s,4)}, " + ("0" if s == 0 else vr(o,16)))
    wait(e, G0, 4)
    e("ds_read_b128 v[24:27], v17\nds_read_b128 v[28:31], v17 offset:1024")
    block(0)
    e("""
    buffer_store_dwordx4 v[24:27], v2, s[44:47], s80 offen sc1
    buffer_store_dwordx4 v[28:31], v2, s[44:47], s80 offen offset:1024 sc1
    s_mov_b32 s79, 8
    s_nop 8
    """)
    for i in range(16): e(f"v_fmac_f32 v{YA+i}, v15, v{OA+i}")
    e(f"""
    @T 4
    s_mov_b32 s73, 14
    H_PICK:
    ds_read_b128 v[20:23], v3 offset:{G0}
    s_waitcnt lgkmcnt(0)
    v_readfirstlane_b32 s76, v21
    v_readfirstlane_b32 s77, v22
    v_readfirstlane_b32 s78, v23
    """)
    for d in range(1, 4):
        e(f"""
        s_bitcmp0_b32 s73, {d}
        s_cbranch_scc1 H_PN{d}
        s_cmp_ge_u32 s{75+d}, 4
        s_cbranch_scc1 H_B{d}
        H_PN{d}:
        """)
    e("""
    s_sub_u32 s61, s61, 1
    s_cbranch_scc1 BAIL
    s_sleep 1
    s_sub_u32 s79, s79, 1
    s_cmp_lg_u32 s79, 0
    s_cbranch_scc1 H_PICK
    s_waitcnt vmcnt(0)
    """)
    flag_store(e, "v18", "s81")
    e("s_mov_b32 s79, 0x80000000\ns_branch H_PICK")
    for d in range(1, 4):
        e(f"H_B{d}:")
        block(d)
        e(f"s_bitset0_b32 s73, {d}\ns_cmp_lg_u32 s73, 0\ns_cbranch_scc1 H_PICK")
        if d < 3: e("s_branch H_FIN")
    e("H_FIN:\n@T 5")
    e("s_nop 10")
    for i in range(16): e(f"v_add_f32 v{32+i}, v{32+i}, v{48+i}")
    for i in range(16): e(f"v_add_f32 v{32+i}, v{32+i}, v{OA+i}")
    for i in range(16): e(f"v_fmac_f32 v{YA+i}, v15, v{32+i}")
    for i in range(8): e(f"v_cvt_pk_bf16_f32 v{32+i}, v{YA+2*i}, v{YA+2*i+1}")
    e(f"""
    s_cmp_eq_u32 s3, 3
    s_nop 0
    v_permlane32_swap_b32 v32, v34
    v_permlane32_swap_b32 v33, v35
    v_permlane32_swap_b32 v36, v38
    v_permlane32_swap_b32 v37, v39
    buffer_store_dwordx4 v[32:35], v12, s[48:51], s66 offen
    s_cbranch_scc1 H_END
    buffer_store_dwordx4 v[36:39], v12, s[48:51], s66 offen offset:32
    H_END:
    s_cmp_gt_u32 s79, 8
    s_cbranch_scc1 H_END2
    s_waitcnt vmcnt(1)
    s_mov_b64 exec, 1
    buffer_store_dword v18, v3, s[44:47], s81 offen sc1
    H_END2:
    @E 0
    BAIL:
    s_endpgm
    H_FC:
    s_waitcnt vmcnt({7*(4-FCIT) if WOC else 0})
    s_mov_b64 exec, 1
    buffer_store_dword v28, v3, s[44:47], s85 offen sc1
    s_mov_b64 exec, -1
    s_branch H_FCB
    CODE_END:
    """)

def main(out):
    e = A()
    hdr = f"""; gated mix of MQA attention and an S4 convolution: one launch, workgroups hand data over through d_ws
; @launch grid=(256,1,1) block=(512,1,1) lds={LDS}
.amdgcn_target "amdgcn-amd-amdhsa--gfx950"
.text
"""
    prologue(e); attn_path(e); helper_path(e)
    tail = f""".section .rodata,"a"
.p2align 6
.amdhsa_kernel {NAME}
  .amdhsa_next_free_vgpr 256
  .amdhsa_next_free_sgpr 102
  .amdhsa_accum_offset 128
  .amdhsa_group_segment_fixed_size 0
  .amdhsa_kernarg_size 144
  .amdhsa_user_sgpr_count 2
  .amdhsa_user_sgpr_kernarg_segment_ptr 1
  .amdhsa_system_sgpr_workgroup_id_x 1
.end_amdhsa_kernel
"""
    open(out, "w").write(hdr + e.text() + tail)

if __name__ == "__main__":
    main(sys.argv[1] if len(sys.argv) > 1 else "f2.s")
```

```python
import math, struct, sys, os

def f2u(x): return struct.unpack("<I", struct.pack("<f", x))[0]
LOG2E = 1.4426950408889634
QSCALE = (28 ** -0.5) * LOG2E
NAME = "gated_mix__grouped_kv_mqa__ssm_conv_s4__prompt_kernel"

KVF = 0x000000
FLG = 0x040000
FX  = 0x044000
FXT = 0x048000
FC  = 0x060000
XT2 = 0x080000
OX  = 0x280000
BT2 = 0x480000
OF  = 0x640000
FO  = 0x050000
WSZ = 0x840000
KGS = 4608
SY = 18432
XB = 18944
WB = 48128
WEND = WB + 448 * 256
LDS = 163840
IMG = WB + 336 * 256
ECH, OOF, UB, UCH = 8384, 4224, XB + 16768, 6144
C1, CA, ISS, C4, C5, KVD, P1, P2, P3, C6, C7, XF_, CB, C3, G0, QN, KN, GOF = [SY + x for x in (0, 4, 8, 12, 16, 20, 24, 32, 40, 48, 52, 60, 64, 68, 80, 96, 100, 128)]
CX = WB + 49152
STG = WB + 53248
SAFE_BOUND = 80.0
SHIFT = 64.0

BUDGET = int(os.environ.get("BUDGET", "0x8000"), 0)
ABL = os.environ.get("ABL", "")
NPRE = int(os.environ.get("NPRE", "8"))
PREF = int(os.environ.get("PREF", "1"))
PSH = int(os.environ.get("PSH", "7"))
HPRIO = int(os.environ.get("HPRIO", "2"))
LPRIO = int(os.environ.get("LPRIO", "1"))
ROT = int(os.environ.get("ROT", "1"))
APRIO = int(os.environ.get("APRIO", "3"))
KVCHK = int(os.environ.get("KVCHK", "12"))
CPRIO = int(os.environ.get("CPRIO", "0"))
KG = os.environ.get("KG", "ss")
WOC = int(os.environ.get("WOC", "1"))
XTE = int(os.environ.get("XTE", "1"))
ORD = int(os.environ.get("ORD", "1"))
CYC = int(os.environ.get("CYC", "0"))
LSEL = [6, 5, 4, 3, 2, 0]
FCIT = int(os.environ.get("FCIT", "3"))
PA = int(os.environ.get("PA", "3"))
EG = int(os.environ.get("EG", "1"))
CLR = int(os.environ.get("CLR", "0"))
KC, KNP = SY + 72, SY + 256
HPRIO2 = int(os.environ.get("HPRIO2", "2"))
NOFAST = int(os.environ.get("NOFAST", "0"))
CPF = int(os.environ.get("CPF", "3"))
STAMP = int(os.environ.get("STAMP", "0"))
TSB = 0x1000000
def stamp(e, i):
    if STAMP: e(f"s_memrealtime s[{100-2*i}:{101-2*i}]\ns_waitcnt lgkmcnt(0)")
def stamp_end(e, kidx):
    if not STAMP: return
    e(f"""
    s_waitcnt vmcnt(0)
    s_memrealtime s[86:87]
    s_load_dwordx2 s[84:85], s[0:1], 136
    s_mov_b64 exec, 1
    v_lshrrev_b32 v2, 6, v0
    s_lshl_b32 s83, s2, 4
    v_add_u32 v2, s83, v2
    v_lshlrev_b32 v2, 6, v2
    v_add_u32 v2, {TSB + kidx*0x100000}, v2
    s_waitcnt lgkmcnt(0)
    """)
    for i in range(16): e(f"v_mov_b32 v{4+i}, s{86+i}")
    for i in range(4): e(f"global_store_dwordx4 v2, v[{4+4*i}:{7+4*i}], s[84:85] offset:{16*i}")

class A:
    def __init__(self): self.l = []; self.n = 0; self.h = False
    def __call__(self, s=""):
        for line in s.split("\n"):
            line = line.strip()
            if not line: continue
            if line.startswith("@S "):
                if STAMP == 1 or line == "@S 0" or (STAMP == 4 and self.h): stamp(self, int(line[3:]))
                continue
            if line.startswith("@T "):
                if STAMP == 2: stamp(self, int(line[3:]))
                continue
            if line.startswith("@U "):
                if STAMP == 3: stamp(self, int(line[3:]))
                continue
            if line.startswith("@V "):
                if STAMP == 5: stamp(self, int(line[3:]))
                continue
            if line.startswith("@E "): stamp_end(self, int(line[3:])); continue
            if line.endswith(":") or line.startswith("."): self.l.append(line)
            else: self.l.append("    " + line)
    def lab(self, p="L"):
        self.n += 1; return f"{p}{self.n}"
    def text(self): return "\n".join(self.l) + "\n"

def vr(a, n): return f"v[{a}:{a+n-1}]"
def ar(a, n): return f"a[{a}:{a+n-1}]"
def sr(a, n): return f"s[{a}:{a+n-1}]"
def srd(e, d, base, nbytes):
    e(f"s_mov_b32 s{d}, s{base}\ns_mov_b32 s{d+1}, s{base+1}\ns_mov_b32 s{d+2}, {nbytes}\ns_mov_b32 s{d+3}, 0x00020000")

def signal(e, off, addr="v3", restore="s_mov_b64 exec, -1"):
    e(f"s_mov_b64 exec, 1\nds_add_u32 {addr}, v4 offset:{off}\n{restore}")
def wait(e, off, n, addr="v3", sleep=1):
    l = e.lab("W"); d = e.lab("D")
    e(f"""
    {l}:
    ds_read_b32 v5, {addr} offset:{off}
    s_waitcnt lgkmcnt(0)
    v_readfirstlane_b32 s64, v5
    s_cmp_ge_u32 s64, {n}
    s_cbranch_scc1 {d}
    s_sub_u32 s61, s61, 1
    s_cbranch_scc1 BAIL
    {f's_sleep {sleep}' if sleep else ''}
    s_branch {l}
    {d}:
    """)
def nonce_issue(e, v): e(f"global_load_dword v{v}, v3, s[40:41] sc1")
def nonce_check(e, v):
    l = e.lab("N"); d = e.lab("D")
    e(f"""
    {l}:
    v_readfirstlane_b32 s60, v{v}
    s_cmp_lg_u32 s60, 0
    s_cbranch_scc1 {d}
    s_sub_u32 s61, s61, 1
    s_cbranch_scc1 BAIL
    global_load_dword v{v}, v3, s[40:41] sc1
    s_waitcnt vmcnt(0)
    s_branch {l}
    {d}:
    """)

def gemm_loop(e, nsteps, reads, mfma, depth, nper):
    for s in range(min(depth, nsteps)):
        for r in reads(s): e(r)
    for s in range(nsteps):
        if s + depth < nsteps:
            for r in reads(s + depth): e(r)
            out = depth * nper
        else:
            out = (nsteps - 1 - s) * nper
        e(f"s_waitcnt lgkmcnt({out})")
        e(mfma(s))

def cmul(e, z, x, y, t, conj=False):
    e(f"v_pk_mul_f32 {vr(t,2)}, {vr(x,2)}, {vr(y,2)} op_sel:[0,0] op_sel_hi:[1,0]")
    neg = "neg_hi:[1,0,0]" if conj else "neg_lo:[1,0,0]"
    e(f"v_pk_fma_f32 {vr(z,2)}, {vr(x,2)}, {vr(y,2)}, {vr(t,2)} op_sel:[1,1,0] op_sel_hi:[0,1,1] {neg}")

def wdma_voff(e, v):
    e(f"""
    v_lshrrev_b32 v8, 4, v1
    v_and_b32 v9, 15, v1
    v_lshlrev_b32 v10, 2, v8
    v_xor_b32 v9, v9, v10
    v_mul_u32_u24 v8, 896, v8
    v_lshl_add_u32 v{v}, v9, 4, v8
    """)

def prologue(e):
    e(f"""
    .globl {NAME}
    .p2align 8
    .type {NAME},@function
    {NAME}:
    s_cmp_ge_u32 s2, 256
    s_cbranch_scc1 BAIL
    """)
    if CPF >= 3:
        e(f"""
        s_getpc_b64 s[84:85]
        v_lshlrev_b32 v76, 7, v0
        v_min_u32 v76, CODE_END - {NAME} - 64, v76
        v_mov_b32 v77, s85
        v_add_co_u32 v76, vcc, s84, v76
        v_addc_co_u32 v77, vcc, 0, v77, vcc
        global_load_dword v79, v[76:77], off
        """)
    e(f"""
    @S 0
    s_load_dwordx16 s[8:23], s[0:1], 0
    s_load_dwordx16 s[24:39], s[0:1], 64
    s_load_dwordx4 s[40:43], s[0:1], 128
    v_lshrrev_b32 v2, 6, v0
    v_and_b32 v1, 63, v0
    v_readfirstlane_b32 s3, v2
    v_lshlrev_b32 v2, 4, v1
    v_mov_b32 v3, 0
    v_mov_b32 v4, 1
    s_and_b32 s4, s2, 7
    s_lshl_b32 s4, s4, 3
    s_bfe_u32 s5, s2, 0x30003
    s_add_u32 s4, s4, s5
    s_lshr_b32 s5, s2, 6
    s_mov_b32 s61, {BUDGET}
    s_mov_b32 s62, 0
    s_mov_b32 s63, -1
    s_cmp_lg_u32 s3, 0
    s_cbranch_scc1 NOZERO
    v_mov_b32 v8, 0
    v_mov_b32 v9, 0
    v_mov_b32 v10, 0
    v_mov_b32 v11, 0
    v_lshlrev_b32 v6, 3, v1
    v_add_u32 v7, {WEND}, v2
    ds_write_b64 v6, v[8:9] offset:{SY}
    ds_write_b128 v7, v[8:11]
    NOZERO:
    s_waitcnt lgkmcnt(0)
    """)
    srd(e, 44, 42, WSZ)
    e("s_cmp_ge_u32 s3, 4\ns_cbranch_scc1 HELPER")

class Lds:
    def __init__(self, e): self.e = e; self.n = 0; self.mark = {}
    def op(self, text, tag=None):
        self.e(text); self.n += 1
        if tag is not None: self.mark[tag] = self.n
    def wait(self, tag):
        self.e(f"s_waitcnt lgkmcnt({min(15, self.n - self.mark[tag])})")

def xfrag(s): return vr(80 + 4*s, 4) if s < 12 else ar(64 + 4*(s-12), 4)
def xfrag_reads(e, v):
    if 'noxf' in ABL: return
    for s in range(28): e(f"ds_read_b128 {xfrag(s)}, v{v} offset:{32*s}")
def flag_store(e, regs, soff, x2=False):
    e(f"s_mov_b64 exec, 1\nbuffer_store_dword{'x2' if x2 else ''} {regs}, v3, s[44:47], {soff} offen sc1\ns_mov_b64 exec, -1")

def attn_path(e):
    Q, S, P, KV, CR = 16, (48, 64), (80, 88), (96, 112), 8
    e(f"s_setprio {APRIO}")
    if PREF:
        e(f"""
        s_lshr_b32 s64, s2, 3
        v_lshlrev_b32 v8, 7, v1
        s_mov_b32 s55, 0x00020000
        s_cmp_lg_u32 s3, 0
        s_cbranch_scc1 A_P1
        s_mov_b32 s52, s8
        s_mov_b32 s53, s9
        s_lshl_b32 s65, s4, 2
        s_add_u32 s65, s65, s5
        s_mul_i32 s65, s65, 7168
        s_add_u32 s54, s65, 7168
        s_branch A_PGO
        A_P1:
        s_cmp_eq_u32 s3, 3
        s_cbranch_scc1 A_P3
        s_mov_b32 s52, s10
        s_mov_b32 s53, s11
        s_mul_i32 s65, s64, 12544
        s_add_u32 s54, s65, 12544
        s_cmp_eq_u32 s3, 1
        s_cselect_b32 s66, 0, 6272
        s_cselect_b32 s67, 6272, 0
        s_add_u32 s65, s65, s66
        s_sub_u32 s54, s54, s67
        s_branch A_PGO
        A_P3:
        s_cmp_lt_u32 s64, 16
        s_cselect_b32 s52, s12, s14
        s_cselect_b32 s53, s13, s15
        s_and_b32 s65, s64, 15
        s_mul_i32 s65, s65, 1664
        s_add_u32 s54, s65, 1664
        s_min_u32 s54, s54, {448*56}
        A_PGO:
        buffer_load_dword v79, v8, s[52:55], s65 offen
        """)
    e(f"""
    s_barrier
    v_lshrrev_b32 v16, 5, v1
    v_and_b32 v17, 31, v1
    v_mul_u32_u24 v17, 912, v17
    v_lshl_add_u32 v17, v16, 4, v17
    v_add_u32 v78, {XB}, v17
    v_lshrrev_b32 v16, 4, v1
    v_and_b32 v17, 15, v1
    v_lshlrev_b32 v16, 12, v16
    v_lshl_add_u32 v77, v17, 6, v16
    s_lshl_b32 s79, s3, 10
    s_add_u32 s79, s79, {FX}
    s_cmp_ge_u32 s3, 2
    s_cbranch_scc1 A_DMAW
    """)
    srd(e, 56, 36, 896)
    GW = 12
    e(f"""
    buffer_load_dwordx4 {vr(GW,4)}, v2, s[56:59], 0 offen
    s_and_b32 s74, s5, 1
    s_cmp_lt_u32 s5, 2
    s_cselect_b32 s65, s3, s74
    s_cselect_b32 s66, s74, s3
    s_cselect_b32 s67, 0, 2048
    s_lshl_b32 s65, s65, 10
    s_lshl_b32 s66, s66, 8
    s_lshl_b32 s68, s4, 12
    s_add_u32 s68, s68, s65
    s_add_u32 s68, s68, s66
    s_add_u32 s68, s68, s67
    v_lshrrev_b32 v16, 4, v1
    v_lshl_add_u32 v18, v16, 5, v17
    v_lshlrev_b32 v9, 4, v18
    v_mov_b32 v20, -1
    v_mov_b32 v21, -1
    v_mov_b32 v22, -1
    v_mov_b32 v23, -1
    s_mov_b32 exec_hi, 0
    buffer_store_dwordx4 v[20:23], v9, s[44:47], s68 offen sc1
    """)
    srd(e, 48, 8, 2048 * 896)
    e(f"""
    s_mul_i32 s64, s3, {16*912}
    s_add_u32 m0, s64, {XB}
    s_lshl_b32 s65, s4, 5
    s_lshl_b32 s66, s3, 4
    s_add_u32 s65, s65, s66
    s_mul_i32 s65, s65, 896
    s_mov_b32 exec_hi, 0x00ffffff
    """)
    for i in range(16):
        e("buffer_load_dwordx4 v2, s[48:51], s65 offen lds")
        if i < 15: e("s_add_u32 m0, m0, 912\ns_add_u32 s65, s65, 896")
    e(f"""
    s_mov_b32 exec_hi, -1
    s_cmp_lt_u32 s5, 2
    s_cselect_b32 s52, s12, s14
    s_cselect_b32 s53, s13, s15
    s_mov_b32 s54, {448*56}
    s_mov_b32 s55, 0x00020000
    s_mul_i32 s65, s3, {13*1024}
    s_add_u32 m0, s65, {IMG}
    s_nop 0
    """)
    for i in range(13):
        e("buffer_load_dwordx4 v2, s[52:55], s65 offen lds")
        if i < 12: e("s_add_u32 m0, m0, 1024\ns_add_u32 s65, s65, 1024")
    signal(e, ISS)
    e("@S 1")
    if ABL == "kgen": e("@E 0\ns_endpgm")
    nonce_issue(e, 30)
    XA, WA, XT = 6, 7, 60
    e(f"""
    v_and_b32 v16, 15, v1
    v_lshrrev_b32 v17, 4, v1
    s_lshl_b32 s65, s74, 4
    v_add_u32 v18, s65, v16
    v_mul_u32_u24 v18, 912, v18
    v_lshl_add_u32 v18, v17, 4, v18
    v_add_u32 v{XA}, {XB}, v18
    v_bfe_u32 v18, v1, 2, 2
    v_lshl_add_u32 v18, v17, 3, v18
    v_and_b32 v19, 3, v1
    v_lshlrev_b32 v19, 3, v19
    v_mad_u32_u24 v24, v18, 56, v19
    s_lshl_b32 s65, s3, 5
    s_add_u32 s65, s65, {IMG}
    v_add_u32 v{WA}, s65, v24
    v_mul_u32_u24 v18, 912, v18
    v_add_u32 v10, v18, v19
    s_mul_i32 s65, s5, 224
    s_lshl_b32 s66, s3, 7
    s_add_u32 s65, s65, s66
    s_add_u32 s65, s65, {XB}
    v_add_u32 v10, s65, v10
    v_lshrrev_b32 v18, 1, v16
    v_lshlrev_b32 v18, 13, v18
    v_and_b32 v19, 1, v1
    v_lshl_add_u32 v18, v19, 6, v18
    v_lshl_add_u32 v11, v17, 4, v18
    s_mul_i32 s65, s5, 56
    s_lshl_b32 s66, s3, 5
    s_add_u32 s65, s65, s66
    s_lshl_b32 s65, s65, 13
    s_lshl_b32 s66, s4, 7
    s_add_u32 s65, s65, s66
    s_add_u32 s69, s65, {XT2}
    s_lshl_b32 s65, s5, 6
    s_add_u32 s65, s65, s4
    s_lshl_b32 s65, s65, 6
    s_add_u32 s70, s65, {FX}
    s_lshl_b32 s65, s4, 1
    s_add_u32 s65, s65, s74
    s_lshl_b32 s65, s65, 6
    s_add_u32 s71, s65, {FLG}
    s_mov_b32 s72, {f2u(QSCALE)}
    s_mov_b32 s75, 0xfffffffe
    s_lshl_b32 s65, s5, 1
    s_add_u32 s65, s65, s3
    s_lshl_b32 s65, s65, 6
    s_add_u32 s65, s65, s4
    s_lshl_b32 s65, s65, 6
    s_add_u32 s83, s65, {FXT}
    """)
    for i in range(64): e(f"v_accvgpr_write_b32 a{i}, 0")
    e("s_waitcnt vmcnt(1)")
    signal(e, C1)
    wait(e, C1, 2)
    e("@S 2\n@U 1")
    D = 16
    KB = [80 + 8*i for i in range(6)]
    def kvgemm(kfirst):
        L = Lds(e)
        def rd(s):
            b = KB[s % 6]
            L.op(f"ds_read_b128 {vr(b+4,4)}, v{XA} offset:{64*s}")
            L.op(f"ds_read_b64_tr_b16 {vr(b,2)}, v{WA} offset:{1792*s}")
            L.op(f"ds_read_b64_tr_b16 {vr(b+2,2)}, v{WA} offset:{1792*s+224}", s)
        for s in range(5): rd(s)
        lab = e.lab("F")
        e(f"s_cmp_lg_u32 s3, 0\ns_cbranch_scc1 {lab}\ns_waitcnt vmcnt(0)")
        nonce_check(e, 30)
        flag_store(e, "v30", "s70")
        e(f"{lab}:")
        for s in range(14):
            L.wait(s)
            b = KB[s % 6]
            a_, b_ = (vr(b,4), vr(b+4,4)) if kfirst else (vr(b+4,4), vr(b,4))
            e(f"v_mfma_f32_16x16x32_bf16 {vr(D,4)}, {a_}, {b_}, " + ("0" if s == 0 else vr(D,4)))
            if s + 5 < 14: rd(s + 5)
        signal(e, KVD)
    def kvstore():
        e(f"""
        v_mov_b32 v26, v24
        v_mov_b32 v27, v25
        s_nop 1
        v_permlane32_swap_b32 v24, v26
        v_permlane32_swap_b32 v25, v27
        s_nop 0
        v_min_u32 v24, s75, v24
        s_mov_b32 exec_hi, 0
        buffer_store_dwordx4 v[24:27], v9, s[44:47], s68 offen sc1
        s_mov_b32 exec_hi, -1
        """)
    e("s_cmp_ge_u32 s5, 2\ns_cbranch_scc1 A_V")
    kvgemm(True)
    e(f"""
    s_mov_b32 s66, 0
    s_cmp_eq_u32 s3, 1
    s_cselect_b32 s67, 0xffff0000, 0
    v_mov_b32 v28, 0x3f803f80
    v_mov_b32 v29, 0x00003f80
    s_nop 1
    """)
    for i in range(4): e(f"v_mul_f32 v{16+i}, s72, v{16+i}")
    e(f"""
    v_cvt_pk_bf16_f32 v24, v16, v17
    v_cvt_pk_bf16_f32 v25, v18, v19
    v_cndmask_b32 v24, v24, v28, s[66:67]
    v_cndmask_b32 v25, v25, v29, s[66:67]
    """)
    kvstore()
    e(f"""
    v_mul_f32 v28, v16, v16
    v_fmac_f32 v28, v17, v17
    v_fmac_f32 v28, v18, v18
    v_fmac_f32 v28, v19, v19
    v_cndmask_b32 v28, v28, 0, s[66:67]
    v_mov_b32 v29, v28
    s_nop 1
    v_permlane16_swap_b32 v28, v29
    s_nop 1
    v_add_f32 v28, v28, v29
    v_mov_b32 v29, v28
    s_nop 1
    v_permlane32_swap_b32 v28, v29
    v_lshlrev_b32 v8, 2, v1
    v_add_f32 v31, v28, v29
    s_cmp_eq_u32 s3, 1
    s_cbranch_scc1 A_KVFLAG
    ds_write_b32 v8, v31 offset:{KNP}
    """)
    signal(e, KC)
    e("s_branch A_KVFLAG\nA_V:")
    kvgemm(False)
    e(f"""
    v_and_b32 v28, 15, v1
    s_lshl_b32 s65, s3, 4
    v_add_u32 v28, s65, v28
    v_cmp_eq_u32 vcc, 28, v28
    v_mov_b32 v28, 0x3f803f80
    s_nop 0
    v_cvt_pk_bf16_f32 v24, v16, v17
    v_cvt_pk_bf16_f32 v25, v18, v19
    v_cndmask_b32 v24, v24, v28, vcc
    v_cndmask_b32 v25, v25, v28, vcc
    """)
    kvstore()
    e("A_KVFLAG:\n@U 2")
    for g in range(4):
        e(f"ds_read_b64_tr_b16 {vr(XT+4*g,2)}, v10 offset:{32*g}\nds_read_b64_tr_b16 {vr(XT+2+4*g,2)}, v10 offset:{32*g+4*912}")
    e("s_waitcnt lgkmcnt(4)")
    for g in range(4):
        if g == 2: e("s_waitcnt lgkmcnt(0)")
        if g == 3: e("s_cmp_eq_u32 s3, 1\ns_cbranch_scc1 A_XT3")
        e(f"buffer_store_dwordx4 {vr(XT+4*g,4)}, v11, s[44:47], s69 offen sc1")
        if g < 3: e("s_add_i32 s69, s69, 65536")
    e("A_XT3:")
    xfrag_reads(e, 78)
    signal(e, XF_)
    e("@U 3\ns_cmp_eq_u32 s3, 0\ns_cbranch_scc1 A_NG1")
    e("s_waitcnt vmcnt(4)")
    nonce_check(e, 30)
    wait(e, KVD, 2)
    e(f"v_lshlrev_b32 v9, 11, v1\nv_add_u32 v9, {WB}, v9\ns_mov_b32 exec_hi, 0x00ffffff")
    for j in range(8):
        op = "ds_write_b16_d16_hi" if j & 1 else "ds_write_b16"
        e(f"{op} v9, v{GW + j//2} offset:{256*j + (224 ^ (64*(j&3)))}")
    e("s_mov_b32 exec_hi, -1")
    signal(e, CA)
    e("s_cmp_ge_u32 s5, 2\ns_cbranch_scc1 A_NG1")
    wait(e, KC, 1)
    e(f"ds_read_b32 v29, v8 offset:{KNP}\ns_waitcnt lgkmcnt(0)\nv_add_f32 v31, v31, v29")
    for c in (1, 2, 4, 8): e(f"s_nop 1\nv_max_f32_dpp v31, v31, v31 row_ror:{c} row_mask:0xf bank_mask:0xf")
    flag_store(e, "v[30:31]", "s71", True)
    e("A_NG1:\n@S 3\n@U 4")
    if XTE:
        e("s_waitcnt vmcnt(0)")
        flag_store(e, "v30", "s83")
    e("s_branch A_QSYNC\nA_DMAW:")
    srd(e, 56, 10, 448 * 896)
    wdma_voff(e, 6)
    for i in range(64): e(f"v_accvgpr_write_b32 a{i}, 0")
    MASK = "s_mov_b32 exec_lo, 0xf3ff3fff\ns_mov_b32 exec_hi, 0xfff3ff3f"
    e(f"""
    s_sub_u32 s65, s3, 2
    s_lshl_b32 s66, s65, 10
    s_add_u32 m0, s66, {WB}
    s_mul_i32 s65, s65, 3584
    s_mul_i32 s66, s5, 224
    s_add_u32 s65, s65, s66
    """)
    wait(e, ISS, 2)
    e("@S 1")
    if ABL == "kgen": e("@E 0\ns_endpgm")
    e(MASK)
    def dma_loop(n, lab):
        if 'nodma' in ABL: return
        e(f"""
        s_mov_b32 s66, {n//2}
        {lab}:
        buffer_load_dwordx4 v6, s[56:59], s65 offen lds
        s_add_u32 m0, m0, 2048
        s_add_u32 s65, s65, 7168
        buffer_load_dwordx4 v6, s[56:59], s65 offen lds
        s_add_u32 m0, m0, 2048
        s_add_u32 s65, s65, 7168
        s_sub_u32 s66, s66, 1
        s_cmp_lg_u32 s66, 0
        s_cbranch_scc1 {lab}
        """)
    dma_loop(42, "A_DL2")
    e("s_mov_b64 exec, -1")
    nonce_issue(e, 30)
    e("@S 2\n@U 1")
    if ORD == 0:
        wait(e, C1, 2)
        xfrag_reads(e, 78)
        signal(e, XF_)
    wait(e, KVD, 2)
    e("@U 2")
    e(MASK)
    dma_loop(14, "A_DL3")
    e("s_mov_b64 exec, -1\n@S 3\n@U 3")
    if ORD == 1:
        xfrag_reads(e, 78)
        signal(e, XF_)
    e("s_waitcnt vmcnt(14)\n@U 4")
    signal(e, CA)
    nonce_check(e, 30)
    e("A_QSYNC:")
    e(f"""
    buffer_load_dword v14, v77, s[44:47], s79 offen sc1
    v_lshrrev_b32 v12, 5, v1
    v_bfe_u32 v13, v1, 2, 2
    v_lshl_add_u32 v10, v12, 3, v13
    v_lshlrev_b32 v10, 8, v10
    v_bfe_u32 v11, v1, 4, 1
    v_lshlrev_b32 v11, 5, v11
    v_and_b32 v16, 3, v1
    v_lshl_add_u32 v11, v16, 3, v11
    s_mul_i32 s65, s3, 56
    v_add_u32 v11, s65, v11
    v_lshlrev_b32 v13, 6, v13
    v_xor_b32 v11, v11, v13
    v_add_u32 v10, v10, v11
    v_add_u32 v7, {WB}, v10
    v_add_u32 v8, {WB + 65536}, v10
    s_lshl_b32 s65, s3, 11
    s_add_u32 s65, s65, {WB}
    v_add_u32 v10, s65, v2
    v_lshlrev_b32 v11, 2, v1
    s_lshl_b32 s65, s3, 16
    s_add_u32 s52, s42, s65
    s_addc_u32 s53, s43, 0
    s_mov_b32 s54, 0x10000
    s_mov_b32 s55, 0x00020000
    s_lshr_b32 s80, s2, 3
    s_add_u32 s80, s80, s5
    s_lshl_b32 s80, s80, 13
    s_and_b32 s80, s80, {0xffff if ROT else 0}
    s_mov_b32 s81, 0
    s_mov_b32 s82, 0
    """)
    wait(e, CA, 3)
    e("@S 4\n@V 1")
    def kv_first():
        e(f"""
        s_add_u32 s70, s80, 4096
        buffer_load_dwordx4 {vr(KV[0],4)}, v2, s[52:55], s80 offen sc1
        buffer_load_dwordx4 {vr(KV[0]+4,4)}, v2, s[52:55], s80 offen offset:1024 sc1
        buffer_load_dwordx4 {vr(KV[0]+8,4)}, v2, s[52:55], s80 offen offset:2048 sc1
        buffer_load_dwordx4 {vr(KV[0]+12,4)}, v2, s[52:55], s80 offen offset:3072 sc1
        buffer_load_dwordx4 {vr(KV[1],4)}, v2, s[52:55], s70 offen sc1
        buffer_load_dwordx4 {vr(KV[1]+4,4)}, v2, s[52:55], s70 offen offset:1024 sc1
        """)
    ACC, FB = 48, 64
    WBUF = [16, 20, 24, 32, 36, 40]
    L = Lds(e); DEP = 5
    def rq(s):
        b = WBUF[s % 6]; w = 7 if s < 16 else 8; o = 4096 * (s % 16)
        L.op(f"ds_read_b64_tr_b16 {vr(b,2)}, v{w} offset:{o}")
        L.op(f"ds_read_b64_tr_b16 {vr(b+2,2)}, v{w} offset:{o+1024}", s)
    for s in range(DEP): rq(s)
    L.op(f"s_mov_b64 exec, 1\nds_add_u32 v3, v4 offset:{C3}\ns_mov_b64 exec, -1")
    for s in range(28):
        if s == 11:
            e("s_cmp_lt_u32 s3, 2\ns_cbranch_scc1 A_NOCB\ns_waitcnt vmcnt(1)")
            signal(e, CB)
            e("A_NOCB:")
        if s == 14: L.op(f"ds_read_b64 v[44:45], v3 offset:{CB}", "cb")
        if s + DEP == 21:
            L.wait("cb")
            e(f"""
            @V 2
            v_readfirstlane_b32 s64, v44
            v_readfirstlane_b32 s65, v45
            s_cmp_ge_u32 s64, 2
            s_cbranch_scc1 A_CBOK
            """)
            wait(e, CB, 2)
            e("A_CBOK:\ns_cmp_ge_u32 s65, 4\ns_cbranch_scc1 A_C3OK")
            wait(e, C3, 4)
            e("A_C3OK:\n@V 3")
        if s == KVCHK:
            e(f"""
            s_waitcnt vmcnt(0)
            """)
            if not XTE: e(f"""
            s_cmp_ge_u32 s3, 2
            s_cbranch_scc1 A_NOXF
            s_mov_b64 exec, 1
            buffer_store_dword v30, v3, s[44:47], s83 offen sc1
            s_mov_b64 exec, -1
            A_NOXF:
            """)
            e(f"""
            v_cmp_ne_u32 vcc, s60, v14
            s_cbranch_vccnz A_NOTYET
            """)
            kv_first()
            e(f"""
            s_mov_b32 s81, 1
            s_branch A_YET
            A_NOTYET:
            buffer_load_dword v14, v77, s[44:47], s79 offen sc1
            A_YET:
            """)
        if s + DEP < 28: rq(s + DEP)
        L.wait(s)
        e(f"v_mfma_f32_32x32x16_bf16 {vr(ACC,16)}, {vr(WBUF[s%6],4)}, {xfrag(s)}, " + ("0" if s == 0 else vr(ACC,16)))
    e("@V 4")
    for i in range(8): e(f"v_mov_b32 v{P[1]+i}, 0")
    for i in range(4): e(f"v_mov_b32 v{KV[1]+8+i}, 0")
    for i in range(8): e(f"v_cvt_pk_bf16_f32 v{FB+i}, v{ACC+2*i}, v{ACC+2*i+1}")
    e(f"""
    v_cndmask_b32 v{FB+6}, v{FB+6}, 0, s[62:63]
    v_cndmask_b32 v{FB+7}, v{FB+7}, 0, s[62:63]
    ds_write_b128 v10, {vr(FB,4)}
    ds_write_b128 v10, {vr(FB+4,4)} offset:1024
    """)
    signal(e, C4)
    e(f"""
    s_cmp_lg_u32 s3, 3
    s_cbranch_scc1 A_NOG
    v_mul_f32 v6, {f2u(-LOG2E)}, v{ACC+12}
    v_exp_f32 v6, v6
    s_nop 0
    v_add_f32 v6, 1.0, v6
    v_rcp_f32 v6, v6
    s_mov_b32 exec_lo, 0
    ds_write_b32 v11, v6 offset:{GOF - 128}
    ds_write_b32 v11, v6 offset:{GOF}
    s_mov_b32 exec_lo, -1
    A_NOG:
    v_mov_b32 v6, 0
    """)
    for i in range(4): e(f"v_mov_b32 v{KV[1]+12+i}, 0")
    for i in range(8): e(f"v_dot2c_f32_bf16 v6, v{FB+i}, v{FB+i}")
    e("""
    s_nop 2
    v_mov_b32 v7, v6
    s_nop 1
    v_permlane32_swap_b32 v6, v7
    s_nop 1
    v_add_f32 v6, v6, v7
    """)
    def rowmax(v, t, full):
        for c in (1, 2, 4, 8): e(f"s_nop 1\nv_max_f32_dpp v{v}, v{v}, v{v} row_ror:{c} row_mask:0xf bank_mask:0xf")
        e(f"v_mov_b32 v{t}, v{v}\ns_nop 1\nv_permlane16_swap_b32 v{v}, v{t}\ns_nop 1\nv_max_f32 v{v}, v{v}, v{t}")
        if full: e(f"v_mov_b32 v{t}, v{v}\ns_nop 1\nv_permlane32_swap_b32 v{v}, v{t}\ns_nop 1\nv_max_f32 v{v}, v{v}, v{t}")
    e(f"s_mov_b32 exec_hi, 0\nds_max_u32 v3, v6 offset:{QN}\ns_mov_b32 exec_hi, -1")
    for j in range(4):
        e(f"""
        s_add_u32 s65, s3, {j+1}
        s_and_b32 s65, s65, 3
        s_lshl_b32 s66, s65, 11
        s_add_u32 s66, s66, {WB}
        v_add_u32 v{44+j}, s66, v2
        """)
    e("@V 5")
    wait(e, C4, 4)
    for j in range(4):
        e(f"ds_read_b128 {vr(Q+8*j,4)}, v{44+j}\nds_read_b128 {vr(Q+8*j+4,4)}, v{44+j} offset:1024" if j < 3 else
          f"ds_read_b128 {vr(Q+8*j,4)}, v{44+j}\nds_read_b128 {vr(48,4)}, v{44+j} offset:1024")
    e(f"""
    @S 5
    s_cmp_lg_u32 s81, 0
    s_cbranch_scc1 A_GOT
    A_POLL:
    s_waitcnt vmcnt(0)
    v_cmp_ne_u32 vcc, s60, v14
    s_cbranch_vccz A_GOT0
    s_sub_u32 s61, s61, 1
    s_cbranch_scc1 BAIL
    buffer_load_dword v14, v77, s[44:47], s79 offen sc1
    s_branch A_POLL
    A_GOT0:
    @U 5
    """)
    kv_first()
    e("A_GOT:")
    signal(e, C5)
    e(f"""
    s_mul_i32 s65, s3, 12288
    s_add_u32 s65, s65, {WB}
    v_add_u32 v6, s65, v2
    v_lshlrev_b32 v15, 2, v1
    s_waitcnt lgkmcnt(1)
    """)
    for i in range(4): e(f"v_mov_b32 v{44+i}, v{48+i}")
    for d in range(3):
        e(f"s_sub_u32 s65, s3, {d+1}\ns_and_b32 s65, s65, 3\ns_mul_i32 s65, s65, 12288\ns_add_u32 s65, s65, {WB + 4096*d}\nv_add_u32 v{12+d}, s65, v2")
    e(f"""
    s_waitcnt vmcnt(2)
    A_MAIN:
    s_setprio {LPRIO}
    @S 6
    """)
    def qk(i, tile):
        kb = KV[(tile >> 2) & 1]; s = S[tile & 1]; q = Q + 8 * (tile & 3)
        return f"v_mfma_f32_32x32x16_bf16 {vr(s,16)}, {vr(kb+4*i,4)}, {vr(q+4*i,4)}, " + ("0" if i == 0 else vr(s,16))
    def pv(i, tile):
        vb = KV[(tile >> 2) & 1] + 8; p = P[tile & 1]; o = 16 * (tile & 3)
        return f"v_mfma_f32_32x32x16_bf16 {ar(o,16)}, {vr(vb+4*i,4)}, {vr(p+4*i,4)}, {ar(o,16)}"
    def ld(reg, off): return f"buffer_load_dwordx4 {vr(reg,4)}, v2, s[52:55], s70 offen offset:{off} sc1"
    def pw(d, i): return f"ds_write_b128 v6, {ar(16*d+4*i,4)} offset:{4096*d+1024*i}"
    stubs = []
    def chk(reg): return [f"v_max_u32 v7, v{reg}, v{reg+4}", "v_cmp_eq_u32 vcc, -1, v7"]
    def br(reg, off):
        n = len(stubs); stubs.append((reg, off))
        return [f"s_cbranch_vccnz A_RL{n}", f"A_RB{n}:"]
    for x in chk(KV[0]) + ["s_nop 0"] + br(KV[0], 0): e(x)
    e("@U 6\n@V 6")
    e(qk(0, 0)); e(qk(1, 0))
    e(f"v_mov_b32 v{S[1]+14}, 0\nv_mov_b32 v{S[1]+15}, 0\ns_mov_b32 s73, 7\ns_mov_b32 s72, {f2u(SAFE_BOUND**2)}\ns_nop 5")
    pat = "pCeeee" "qceecee" "Qceeceec" "Peeceec"
    def step(j, last):
        s = S[j & 1]; p = P[j & 1]; sp = S[(j + 1) & 1]; pp = P[(j + 1) & 1]
        ex = [f"v_exp_f32 v{s+i}, v{s+i}" for i in range(16)]
        cv = [f"v_cvt_pk_bf16_f32 v{p+i}, v{s+2*i}, v{s+2*i+1}" for i in range(7)]
        side = {"p": [], "q": [], "Q": [], "P": []}
        pre = {"p": [], "q": []}
        if j == 0: side["P"] = ["s_waitcnt vmcnt(2)"] + chk(KV[0] + 8)
        if j == 1: pre["p"] = br(KV[0] + 8, 2048); side["q"] = [ld(KV[1] + 8, 2048)]; side["Q"] = [ld(KV[1] + 12, 3072)]; side["P"] = ["s_add_u32 s70, s70, 4096", "s_and_b32 s70, s70, 0xffff"]
        if j == 3: side["p"] = ["s_waitcnt vmcnt(2)"] + chk(KV[1]); pre["q"] = br(KV[1], 0)
        if not last:
            if j == 4: side["P"] = ["s_waitcnt vmcnt(2)"] + chk(KV[1] + 8)
            if j == 3: side["Q"] = [ld(KV[0], 0)]; side["P"] = [ld(KV[0] + 4, 1024)]
            if j == 5: pre["p"] = br(KV[1] + 8, 2048); side["q"] = [ld(KV[0] + 8, 2048)]; side["Q"] = [ld(KV[0] + 12, 3072)]; side["P"] = ["s_add_u32 s70, s70, 4096"]
            if j == 7: side["p"] = ["s_waitcnt vmcnt(2)"] + chk(KV[0]); pre["q"] = br(KV[0], 0); side["Q"] = [ld(KV[1], 0), "s_sub_u32 s73, s73, 1"]; side["P"] = [ld(KV[1] + 4, 1024), "s_cmp_lg_u32 s73, 0"]
        else:
            if j == 0: side["q"] = [f"ds_read_b32 v5, v3 offset:{C7}"]
            if j == 2:
                side["p"] = ["s_waitcnt lgkmcnt(0)"]; side["q"] = ["v_readfirstlane_b32 s64, v5"]
                side["Q"] = ["s_cmp_ge_u32 s64, 4", "s_cbranch_scc0 A_C7WAIT", "A_C7OK:", f"ds_read_b64 {vr(KV[0],2)}, v3 offset:{QN}"]
                side["P"] = [f"ds_read_b32 v{KV[0]+2}, v15 offset:{GOF}"]
            if j == 4:
                k = KV[0]
                side["Q"] = ["s_waitcnt lgkmcnt(0)", f"v_mul_f32 v{k}, v{k}, v{k+1}"]
                side["P"] = [f"v_cmp_nle_f32 s[76:77], v{k}, s72", "s_waitcnt vmcnt(0)"] + chk(KV[1] + 8)
            if j == 5:
                pre["p"] = br(KV[1] + 8, 2048)
                side["p"] = ["s_cmp_lg_u64 s[76:77], 0", "s_cbranch_scc1 A_UNSAFE", "A_SAFE:"]
            if j >= 6: side["q"] = [pw(j-6, 0)]; side["Q"] = [pw(j-6, 1)]; side["P"] = [pw(j-6, 2), pw(j-6, 3)]
        for ch in pat:
            if ch == "p":
                for x in pre["p"]: e(x)
                e(pv(0, (j - 1) & 7))
            elif ch == "P": e(pv(1, (j - 1) & 7))
            elif ch == "q":
                for x in pre["q"]: e(x)
                if not (last and j == 7): e(qk(0, j + 1))
            elif ch == "Q":
                if not (last and j == 7): e(qk(1, j + 1))
            elif ch == "C": e(f"v_cvt_pk_bf16_f32 v{pp+7}, v{sp+14}, v{sp+15}")
            elif ch == "e": e(ex.pop(0))
            elif ch == "c": e(cv.pop(0))
            if ch in side:
                for x in side[ch]: e(x)
        assert not ex and not cv
    if STAMP == 4 and CYC: e("s_memtime s[86:87]\ns_waitcnt lgkmcnt(0)")
    e(".p2align 6\nA_LOOP:")
    for j in range(8): step(j, False)
    if STAMP == 4: e(("s_memtime" if CYC else "s_memrealtime") + " s[84:85]\ns_waitcnt lgkmcnt(0)\ns_mov_b32 m0, s73\nv_writelane_b32 v8, s84, m0")
    e("s_cbranch_scc1 A_LOOP")
    if STAMP == 4:
        if CYC: e("v_subrev_u32 v8, s86, v8\nv_add_u32 v8, s100, v8\ns_nop 1")
        for i in range(1, 7): e(f"v_readlane_b32 s{100-2*i}, v8, {LSEL[i-1]}\ns_mov_b32 s{101-2*i}, s101")
    for j in range(8): step(j, True)
    e("s_setprio 3")
    e(pv(0, 7))
    e(f"""
    v_cvt_pk_bf16_f32 v{P[1]+7}, v{S[1]+14}, v{S[1]+15}
    s_lshl_b32 s65, s3, 10
    s_add_u32 s65, s65, {CX}
    """)
    e(pv(1, 7))
    e(f"""
    v_add_u32 v7, s65, v15
    s_lshl_b32 s65, s4, 2
    s_add_u32 s65, s65, s5
    s_lshl_b32 s65, s65, 13
    """)
    for i in range(4): e(pw(2, i))
    e(f"""
    @T 1
    s_lshl_b32 s66, s3, 11
    s_add_u32 s74, s65, s66
    s_add_u32 s74, s74, {OF}
    s_add_u32 s65, s66, {STG}
    v_add_u32 v6, s65, v2
    s_nop 1
    """)
    for d in range(1, 4):
        e(f"""
        s_add_u32 s65, s5, {d}
        s_and_b32 s65, s65, 3
        s_lshl_b32 s65, s65, 13
        s_add_u32 s65, s65, s66
        s_lshl_b32 s{75+d}, s4, 15
        s_add_u32 s{75+d}, s{75+d}, s65
        s_add_u32 s{75+d}, s{75+d}, {OF}
        """)
    GB = 96
    def ask(d):
        e(f"""
        buffer_load_dwordx4 {vr(GB+8*d,4)}, v2, s[44:47], s{75+d} offen sc1
        buffer_load_dwordx4 {vr(GB+4+8*d,4)}, v2, s[44:47], s{75+d} offen offset:1024 sc1
        """)
    for i in range(16): e(f"v_accvgpr_read_b32 v{16+i}, a{48+i}")
    if EG == 2:
        for d in range(1, 4): ask(d)
    e(f"""
    s_waitcnt lgkmcnt(0)
    s_barrier
    @T 2
    """)
    if EG == 1:
        for d in range(1, 4): ask(d)
    R = 48
    for d in range(3):
        for i in range(4): e(f"ds_read_b128 {vr(R+16*d+4*i,4)}, v{12+d} offset:{1024*i}")
    e("s_cmp_lg_u32 s82, 0\ns_cbranch_scc1 A_RESCALE\nA_SUM:")
    def pk(op, d, x, y, m=""): e(f"v_pk_{op}_f32 {vr(d,2)}, {vr(x,2)}, {vr(y,2)}{m}")
    G_ = KV[0] + 2
    for d in range(3):
        e(f"s_waitcnt lgkmcnt({4*(2-d)})")
        for i in [12] + [i for i in range(0, 16, 2) if i != 12]:
            if d < 2 or i == 12: pk("add", 16+i, 16+i, R+16*d+i)
    e("v_mov_b32 v36, v28\nv_mov_b32 v37, v28")
    pk("add", 16, 16, R+32); pk("add", 18, 18, R+34)
    e("v_permlane32_swap_b32 v36, v37")
    pk("add", 20, 20, R+36); pk("add", 22, 22, R+38)
    e("v_rcp_f32 v37, v37")
    pk("add", 24, 24, R+40); pk("add", 26, 26, R+42)
    e(f"v_mul_f32 v37, v{G_}, v37")
    pk("add", 30, 30, R+46)
    e("s_mov_b32 s75, 0xfffffffe")
    for i in range(0, 16, 2): pk("mul", 16+i, 16+i, 36, " op_sel:[0,1] op_sel_hi:[1,1]")
    for i in range(8): e(f"v_cvt_pk_bf16_f32 v{40+i}, v{16+2*i}, v{17+2*i}")
    e(f"v_min_u32 v40, s75, v40\nv_min_u32 v44, s75, v44\nv_cndmask_b32 v46, v46, 0, s[62:63]\nv_cndmask_b32 v47, v47, 0, s[62:63]")
    e(f"""
    {"" if NOFAST else "buffer_store_dwordx4 v[40:43], v2, s[44:47], s74 offen"}
    {"" if NOFAST else "buffer_store_dwordx4 v[44:47], v2, s[44:47], s74 offen offset:1024"}
    ds_write_b128 v6, v[40:43]
    ds_write_b128 v6, v[44:47] offset:1024
    """)
    signal(e, G0)
    e("@T 3\ns_mov_b32 s73, 14\ns_mov_b32 s72, 0")
    def take(d, t):
        b = GB + 8*d
        e(f"""
        v_max_u32 v16, v{b}, v{b+4}
        v_cmp_eq_u32 vcc, -1, v16
        s_cbranch_vccnz A_G{t}{d}
        ds_write_b128 v6, {vr(b,4)} offset:{8192*d}
        ds_write_b128 v6, {vr(b+4,4)} offset:{8192*d+1024}
        s_bitset0_b32 s73, {d}
        """)
        signal(e, G0 + 4*d)
        e(f"A_G{t}{d}:")
    if EG:
        for d in range(1, 4):
            e(f"s_waitcnt vmcnt({2*(3-d) + (0 if NOFAST else 2)})"); take(d, "E")
        e("s_cmp_eq_u32 s73, 0\ns_cbranch_scc1 A_DONE")
    e("A_GATHER:\ns_cmp_eq_u32 s73, 14\ns_cbranch_scc0 A_GSOME")
    for d in range(1, 4): ask(d)
    for d in range(1, 4):
        e(f"s_waitcnt vmcnt({2*(3-d)})"); take(d, "F")
    e("s_branch A_GEND\nA_GSOME:")
    for d in range(1, 4):
        e(f"s_bitcmp0_b32 s73, {d}\ns_cbranch_scc1 A_GL{d}"); ask(d); e(f"A_GL{d}:")
    e("s_waitcnt vmcnt(0)")
    for d in range(1, 4):
        e(f"s_bitcmp0_b32 s73, {d}\ns_cbranch_scc1 A_GC{d}"); take(d, "C")
    e("A_GEND:")
    e(f"""
    s_cmp_eq_u32 s73, 0
    s_cbranch_scc1 A_DONE
    s_sub_u32 s61, s61, 1
    s_cbranch_scc1 BAIL
    s_add_u32 s72, s72, 1
    s_and_b32 s65, s72, 7
    s_cmp_lg_u32 s65, 0
    s_cbranch_scc1 A_GATHER
    v_add_u32 v16, s5, v1
    v_and_b32 v16, 3, v16
    v_lshlrev_b32 v16, 8, v16
    s_lshl_b32 s65, s4, 10
    s_lshl_b32 s66, s3, 6
    s_add_u32 s65, s65, s66
    s_add_u32 s65, s65, {FO}
    buffer_load_dword v17, v16, s[44:47], s65 offen sc1
    s_waitcnt vmcnt(0)
    """)
    for d in range(1, 4):
        e(f"""
        v_readlane_b32 s65, v17, {d}
        s_cmp_eq_u32 s65, s60
        s_cselect_b32 s65, {OF - OX}, 0
        s_cmp_ge_u32 s{75+d}, {OF}
        s_cselect_b32 s65, s65, 0
        s_sub_u32 s{75+d}, s{75+d}, s65
        """)
    e(f"""
    s_branch A_GATHER
    A_DONE:
    s_waitcnt lgkmcnt(0)
    @T 4
    @E 0
    s_endpgm
    A_C7WAIT:
    """)
    wait(e, C7, 4)
    e("s_branch A_C7OK")
    for n, (reg, off) in enumerate(stubs):
        e(f"""
        A_RL{n}:
        s_sub_u32 s61, s61, 1
        s_cbranch_scc1 BAIL
        s_sub_u32 s65, s70, 4096
        s_and_b32 s65, s65, 0xffff
        s_waitcnt vmcnt(0)
        buffer_load_dwordx4 {vr(reg,4)}, v2, s[52:55], s65 offen offset:{off} sc1
        buffer_load_dwordx4 {vr(reg+4,4)}, v2, s[52:55], s65 offen offset:{off+1024} sc1
        s_waitcnt vmcnt(0)
        v_max_u32 v7, v{reg}, v{reg+4}
        v_cmp_eq_u32 vcc, -1, v7
        s_cbranch_vccnz A_RL{n}
        s_branch A_RB{n}
        """)
    e(f"""
    A_RESCALE:
    ds_read2st64_b32 v[32:33], v7 offset0:0 offset1:1
    ds_read2st64_b32 v[34:35], v7 offset0:2 offset1:3
    s_waitcnt lgkmcnt(0)
    v_min_f32 v36, v32, v33
    v_min3_f32 v36, v36, v34, v35
    """)
    for d in range(4): e(f"v_sub_f32 v{32+d}, v36, v{32+d}")
    for d in range(4): e(f"v_exp_f32 v{32+d}, v{32+d}")
    e("s_nop 0")
    for i in range(16): e(f"v_mul_f32 v{16+i}, v35, v{16+i}")
    for d in range(3):
        for i in range(16): e(f"v_mul_f32 v{R+16*d+i}, v{32+d}, v{R+16*d+i}")
    e("s_branch A_SUM")
    e("A_UNSAFE:\ns_cmp_eq_u32 s82, 0\ns_cbranch_scc1 A_FALLBACK")
    for k in range(4):
        e(f"""
        s_add_u32 s65, s3, {k+1}
        s_and_b32 s65, s65, 3
        s_lshl_b32 s65, s65, 10
        s_add_u32 s65, s65, {CX + 256*k}
        v_add_u32 v7, s65, v15
        ds_write_b32 v7, v{CR+k}
        """)
    e("s_branch A_SAFE")
    T = 52
    e(f"""
    A_FALLBACK:
    s_mov_b32 s82, 1
    s_mov_b32 s74, 0
    s_mov_b32 s75, 16
    s_nop 15
    """)
    for j in range(4): e(f"v_mov_b32 v{48+j}, 0xff800000")
    e(f"""
    A_FB_LOOP:
    buffer_load_dwordx4 {vr(T,4)}, v2, s[52:55], s74 offen sc1
    buffer_load_dwordx4 {vr(T+4,4)}, v2, s[52:55], s74 offen offset:1024 sc1
    s_add_u32 s74, s74, 4096
    s_waitcnt vmcnt(0)
    """)
    for j in range(4):
        e(f"v_mfma_f32_32x32x16_bf16 {vr(64,16)}, {vr(T,4)}, {vr(Q+8*j,4)}, 0")
        e(f"v_mfma_f32_32x32x16_bf16 {vr(64,16)}, {vr(T+4,4)}, {vr(Q+8*j+4,4)}, {vr(64,16)}")
        e("s_nop 11")
        for i in range(8): e(f"v_max3_f32 v{48+j}, v{48+j}, v{64+2*i}, v{65+2*i}")
    e(f"""
    s_sub_u32 s75, s75, 1
    s_cmp_lg_u32 s75, 0
    s_cbranch_scc1 A_FB_LOOP
    s_add_u32 s70, s80, 4096
    buffer_load_dwordx4 {vr(KV[0],4)}, v2, s[52:55], s80 offen sc1
    buffer_load_dwordx4 {vr(KV[0]+4,4)}, v2, s[52:55], s80 offen offset:1024 sc1
    buffer_load_dwordx4 {vr(KV[0]+8,4)}, v2, s[52:55], s80 offen offset:2048 sc1
    buffer_load_dwordx4 {vr(KV[0]+12,4)}, v2, s[52:55], s80 offen offset:3072 sc1
    buffer_load_dwordx4 {vr(KV[1],4)}, v2, s[52:55], s70 offen sc1
    buffer_load_dwordx4 {vr(KV[1]+4,4)}, v2, s[52:55], s70 offen offset:1024 sc1
    """)
    for j in range(4): e(f"v_mov_b32 v{52+j}, v{48+j}")
    e("s_nop 0")
    for j in range(4): e(f"v_permlane32_swap_b32 v{48+j}, v{52+j}")
    e("s_nop 0")
    for j in range(4):
        m = 48 + j; t = 56
        e(f"""
        v_max_f32 v{m}, v{m}, v{52+j}
        v_sub_f32 v{m}, 0, v{m}
        v_cvt_pk_bf16_f32 v{t}, v{m}, v{m}
        v_and_b32 v{t+4}, 0xffff0000, v{t}
        v_sub_f32 v{m}, v{m}, v{t+4}
        v_cvt_pk_bf16_f32 v{t+2}, v{m}, v{m}
        v_and_b32 v{t+1}, 0xffff0000, v{t+2}
        v_sub_f32 v{m}, v{m}, v{t+1}
        v_cvt_pk_bf16_f32 v{t+3}, v{m}, 0
        v_and_b32 v{t}, 0xffff, v{t}
        v_or_b32 v{t}, v{t}, v{t+1}
        v_cndmask_b32 v{Q+8*j+6}, v{Q+8*j+6}, v{t}, s[62:63]
        v_cndmask_b32 v{Q+8*j+7}, v{Q+8*j+7}, v{t+3}, s[62:63]
        v_lshlrev_b32 v{t+3}, 16, v{t+3}
        v_add_f32 v{t+1}, v{t+1}, v{t+3}
        v_add_f32 v{CR+j}, v{t+4}, v{t+1}
        """)
    for i in range(64): e(f"v_accvgpr_write_b32 a{i}, 0")
    for i in range(8): e(f"v_mov_b32 v{P[1]+i}, 0\nv_mov_b32 v{KV[1]+8+i}, 0")
    e("s_waitcnt vmcnt(2)\ns_branch A_MAIN")

def helper_path(e):
    e.h = True
    e(f"""
    HELPER:
    s_setprio {HPRIO}
    s_sub_u32 s3, s3, 4
    s_lshr_b32 s6, s3, 1
    s_and_b32 s7, s3, 1
    s_min_u32 s76, s2, 223
    s_or_b32 s65, s2, s3
    s_cmp_lg_u32 s65, 0
    s_cbranch_scc1 H_NON
    s_memrealtime s[66:67]
    s_waitcnt lgkmcnt(0)
    s_or_b32 s66, s66, 1
    v_mov_b32 v5, s66
    global_store_dword v3, v5, s[40:41] sc0 sc1
    H_NON:
    s_lshl_b32 s65, s76, 2
    s_load_dword s66, s[32:33], s65
    s_load_dword s67, s[34:35], s65
    s_lshl_b32 s65, s76, 10
    s_lshl_b32 s68, s3, 8
    s_add_u32 s65, s65, s68
    v_lshl_add_u32 v8, v1, 2, s65
    """)
    for i in range(6): e(f"global_load_dword v{96+i}, v8, s[{20+2*i}:{21+2*i}]")
    if CPF in (1, 2):
        e(f"""
        s_cmp_eq_u32 s3, 3
        s_cbranch_scc0 H_NCPF
        s_getpc_b64 s[84:85]
        H_PC:
        s_sub_u32 s84, s84, H_PC - {NAME}
        s_subb_u32 s85, s85, 0
        """)
        if CPF == 1:
            e(f"""
            s_lshr_b32 s65, s2, 3
            s_mul_i32 s65, s65, {6*128}
            v_lshl_add_u32 v9, v1, 7, s65
            v_min_u32 v9, CODE_END - {NAME} - 4, v9
            s_mov_b64 exec, 63
            global_load_dword v90, v9, s[84:85]
            s_mov_b64 exec, -1
            """)
        else:
            for i in range(3):
                e(f"""
                v_lshlrev_b32 v9, 7, v1
                v_add_u32 v9, {8192*i}, v9
                v_min_u32 v9, CODE_END - {NAME} - 4, v9
                global_load_dword v{90+i}, v9, s[84:85]
                """)
        e("H_NCPF:")
    e("s_barrier")
    srd(e, 48, 16, 448 * 896)
    if 'noH' in ABL:
        signal(e, C7)
        e("@T 2\ns_barrier\n@E 0\ns_endpgm")
    e(f"""
    s_mul_i32 s77, s3, {KGS}
    v_and_b32 v9, 15, v1
    v_lshrrev_b32 v10, 4, v1
    s_mov_b32 s8, 0xaaaaaaaa
    s_mov_b32 s9, s8
    s_mov_b32 s10, 0xcccccccc
    s_mov_b32 s11, s10
    s_mov_b32 s12, 0xf0f0f0f0
    s_mov_b32 s13, s12
    s_mov_b32 s14, 0xff00ff00
    s_mov_b32 s15, s14
    v_mul_u32_u24 v12, 1088, v10
    v_lshl_add_u32 v12, v9, 2, v12
    v_add_u32 v12, s77, v12
    s_lshl_b32 s68, s6, 4
    s_lshl_b32 s78, s6, 2
    v_mov_b32 v6, s78
    @S 1
    s_waitcnt lgkmcnt(0)
    s_lshr_b32 s66, s66, s68
    s_lshl_b32 s66, s66, 16
    s_lshr_b32 s67, s67, s68
    s_lshl_b32 s67, s67, 16
    v_mov_b32 v13, s66
    v_mul_f32 v13, {f2u(LOG2E)}, v13
    v_exp_f32 v13, v13
    s_nop 0
    v_cvt_pk_bf16_f32 v13, v13, v13
    v_and_b32 v13, 0xffff0000, v13
    """)
    P1_, P8, P256, P32 = 14, 16, 18, 20
    Y = [22, 24, 26, 28]
    X0, X2, X4, X6, XC = 30, 32, 34, 36, 38
    T0, T1 = 40, 42
    C = 44
    YF, XF, D = 48, 80, 112
    PR = 2
    e("s_waitcnt vmcnt(0)\n@S 2\n@U 1")
    for i in range(6): e(f"v_and_b32 v{102+i}, 0xffff0000, v{96+i}")
    for i in range(6): e(f"v_accvgpr_write_b32 a{i}, v{102+i}")
    for i in range(6): e(f"v_lshlrev_b32 v{96+i}, 16, v{96+i}")
    AR, AI, BR, BI, CRE, CIM = 96, 97, 98, 99, 100, 101
    def unit(mode, first):
        e(f"""
        v_mul_f32 v{AR}, v13, v{AR}
        v_mul_f32 v{AI}, v13, v{AI}
        v_mul_f32 v{AR}, {f2u(LOG2E)}, v{AR}
        v_mul_f32 v{AI}, 0.15915494, v{AI}
        v_mul_f32 v{BR}, v13, v{BR}
        v_mul_f32 v{BI}, v13, v{BI}
        """)
        R = {}
        free = [(r, r + 1) for r in range(14, 44, 2)]
        def alloc(): return free.pop(0)
        def anchor(name, l):
            t = alloc(); d = alloc(); R[name] = d
            if l == 1:
                e(f"v_fract_f32 v{t[1]}, v{AI}\nv_exp_f32 v{t[0]}, v{AR}")
            else:
                e(f"v_mul_f32 v{t[1]}, {f2u(float(l))}, v{AI}\nv_mul_f32 v{t[0]}, {f2u(float(l))}, v{AR}\nv_fract_f32 v{t[1]}, v{t[1]}\nv_exp_f32 v{t[0]}, v{t[0]}")
            e(f"v_cos_f32 v{d[0]}, v{t[1]}\nv_sin_f32 v{d[1]}, v{t[1]}\ns_nop 0")
            e(f"v_mul_f32 v{d[0]}, v{d[0]}, v{t[0]}\nv_mul_f32 v{d[1]}, v{d[1]}, v{t[0]}")
            free.append(t)
        UB_ = 96
        DP1 = ["quad_perm:[1,0,3,2]", "quad_perm:[2,3,0,1]", "row_ror:12", "row_ror:8"]
        DP0 = ["quad_perm:[1,0,3,2]", "quad_perm:[2,3,0,1]", "row_ror:4", "row_ror:8"]
        class Tile:
            def __init__(t, T, rows):
                t.T = T; valid = set(rows); t.plan = []; moves = [0] * 16
                for b in range(4):
                    g1, g0 = [], []
                    for A_ in range(16):
                        if A_ >> b & 1: continue
                        B_ = A_ | 1 << b
                        va, vb = A_ in valid, B_ in valid
                        if va and vb: g1.append(("c", B_, A_)); g0.append(("c", A_, B_)); moves[B_] += 1
                        elif va: g1.append(("m", B_, A_)); moves[B_] = 0
                        elif vb: g0.append(("m", A_, B_)); moves[A_] = 0
                        if va or vb: valid |= {A_, B_}
                    t.plan.append((g1, g0))
                t.left = moves
                t.loc = {r: (T + r if moves[r] % 2 == 0 else UB_ + r) for r in range(16)}
            def ops(t):
                out = []
                for b, (g1, g0) in enumerate(t.plan):
                    new = {}
                    if any(k == "c" for k, _, _ in g1): out.append(f"s_mov_b64 vcc, s[{8+2*b}:{9+2*b}]")
                    for k, B_, A_ in g1:
                        if k == "c":
                            d = (t.T + B_) + (UB_ + B_) - t.loc[B_]; new[B_] = d
                            out.append(f"v_cndmask_b32_dpp v{d}, v{t.loc[A_]}, v{t.loc[B_]}, vcc {DP1[b]} row_mask:0xf bank_mask:0xf")
                        else: out.append(f"v_mov_b32_dpp v{t.loc[B_]}, v{t.loc[A_]} {DP1[b]} row_mask:0xf bank_mask:0xf")
                    if any(k == "c" for k, _, _ in g0): out.append("s_not_b64 vcc, vcc")
                    for k, A_, B_ in g0:
                        if k == "c": out.append(f"v_cndmask_b32_dpp v{t.loc[A_]}, v{t.loc[B_]}, v{t.loc[A_]}, vcc {DP0[b]} row_mask:0xf bank_mask:0xf")
                        else: out.append(f"v_mov_b32_dpp v{t.loc[A_]}, v{t.loc[B_]} {DP0[b]} row_mask:0xf bank_mask:0xf")
                    t.loc.update(new)
                assert all(t.loc[r] == t.T + r for r in range(16))
                return out
        pend = []; cur = [None]
        def op(x): return f"v{x}" if isinstance(x, int) else x
        def flush():
            while pend:
                src, d = pend.pop(0)
                e(f"v_cvt_pk_bf16_f32 v{d}, {op(src[0])}, {op(src[1])}")
        def rel(p): free.append(p)
        def mul(z, x, y, conj=False):
            X, Y_ = R[x], R[y]
            t = alloc()
            if mode == "p":
                if z in R and all(p[0] != R[z] for p in pend): d = R[z]
                else: d = alloc()
                cmul(e, d[0], X[0], Y_[0], t[0], conj)
                rel(t)
            else:
                d = t
                e(f"v_mul_f32 v{d[0]}, v{X[0]}, v{Y_[0]}\nv_mul_f32 v{d[1]}, v{X[1]}, v{Y_[0]}")
                n0, n1 = ("", "-") if conj else ("-", "")
                e(f"v_fma_f32 v{d[0]}, {n0}v{X[1]}, v{Y_[1]}, v{d[0]}")
                e(f"v_fma_f32 v{d[1]}, {n1}v{X[0]}, v{Y_[1]}, v{d[1]}" if conj else f"v_fmac_f32 v{d[1]}, v{X[0]}, v{Y_[1]}")
            flush()
            if z in R and R[z] != d: rel(R[z])
            R[z] = d
        def put(name, row): pend.append((R[name], cur[0].loc[row]))
        def turn(nxt):
            flush()
            e("s_nop 0")
            hist = [None, None]
            for x in cur[0].ops():
                if "_dpp" in x:
                    w = x.replace(",", " ").split()
                    if w[2] == hist[1]: e("s_nop 1"); hist = [None, None]
                    elif w[2] == hist[0]: e("s_nop 0"); hist = [None, None]
                    hist = [hist[1], w[1]]
                else: hist = [hist[1], None]
                e(x)
            cur[0] = nxt
        def mm(rt, xf):
            e("s_nop 1")
            for ks in range(4):
                for ct in range(2):
                    d = D + 4 * (2 * rt + ct)
                    e(f"v_mfma_f32_16x16x32_bf16 {vr(d,4)}, {vr(xf+4*ks,4)}, {vr(YF+16*ct+4*ks,4)}, " + ("0" if first and ks == 0 else vr(d,4)))
        anchor("P8", 8)
        anchor("P1", 1)
        anchor("P256", 256)
        R["C"] = (CRE, CIM); R["B"] = (BR, BI); R["one"] = ("1.0", "0")
        mul("X0", "C", "B")
        e(f"v_xor_b32 v{R['X0'][1]}, 0x80000000, v{R['X0'][1]}")
        cur[0] = Tile(YF, range(16))
        put("one", 0); put("P8", 1)
        mul("Y2", "P8", "P8"); put("Y2", 2)
        mul("Y3", "Y2", "P8"); put("Y3", 3)
        mul("P32", "Y2", "Y2"); put("P32", 4)
        mul("Y1", "P8", "P32"); put("Y1", 5)
        rel(R.pop("P8"))
        mul("Y2", "Y2", "P32"); put("Y2", 6)
        mul("Y3", "Y3", "P32"); put("Y3", 7)
        mul("Y0", "P32", "P32"); put("Y0", 8)
        for c in range(9, 32):
            mul(f"Y{c%4}", f"Y{c%4}", "P32")
            if c == 16: turn(Tile(YF + 16, range(16)))
            put(f"Y{c%4}", c % 16)
        mul("XC", "X0", "P1", True)
        turn(Tile(XF, range(16)))
        e("@U 2" if first else "@U 4")
        for n in ("Y0", "Y1", "Y2", "Y3", "P32"): rel(R.pop(n))
        put("X0", 4); put("XC", 5)
        mul("Z0", "X0", "P256", True); put("Z0", 0)
        mul("X2", "XC", "P1", True); put("X2", 6)
        mul("Z0", "Z0", "P256", True); put("Z0", 1)
        mul("XC", "X2", "P1", True); put("XC", 7)
        mul("Z0", "Z0", "P256", True); put("Z0", 2)
        mul("X4", "XC", "P1", True); put("X4", 8)
        mul("Z0", "Z0", "P256", True); put("Z0", 3)
        mul("XC", "X4", "P1", True); put("XC", 9)
        mul("X2", "X2", "P256", True); put("X2", 12)
        mul("X6", "XC", "P1", True); put("X6", 10)
        mul("X4", "X4", "P256", True); put("X4", 13)
        mul("XC", "X6", "P1", True); put("XC", 11)
        mul("X6", "X6", "P256", True); put("X6", 14)
        mul("X4", "X4", "P256", True); put("X4", 15)
        mul("Z0", "Z0", "P256", True)
        turn(None)
        mm(0, XF)
        mul("Z1", "Z0", "P256", True)
        mul("X4", "X4", "P256", True)
        mul("Z2", "Z1", "P256", True)
        mul("Z3", "Z2", "P256", True)
        cur[0] = Tile(XF, [0, 1, 2, 3, 12])
        put("Z0", 0); put("Z1", 1); put("X4", 12); put("Z2", 2); put("Z3", 3)
        turn(None)
        mm(1, XF)
        e("@U 3" if first else "@U 5")
    unit(KG[0], True)
    if 'half' not in ABL:
        for i in range(6): e(f"v_accvgpr_read_b32 v{96+i}, a{i}")
        unit(KG[1], False)
    nonce_issue(e, 8)
    e(f"""
    s_lshr_b32 s65, s2, 3
    s_mul_i32 s65, s65, 12544
    s_lshl_b32 s68, s3, 12
    s_add_u32 s65, s65, s68
    v_lshlrev_b32 v9, 6, v1
    buffer_load_dword v7, v9, s[48:51], s65 offen
    """)
    for rt in range(2):
        for ct in range(2):
            for r in range(4):
                e(f"ds_write_b32 v12, v{D+4*(2*rt+ct)+r} offset:{(4*rt+r)*128+ct*64}")
    signal(e, P1, "v6")
    e("@S 3")
    if ABL == "kgen" or 'dmaonly' in ABL: e("@E 0\ns_endpgm")
    e(f"""
    s_mul_i32 s80, s76, 1171
    s_lshr_b32 s80, s80, 16
    s_mul_i32 s65, s80, 56
    s_sub_u32 s65, s76, s65
    s_lshr_b32 s66, s65, 4
    s_lshr_b32 s65, s65, 5
    s_lshl_b32 s81, s80, 2
    s_add_u32 s66, s66, s81
    s_lshl_b32 s66, s66, 12
    s_add_u32 s84, s66, {FC}
    s_lshl_b32 s66, s80, 1
    s_add_u32 s65, s65, s66
    s_lshl_b32 s65, s65, 12
    s_add_u32 s81, s65, {FXT}
    v_lshlrev_b32 v9, 6, v1
    s_mul_i32 s77, s6, {2*KGS}
    s_waitcnt vmcnt(0)
    """)
    nonce_check(e, 8)
    e("buffer_load_dword v10, v9, s[44:47], s81 offen sc1")
    wait(e, P1, 2, "v6")
    e(f"""
    s_lshl_b32 s65, s7, 6
    v_add_u32 v14, s65, v1
    v_lshlrev_b32 v15, 2, v14
    v_add_u32 v15, s77, v15
    ds_read2st64_b32 v[16:17], v15 offset0:{(512-128)//256} offset1:{(512-128)//256+18}
    """)
    e.l.pop()
    e(f"""
    v_add_u32 v18, 384, v15
    v_add_u32 v19, 388, v15
    ds_read2st64_b32 v[16:17], v18 offset0:0 offset1:18
    ds_read2st64_b32 v[20:21], v19 offset0:0 offset1:18
    v_and_b32 v22, 1, v1
    v_cmp_eq_u32 vcc, 1, v22
    s_cmp_eq_u32 s7, 0
    s_cbranch_scc1 H_T0
    v_subrev_u32 v18, 128, v15
    v_subrev_u32 v19, 124, v15
    v_add_u32 v22, {3648-256}, v15
    ds_read2st64_b32 v[24:25], v18 offset0:0 offset1:18
    ds_read2st64_b32 v[26:27], v19 offset0:0 offset1:18
    ds_read2st64_b32 v[28:29], v22 offset0:0 offset1:18
    s_waitcnt lgkmcnt(0)
    v_add_f32 v24, v24, v25
    v_add_f32 v26, v26, v27
    v_add_f32 v28, v28, v29
    v_cvt_pk_bf16_f32 v48, v26, v26
    v_cvt_pk_bf16_f32 v49, v28, v28
    v_cvt_pk_bf16_f32 v50, v28, v24
    v_cvt_pk_bf16_f32 v51, v24, v24
    v_mov_b32 v30, v51
    s_branch H_T2
    H_T0:
    v_and_b32 v18, 31, v1
    v_lshlrev_b32 v18, 2, v18
    v_add_u32 v18, s77, v18
    v_lshrrev_b32 v19, 5, v1
    """)
    A0 = [1088, 1216, 1344, 1472, 2176, 2304, 2432, 2560]
    A1 = [0, 0, 3264, 3392, 3392, 3392, 3520, 4]
    for j in range(8):
        e(f"""
        s_movk_i32 s65, {A1[j]-A0[j]}
        v_add_u32 v22, {A0[j]}, v18
        v_mad_i32_i24 v22, v19, s65, v22
        ds_read2st64_b32 {vr(32+2*j,2)}, v22 offset0:0 offset1:18
        """)
    e(f"""
    v_cmp_eq_u32 s[68:69], 0, v1
    v_mov_b32 v23, s67
    s_nop 0
    v_cndmask_b32 v23, 0, v23, s[68:69]
    s_waitcnt lgkmcnt(0)
    """)
    for j in range(8): e(f"v_add_f32 v{32+2*j}, v{32+2*j}, v{33+2*j}")
    e("v_add_f32 v32, v32, v23\nv_mov_b32 v30, 0")
    for i in range(4): e(f"v_cvt_pk_bf16_f32 v{48+i}, v{32+2*(7-2*i)}, v{32+2*(6-2*i)}")
    e(f"""
    s_nop 1
    v_mov_b32_dpp v30, v48 wave_shr:1 row_mask:0xf bank_mask:0xf
    H_T2:
    v_add_f32 v16, v16, v17
    v_add_f32 v20, v20, v21
    v_cndmask_b32 v24, v16, v20, vcc
    v_cvt_pk_bf16_f32 v56, v20, v20
    v_cvt_pk_bf16_f32 v57, v20, v24
    v_cvt_pk_bf16_f32 v58, v16, v16
    v_cvt_pk_bf16_f32 v59, v16, v16
    v_alignbit_b32 v52, v49, v48, 16
    v_alignbit_b32 v53, v50, v49, 16
    v_alignbit_b32 v54, v51, v50, 16
    v_alignbit_b32 v55, v30, v51, 16
    v_alignbit_b32 v60, v57, v56, 16
    v_alignbit_b32 v61, v58, v57, 16
    v_mov_b32 v62, v58
    v_mov_b32 v63, v58
    v_sub_u32 v14, 127, v14
    v_lshlrev_b32 v14, 4, v14
    s_mul_i32 s77, s6, {ECH}
    s_add_u32 s77, s77, {XB}
    v_add_u32 v14, s77, v14
    H_XPOLL:
    s_waitcnt vmcnt(0)
    v_cmp_ne_u32 vcc, s60, v10
    s_cbranch_vccz H_XOK
    s_sub_u32 s61, s61, 1
    s_cbranch_scc1 BAIL
    s_sleep 2
    buffer_load_dword v10, v9, s[44:47], s81 offen sc1
    s_branch H_XPOLL
    H_XOK:
    v_lshrrev_b32 v16, 2, v1
    v_and_b32 v17, 3, v1
    v_lshlrev_b32 v18, 7, v16
    v_lshl_add_u32 v18, v17, 4, v18
    s_lshl_b32 s65, s76, 13
    s_lshl_b32 s66, s7, 12
    s_add_u32 s65, s65, s66
    s_lshl_b32 s66, s6, 6
    s_add_u32 s65, s65, s66
    s_add_u32 s83, s65, {XT2}
    buffer_load_dwordx4 v[64:67], v18, s[44:47], s83 offen sc1
    buffer_load_dwordx4 v[68:71], v18, s[44:47], s83 offen offset:2048 sc1
    s_mul_i32 s82, s6, {UCH}
    s_add_u32 s82, s82, {UB}
    v_and_b32 v19, 0x1f0, v2
    v_add_u32 v19, s82, v19
    s_lshl_b32 s65, s7, 11
    s_add_u32 s65, s65, s82
    v_add_u32 v17, s65, v2
    v_mov_b32 v72, 0
    v_mov_b32 v73, 0
    v_mov_b32 v74, 0
    v_mov_b32 v75, 0
    s_mul_i32 s65, s7, {OOF}
    s_add_u32 s65, s65, s77
    v_add_u32 v20, s65, v2
    """)
    e("@U 6")
    wait(e, XF_, 4)
    e(f"""
    ds_write_b128 v14, v[56:59]
    ds_write_b128 v14, v[60:63] offset:{OOF}
    ds_write_b128 v14, v[48:51] offset:2048
    ds_write_b128 v14, v[52:55] offset:{2048+OOF}
    ds_write_b128 v19, v[72:75]
    s_mov_b64 exec, 15
    ds_write_b128 v20, v[72:75] offset:4096
    s_mov_b64 exec, -1
    s_waitcnt vmcnt(0)
    ds_write_b128 v17, v[64:67] offset:512
    ds_write_b128 v17, v[68:71] offset:1536
    """)
    signal(e, P2, "v6")
    wdma_voff(e, 7)
    e(f"""
    v_and_b32 v21, 31, v1
    v_lshrrev_b32 v22, 5, v1
    v_and_b32 v10, 15, v1
    v_lshrrev_b32 v11, 4, v1
    v_lshlrev_b32 v8, 3, v11
    v_sub_u32 v8, v8, v10
    v_add_u32 v8, 2031, v8
    v_and_b32 v9, 1, v8
    v_lshrrev_b32 v8, 1, v8
    v_mul_u32_u24 v9, {OOF}, v9
    v_lshl_add_u32 v8, v8, 2, v9
    s_lshl_b32 s65, s7, 8
    s_sub_u32 s65, s77, s65
    s_sub_u32 s65, s65, 704
    v_add_u32 v12, s65, v8
    v_subrev_u32 v13, 1024, v12
    v_subrev_u32 v14, 2048, v12
    v_subrev_u32 v15, 3072, v12
    v_lshlrev_b32 v8, 5, v10
    v_lshl_add_u32 v8, v11, 4, v8
    s_lshl_b32 s65, s7, 8
    s_sub_u32 s65, s82, s65
    s_add_u32 s65, s65, 288
    v_add_u32 v16, s65, v8
    s_lshl_b32 s65, s3, 10
    s_add_u32 s69, s65, {WB}
    s_mul_i32 s68, s3, 3584
    s_mul_i32 s66, s5, 224
    s_add_u32 s68, s68, s66
    """)
    AC, CF = 64, (32, 48)
    e(f"""
    v_mov_b32 v24, -1
    v_mov_b32 v25, -1
    v_mov_b32 v26, -1
    v_mov_b32 v27, -1
    s_lshl_b32 s70, s3, 1
    s_add_u32 s71, s70, 1
    s_min_u32 s71, s71, 6
    s_lshl_b32 s70, s70, 10
    s_lshl_b32 s71, s71, 10
    s_mul_i32 s65, s4, 28672
    s_mul_i32 s66, s5, 7168
    s_add_u32 s65, s65, s66
    s_add_u32 s65, s65, {BT2}
    s_add_u32 s70, s70, s65
    s_add_u32 s71, s71, s65
    s_lshl_b32 s65, s4, 2
    s_add_u32 s65, s65, s5
    s_lshl_b32 s65, s65, 13
    s_lshl_b32 s66, s3, 11
    s_add_u32 s65, s65, s66
    s_add_u32 s65, s65, {OF}
    buffer_store_dwordx4 v[24:27], v2, s[44:47], s70 offen sc1
    buffer_store_dwordx4 v[24:27], v2, s[44:47], s71 offen sc1
    buffer_store_dwordx4 v[24:27], v2, s[44:47], s65 offen sc1
    buffer_store_dwordx4 v[24:27], v2, s[44:47], s65 offen offset:1024 sc1
    s_lshl_b32 s65, s5, 2
    s_add_u32 s65, s65, s3
    s_lshl_b32 s65, s65, 6
    s_add_u32 s65, s65, s4
    s_lshl_b32 s65, s65, 6
    s_add_u32 s85, s65, {FC}
    v_mov_b32 v28, s60
    v_lshlrev_b32 v29, 6, v1
    """)
    wait(e, P2, 2, "v6")
    e(f"s_setprio {CPRIO}\n@S 4")
    DMA1 = """
    s_mov_b32 m0, s69
    s_add_u32 s69, s69, 4096
    buffer_load_dwordx4 v7, s[48:51], s68 offen lds
    s_add_u32 s68, s68, 14336
    """
    DMA2 = DMA1 + DMA1
    BFR, AFR = 32, 96
    def rdA(L, n):
        c, a = divmod(n, 8)
        if c > 3: return
        r = AFR + 4 * (a % 4); v = 12 + a // 2; o = (0 if a & 1 else 128) + 48 - 16 * c
        L.op(f"ds_read2_b32 {vr(r,2)}, v{v} offset0:{o} offset1:{o+1}")
        L.op(f"ds_read2_b32 {vr(r+2,2)}, v{v} offset0:{o+2} offset1:{o+3}", ("A", n))
    def rdB(L, d, c):
        if c <= 3: L.op(f"ds_read_b128 {vr(BFR+4*d,4)}, v16 offset:{512*d + 192 - 64*c}", ("B", c, d))
    if WOC: wait(e, C5, 4)
    L = Lds(e)
    rdA(L, 0)
    for d in range(7, -1, -1): rdB(L, d, 0)
    rdA(L, 1); rdA(L, 2)
    for it in range(4):
        for a in range(8):
            for d in range(7 - a, -1, -1):
                need = []
                if d == 7 - a: need.append(("A", 8 * it + a))
                if a == 0: need.append(("B", it, d))
                if need:
                    t = max(need, key=lambda t: L.mark[t])
                    if L.n - L.mark[t] < 16: L.wait(t)
                e(f"v_mfma_f32_16x16x32_bf16 {vr(AC+4*(a+d),4)}, {vr(AFR+4*(a%4),4)}, {vr(BFR+4*d,4)}, " + ("0" if it == 0 and a == 0 else vr(AC+4*(a+d),4)))
                if d == 7 - a:
                    rdB(L, d, it + 1)
                    rdA(L, 8 * it + a + 3)
                    if WOC and a < 7: e(DMA1)
        if it == 3 - FCIT:
            e(f"""
            s_waitcnt vmcnt({7*(4-FCIT) if WOC else 0})
            s_mov_b64 exec, 1
            buffer_store_dword v28, v3, s[44:47], s85 offen sc1
            s_mov_b64 exec, -1
            """)
    e(f"""
    buffer_load_dword v30, v29, s[44:47], s84 offen sc1
    s_setprio {HPRIO2}
    s_mul_i32 s65, s3, {KGS}
    v_add_u32 v8, s65, v2
    s_xor_b32 s65, s3, 1
    s_mul_i32 s65, s65, {KGS}
    v_add_u32 v9, s65, v2
    s_waitcnt lgkmcnt(0)
    s_nop 7
    s_cmp_eq_u32 s7, 0
    s_cbranch_scc1 H_C0
    """)
    for i in range(4): e(f"ds_write_b128 v8, {vr(AC+4*i,4)} offset:{1024*i}")
    e("s_branch H_C1\nH_C0:")
    for i in range(4): e(f"ds_write_b128 v8, {vr(AC+16+4*i,4)} offset:{1024*i}")
    e("H_C1:")
    signal(e, P3, "v6")
    if not WOC:
        wait(e, C5, 4, sleep=2)
        e(DMA2); e(DMA2)
    wait(e, P3, 2, "v6", sleep=2)
    for i in range(4): e(f"ds_read_b128 {vr(32+4*i,4)}, v9 offset:{1024*i}")
    e(f"""
    v_and_b32 v8, 1, v11
    v_lshlrev_b32 v8, 3, v8
    v_lshrrev_b32 v12, 1, v10
    v_add_u32 v8, v8, v12
    v_mul_u32_u24 v8, 28672, v8
    v_and_b32 v12, 1, v1
    v_lshl_add_u32 v8, v12, 5, v8
    v_lshl_add_u32 v8, v22, 4, v8
    s_lshl_b32 s65, s76, 1
    s_add_u32 s65, s65, s6
    s_lshl_b32 s65, s65, 6
    s_mul_i32 s66, s7, {32*28672}
    s_add_u32 s65, s65, s66
    s_add_u32 s65, s65, {BT2}
    s_add_u32 s66, s65, {16*28672}
    s_mov_b32 s75, 0xfffffffe
    s_cmp_eq_u32 s7, 0
    s_waitcnt lgkmcnt(0)
    s_cbranch_scc1 H_A0
    """)
    for i in range(16): e(f"v_add_f32 v{48+i}, v{AC+16+i}, v{32+i}")
    e("s_branch H_A1\nH_A0:")
    for i in range(16): e(f"v_add_f32 v{48+i}, v{AC+i}, v{32+i}")
    e("H_A1:")
    for i in range(8): e(f"v_cvt_pk_bf16_f32 v{32+i}, v{48+2*i}, v{49+2*i}")
    e(f"""
    s_cmp_ge_u32 s2, 224
    s_nop 0
    v_permlane16_swap_b32 v32, v34
    v_permlane16_swap_b32 v33, v35
    v_permlane16_swap_b32 v36, v38
    v_permlane16_swap_b32 v37, v39
    v_min_u32 v32, s75, v32
    v_min_u32 v36, s75, v36
    s_cbranch_scc1 H_NOBT
    s_waitcnt vmcnt({0 if WOC else 4})
    H_FCP:
    v_cmp_ne_u32 vcc, s60, v30
    s_cbranch_vccz H_FCOK
    s_sub_u32 s61, s61, 1
    s_cbranch_scc1 BAIL
    buffer_load_dword v30, v29, s[44:47], s84 offen sc1
    s_waitcnt vmcnt(0)
    s_branch H_FCP
    H_FCOK:
    buffer_store_dwordx4 v[32:35], v8, s[44:47], s65 offen sc1
    buffer_store_dwordx4 v[36:39], v8, s[44:47], s66 offen sc1
    H_NOBT:
    v_lshlrev_b32 v28, 6, v21
    s_lshl_b32 s80, s3, 11
    s_add_u32 s80, s80, {FLG}
    buffer_load_dwordx2 v[30:31], v28, s[44:47], s80 offen sc1
    v_and_b32 v29, 15, v1
    v_lshlrev_b32 v29, 12, v29
    s_lshl_b32 s84, s4, 6
    s_add_u32 s84, s84, {FC}
    buffer_load_dword v23, v29, s[44:47], s84 offen sc1
    @S 5
    """)
    if not WOC: e(f"""
    s_mov_b32 s79, {1 if 'nowo' in ABL else 12}
    H_WO:
    s_waitcnt vmcnt(2)
    {DMA2}
    s_sub_u32 s79, s79, 1
    s_cmp_lg_u32 s79, 0
    s_cbranch_scc1 H_WO
    """)
    e(f"""
    v_bfe_u32 v8, v1, 2, 2
    v_lshl_add_u32 v9, v22, 2, v8
    v_lshlrev_b32 v9, 8, v9
    v_bfe_u32 v10, v1, 4, 1
    v_lshlrev_b32 v10, 5, v10
    v_and_b32 v11, 3, v1
    v_lshl_add_u32 v10, v11, 3, v10
    s_lshl_b32 s65, s3, 6
    v_add_u32 v10, s65, v10
    v_lshlrev_b32 v8, 6, v8
    v_xor_b32 v10, v10, v8
    v_add_u32 v9, v9, v10
    """)
    for d in range(4):
        e(f"s_add_u32 s65, s5, {d}\ns_and_b32 s65, s65, 3\ns_mul_i32 s65, s65, 28672\ns_add_u32 s65, s65, {WB}\nv_add_u32 v{24+d}, s65, v9")
    e(f"v_lshlrev_b32 v13, 2, v21\nds_read_b32 v15, v13 offset:{GOF}\ns_waitcnt vmcnt(0)")
    signal(e, C6)
    e("""
    H_KN:
    v_cmp_ne_u32 vcc, s60, v30
    v_cmp_ne_u32 s[70:71], s60, v23
    s_or_b64 vcc, vcc, s[70:71]
    s_cbranch_vccz H_KNOK
    s_sub_u32 s61, s61, 1
    s_cbranch_scc1 BAIL
    buffer_load_dwordx2 v[30:31], v28, s[44:47], s80 offen sc1
    buffer_load_dword v23, v29, s[44:47], s84 offen sc1
    s_waitcnt vmcnt(0)
    s_branch H_KN
    H_KNOK:
    """)
    e(f"s_mov_b32 exec_hi, 0\nds_max_u32 v3, v31 offset:{KN}\ns_mov_b32 exec_hi, -1")
    wait(e, C6, 4, sleep=2)
    for h in range(16):
        for s in range(2):
            for i in range(2):
                e(f"ds_read_b64_tr_b16 {ar(8*h+4*s+2*i,2)}, v{24 + h//4} offset:{7168*(h%4)+4096*s+2048*i}")
    ID, BF, YA, OA = 40, 48, 64, 80
    e(f"""
    v_sub_f32 v9, 1.0, v15
    v_and_b32 v8, 1, v21
    v_cvt_pk_bf16_f32 v9, v9, 0
    v_lshlrev_b32 v8, 4, v8
    v_lshlrev_b32 v9, v8, v9
    v_lshrrev_b32 v10, 1, v21
    v_lshlrev_b32 v11, 2, v22
    v_sub_u32 v10, v10, v11
    """)
    for s in range(2):
        for w in range(4):
            e(f"v_cmp_eq_u32 vcc, {8*s+w}, v10\ns_nop 1\nv_cndmask_b32 v{ID+4*s+w}, 0, v9, vcc")
    e(f"""
    v_lshlrev_b32 v8, 6, v21
    v_lshl_add_u32 v8, v22, 4, v8
    s_mul_i32 s65, s4, 28672
    s_mul_i32 s66, s5, 7168
    s_add_u32 s65, s65, s66
    s_lshl_b32 s66, s3, 11
    s_add_u32 s65, s65, s66
    s_add_u32 s65, s65, {BT2}
    v_mul_u32_u24 v12, 896, v21
    v_lshl_add_u32 v12, v22, 4, v12
    s_mul_i32 s66, s4, {32*896}
    s_mul_i32 s67, s5, 224
    s_add_u32 s66, s66, s67
    s_lshl_b32 s67, s3, 6
    s_add_u32 s66, s66, s67
    v_add_u32 v14, {STG}, v2
    s_cmp_eq_u32 s3, 3
    s_cselect_b32 s70, 0xffff, -1
    s_mov_b32 s71, s70
    s_waitcnt lgkmcnt(0)
    """)
    signal(e, C7)
    srd(e, 48, 38, 2048 * 896)
    e(f"""
    @S 6
    @T 1
    H_YPOLL:
    buffer_load_dwordx4 {vr(BF,4)}, v8, s[44:47], s65 offen sc1
    buffer_load_dwordx4 {vr(BF+4,4)}, v8, s[44:47], s65 offen offset:32 sc1
    s_waitcnt vmcnt(0)
    v_max_u32 v16, v{BF}, v{BF+4}
    v_cmp_eq_u32 vcc, -1, v16
    s_and_b64 vcc, vcc, s[70:71]
    s_cbranch_vccz H_YOK
    s_sub_u32 s61, s61, 1
    s_cbranch_scc1 BAIL
    s_sleep 8
    s_branch H_YPOLL
    H_YOK:
    v_mfma_f32_32x32x16_bf16 {vr(YA,16)}, {vr(BF,4)}, {vr(ID,4)}, 0
    v_mfma_f32_32x32x16_bf16 {vr(YA,16)}, {vr(BF+4,4)}, {vr(ID+4,4)}, {vr(YA,16)}
    """)
    e(f"""
    s_lshl_b32 s80, s3, 11
    v_add_u32 v17, s80, v14
    s_lshl_b32 s81, s4, 2
    s_add_u32 s81, s81, s5
    s_lshl_b32 s79, s81, 13
    s_add_u32 s80, s80, s79
    s_add_u32 s80, s80, {OX}
    s_lshl_b32 s81, s81, 8
    s_lshl_b32 s79, s3, 6
    s_add_u32 s81, s81, s79
    s_add_u32 s81, s81, {FO}
    v_mov_b32 v18, s60
    """)
    e("@T 2\ns_setprio 3\ns_barrier\n@T 3")
    FB = 96
    def slot(n): n %= 16; return vr(FB + 4*n, 4) if n < 8 else ar(4*(n-8), 4)
    def blocks(ds):
        fr = [(d, s) for d in ds for s in range(8)]
        L = Lds(e); LA = 8 if ds == [0] else 12
        def rd(n):
            if n < len(fr): L.op(f"ds_read_b128 {slot(n)}, v14 offset:{8192*fr[n][0]+1024*fr[n][1]}", n)
        for n in range(LA): rd(n)
        for n, (d, s) in enumerate(fr):
            if n == len(fr) - PA and len(ds) < 3: L.op(f"ds_read_b128 v[20:23], v3 offset:{G0}")
            L.wait(n)
            o = (YA, 32, 48, OA)[d]
            e(f"v_mfma_f32_32x32x16_bf16 {vr(o,16)}, {ar(32*d+4*s,4)}, {slot(n)}, " + ("0" if s == 0 and d else vr(o,16)))
            rd(n + LA)
    wait(e, G0, 4, sleep=0)
    e("ds_read_b128 v[24:27], v17\nds_read_b128 v[28:31], v17 offset:1024")
    blocks([0])
    e(f"""
    buffer_store_dwordx4 v[24:27], v2, s[44:47], s80 offen sc1
    buffer_store_dwordx4 v[28:31], v2, s[44:47], s80 offen offset:1024 sc1
    s_mov_b32 s79, 24
    @T 4
    s_mov_b32 s73, 14
    s_branch H_PICK2
    H_PICK:
    ds_read_b128 v[20:23], v3 offset:{G0}
    H_PICK2:
    s_waitcnt lgkmcnt(0)
    v_readfirstlane_b32 s76, v21
    v_readfirstlane_b32 s77, v22
    v_readfirstlane_b32 s78, v23
    s_lshr_b32 s76, s76, 1
    s_lshl_b32 s78, s78, 1
    s_and_b32 s76, s76, 2
    s_and_b32 s77, s77, 4
    s_and_b32 s78, s78, 8
    s_or_b32 s76, s76, s77
    s_or_b32 s76, s76, s78
    s_and_b32 s76, s76, s73
    s_cbranch_scc1 H_GO
    s_sub_u32 s61, s61, 1
    s_cbranch_scc1 BAIL
    s_sub_u32 s79, s79, 1
    s_cmp_lg_u32 s79, 0
    s_cbranch_scc1 H_PICK
    s_waitcnt vmcnt(0)
    """)
    flag_store(e, "v18", "s81")
    e("""
    s_mov_b32 s79, 0x80000000
    s_branch H_PICK
    H_GO:
    s_xor_b32 s73, s73, s76
    """)
    order = [14, 2, 4, 8, 6, 10, 12]
    for m in order[1:]: e(f"s_cmp_eq_u32 s76, {m}\ns_cbranch_scc1 H_B{m}")
    for m in order[:1] + order[:0:-1]:
        e(f"H_B{m}:")
        blocks([d for d in (1, 2, 3) if m >> d & 1])
        if m == 14: e("s_branch H_FIN")
        else:
            e("s_cmp_lg_u32 s73, 0\ns_cbranch_scc1 H_PICK2")
            if m != 2: e("s_branch H_FIN")
    e("""
    H_FIN:
    @T 5
    s_cmp_gt_u32 s79, 24
    s_cbranch_scc1 H_FL
    s_waitcnt vmcnt(0)
    s_mov_b64 exec, 1
    buffer_store_dword v18, v3, s[44:47], s81 offen sc1
    s_mov_b64 exec, -1
    H_FL:
    s_nop 8
    """)
    def pk(op, d, x, y): e(f"v_pk_{op}_f32 {vr(d,2)}, {vr(x,2)}, {vr(y,2)}")
    for i in range(0, 16, 2): pk("add", 32+i, 32+i, 48+i)
    for i in range(0, 16, 2): pk("add", YA+i, YA+i, OA+i)
    for i in range(0, 16, 2): pk("add", YA+i, YA+i, 32+i)
    for i in range(8): e(f"v_cvt_pk_bf16_f32 v{32+i}, v{YA+2*i}, v{YA+2*i+1}")
    e(f"""
    s_cmp_eq_u32 s3, 3
    s_nop 0
    v_permlane32_swap_b32 v32, v34
    v_permlane32_swap_b32 v33, v35
    v_permlane32_swap_b32 v36, v38
    v_permlane32_swap_b32 v37, v39
    buffer_store_dwordx4 v[32:35], v12, s[48:51], s66 offen
    s_cbranch_scc1 H_END
    buffer_store_dwordx4 v[36:39], v12, s[48:51], s66 offen offset:32
    H_END:
    @E 0
    BAIL:
    s_endpgm
    CODE_END:
    """)

def main(out):
    e = A()
    hdr = f"""; gated mix of MQA attention and an S4 convolution: one launch, workgroups hand data over through d_ws
; @launch grid=(256,1,1) block=(512,1,1) lds={LDS}
.amdgcn_target "amdgcn-amd-amdhsa--gfx950"
.text
"""
    prologue(e); attn_path(e); helper_path(e)
    tail = f""".section .rodata,"a"
.p2align 6
.amdhsa_kernel {NAME}
  .amdhsa_next_free_vgpr 256
  .amdhsa_next_free_sgpr 102
  .amdhsa_accum_offset 128
  .amdhsa_group_segment_fixed_size 0
  .amdhsa_kernarg_size 144
  .amdhsa_user_sgpr_count 2
  .amdhsa_user_sgpr_kernarg_segment_ptr 1
  .amdhsa_system_sgpr_workgroup_id_x 1
.end_amdhsa_kernel
"""
    open(out, "w").write(hdr + e.text() + tail)

if __name__ == "__main__":
    main(sys.argv[1] if len(sys.argv) > 1 else "f2.s")
```

```python
import math, struct, sys, os

def f2u(x): return struct.unpack("<I", struct.pack("<f", x))[0]
LOG2E = 1.4426950408889634
QSCALE = (28 ** -0.5) * LOG2E
NAME = "gated_mix__grouped_kv_mqa__ssm_conv_s4__prompt_kernel"

KVF = 0x000000
FLG = 0x040000
FX  = 0x044000
FXT = 0x048000
FC  = 0x060000
XT2 = 0x080000
OX  = 0x280000
BT2 = 0x480000
OF  = 0x640000
FO  = 0x050000
WSZ = 0x840000
KGS = 4608
SY = 18432
XB = 18944
WB = 48128
WEND = WB + 448 * 256
LDS = 163840
IMG = WB + 336 * 256
ECH, OOF, UB, UCH = 8384, 4224, XB + 16768, 6144
C1, CA, ISS, C4, C5, KVD, P1, P2, P3, C6, C7, XF_, CB, C3, G0, QN, KN, GOF = [SY + x for x in (0, 4, 8, 12, 16, 20, 24, 32, 40, 48, 52, 60, 64, 68, 80, 96, 100, 128)]
CX = WB + 49152
STG = WB + 53248
SAFE_BOUND = 80.0
SHIFT = 64.0

BUDGET = int(os.environ.get("BUDGET", "0x8000"), 0)
ABL = os.environ.get("ABL", "")
NPRE = int(os.environ.get("NPRE", "8"))
PREF = int(os.environ.get("PREF", "1"))
PSH = int(os.environ.get("PSH", "7"))
HPRIO = int(os.environ.get("HPRIO", "2"))
LPRIO = int(os.environ.get("LPRIO", "1"))
ROT = int(os.environ.get("ROT", "1"))
APRIO = int(os.environ.get("APRIO", "3"))
KVCHK = int(os.environ.get("KVCHK", "12"))
CPRIO = int(os.environ.get("CPRIO", "0"))
KG = os.environ.get("KG", "ss")
WOC = int(os.environ.get("WOC", "1"))
XTE = int(os.environ.get("XTE", "0"))
ORD = int(os.environ.get("ORD", "1"))
CYC = int(os.environ.get("CYC", "0"))
LSEL = [6, 5, 4, 3, 2, 0]
FCIT = int(os.environ.get("FCIT", "3"))
PA = int(os.environ.get("PA", "3"))
EG = int(os.environ.get("EG", "0"))
XTH = int(os.environ.get("XTH", "0"))
D2W = int(os.environ.get("D2W", "1"))
N1 = int(os.environ.get("N1", "36"))
PERM = int(os.environ.get("PERM", "1"))
OUTP = os.environ.get("OUTP", "")
OFP = os.environ.get("OFP", "")
XC = int(os.environ.get("XC", "1"))
XD = int(os.environ.get("XD", "0"))
WBL = int(os.environ.get("WBL", "0"))
PAT = os.environ.get("PAT", "")
CLR = int(os.environ.get("CLR", "0"))
KC, KNP = SY + 72, SY + 256
HPRIO2 = int(os.environ.get("HPRIO2", "1"))
HP3 = int(os.environ.get("HP3", "2"))
HP4 = int(os.environ.get("HP4", "2"))
NOFAST = int(os.environ.get("NOFAST", "0"))
CPF = int(os.environ.get("CPF", "3"))
STAMP = int(os.environ.get("STAMP", "0"))
TSB = 0x1000000
def stamp(e, i):
    if STAMP: e(f"s_memrealtime s[{100-2*i}:{101-2*i}]\ns_waitcnt lgkmcnt(0)")
def stamp_end(e, kidx):
    if not STAMP: return
    e(f"""
    s_waitcnt vmcnt(0)
    s_memrealtime s[86:87]
    s_load_dwordx2 s[84:85], s[0:1], 136
    s_mov_b64 exec, 1
    v_lshrrev_b32 v2, 6, v0
    s_lshl_b32 s83, s2, 4
    v_add_u32 v2, s83, v2
    v_lshlrev_b32 v2, 6, v2
    v_add_u32 v2, {TSB + kidx*0x100000}, v2
    s_waitcnt lgkmcnt(0)
    """)
    for i in range(16): e(f"v_mov_b32 v{4+i}, s{86+i}")
    for i in range(4): e(f"global_store_dwordx4 v2, v[{4+4*i}:{7+4*i}], s[84:85] offset:{16*i}")

class A:
    def __init__(self): self.l = []; self.n = 0; self.h = False
    def __call__(self, s=""):
        for line in s.split("\n"):
            line = line.strip()
            if not line: continue
            if line.startswith("@S "):
                if STAMP == 1 or line == "@S 0" or (STAMP == 4 and self.h): stamp(self, int(line[3:]))
                continue
            if line.startswith("@T "):
                if STAMP == 2: stamp(self, int(line[3:]))
                continue
            if line.startswith("@U "):
                if STAMP == 3: stamp(self, int(line[3:]))
                continue
            if line.startswith("@V "):
                if STAMP == 5: stamp(self, int(line[3:]))
                continue
            if line.startswith("@E "): stamp_end(self, int(line[3:])); continue
            if line.endswith(":") or line.startswith("."): self.l.append(line)
            else: self.l.append("    " + line)
    def lab(self, p="L"):
        self.n += 1; return f"{p}{self.n}"
    def text(self): return "\n".join(self.l) + "\n"

def vr(a, n): return f"v[{a}:{a+n-1}]"
def ar(a, n): return f"a[{a}:{a+n-1}]"
def sr(a, n): return f"s[{a}:{a+n-1}]"
def srd(e, d, base, nbytes):
    e(f"s_mov_b32 s{d}, s{base}\ns_mov_b32 s{d+1}, s{base+1}\ns_mov_b32 s{d+2}, {nbytes}\ns_mov_b32 s{d+3}, 0x00020000")

def signal(e, off, addr="v3", restore="s_mov_b64 exec, -1"):
    e(f"s_mov_b64 exec, 1\nds_add_u32 {addr}, v4 offset:{off}\n{restore}")
def wait(e, off, n, addr="v3", sleep=1):
    l = e.lab("W"); d = e.lab("D")
    e(f"""
    {l}:
    ds_read_b32 v5, {addr} offset:{off}
    s_waitcnt lgkmcnt(0)
    v_readfirstlane_b32 s64, v5
    s_cmp_ge_u32 s64, {n}
    s_cbranch_scc1 {d}
    s_sub_u32 s61, s61, 1
    s_cbranch_scc1 BAIL
    {f's_sleep {sleep}' if sleep else ''}
    s_branch {l}
    {d}:
    """)
def nonce_issue(e, v): e(f"global_load_dword v{v}, v3, s[40:41] sc1")
def nonce_check(e, v):
    l = e.lab("N"); d = e.lab("D")
    e(f"""
    {l}:
    v_readfirstlane_b32 s60, v{v}
    s_cmp_lg_u32 s60, 0
    s_cbranch_scc1 {d}
    s_sub_u32 s61, s61, 1
    s_cbranch_scc1 BAIL
    global_load_dword v{v}, v3, s[40:41] sc1
    s_waitcnt vmcnt(0)
    s_branch {l}
    {d}:
    """)

def gemm_loop(e, nsteps, reads, mfma, depth, nper):
    for s in range(min(depth, nsteps)):
        for r in reads(s): e(r)
    for s in range(nsteps):
        if s + depth < nsteps:
            for r in reads(s + depth): e(r)
            out = depth * nper
        else:
            out = (nsteps - 1 - s) * nper
        e(f"s_waitcnt lgkmcnt({out})")
        e(mfma(s))

def cmul(e, z, x, y, t, conj=False):
    e(f"v_pk_mul_f32 {vr(t,2)}, {vr(x,2)}, {vr(y,2)} op_sel:[0,0] op_sel_hi:[1,0]")
    neg = "neg_hi:[1,0,0]" if conj else "neg_lo:[1,0,0]"
    e(f"v_pk_fma_f32 {vr(z,2)}, {vr(x,2)}, {vr(y,2)}, {vr(t,2)} op_sel:[1,1,0] op_sel_hi:[0,1,1] {neg}")

def wdma_voff(e, v):
    e(f"""
    v_lshrrev_b32 v8, 4, v1
    v_and_b32 v9, 15, v1
    v_lshlrev_b32 v10, 2, v8
    v_xor_b32 v9, v9, v10
    v_mul_u32_u24 v8, 896, v8
    v_lshl_add_u32 v{v}, v9, 4, v8
    """)

def prologue(e):
    e(f"""
    .globl {NAME}
    .p2align 8
    .type {NAME},@function
    {NAME}:
    s_cmp_ge_u32 s2, 256
    s_cbranch_scc1 BAIL
    """)
    if CPF >= 3:
        e(f"""
        s_getpc_b64 s[84:85]
        v_lshlrev_b32 v76, 7, v0
        v_min_u32 v76, CODE_END - {NAME} - 64, v76
        v_mov_b32 v77, s85
        v_add_co_u32 v76, vcc, s84, v76
        v_addc_co_u32 v77, vcc, 0, v77, vcc
        global_load_dword v79, v[76:77], off
        """)
    e(f"""
    @S 0
    s_load_dwordx16 s[8:23], s[0:1], 0
    s_load_dwordx16 s[24:39], s[0:1], 64
    s_load_dwordx4 s[40:43], s[0:1], 128
    v_lshrrev_b32 v2, 6, v0
    v_and_b32 v1, 63, v0
    v_readfirstlane_b32 s3, v2
    v_lshlrev_b32 v2, 4, v1
    v_mov_b32 v3, 0
    v_mov_b32 v4, 1
    s_and_b32 s4, s2, 7
    s_lshl_b32 s4, s4, 3
    s_bfe_u32 s5, s2, 0x30003
    s_add_u32 s4, s4, s5
    s_lshr_b32 s5, s2, 6
    s_mov_b32 s61, {BUDGET}
    s_mov_b32 s62, 0
    s_mov_b32 s63, -1
    s_cmp_lg_u32 s3, 0
    s_cbranch_scc1 NOZERO
    v_mov_b32 v8, 0
    v_mov_b32 v9, 0
    v_mov_b32 v10, 0
    v_mov_b32 v11, 0
    v_lshlrev_b32 v6, 3, v1
    v_add_u32 v7, {WEND}, v2
    ds_write_b64 v6, v[8:9] offset:{SY}
    ds_write_b128 v7, v[8:11]
    NOZERO:
    s_waitcnt lgkmcnt(0)
    """)
    srd(e, 44, 42, WSZ)
    e("s_cmp_ge_u32 s3, 4\ns_cbranch_scc1 HELPER")

class Lds:
    def __init__(self, e): self.e = e; self.n = 0; self.mark = {}
    def op(self, text, tag=None):
        self.e(text); self.n += 1
        if tag is not None: self.mark[tag] = self.n
    def wait(self, tag):
        self.e(f"s_waitcnt lgkmcnt({min(15, self.n - self.mark[tag])})")

def xfrag(s): return vr(80 + 4*s, 4) if s < 12 else ar(64 + 4*(s-12), 4)
def xfrag_reads(e, v):
    if 'noxf' in ABL: return
    for s in range(28): e(f"ds_read_b128 {xfrag(s)}, v{v} offset:{32*s}")
def flag_store(e, regs, soff, x2=False):
    e(f"s_mov_b64 exec, 1\nbuffer_store_dword{'x2' if x2 else ''} {regs}, v3, s[44:47], {soff} offen sc1\ns_mov_b64 exec, -1")

def xt_copy(e, XT, va, vo, so, lab, mid=None):
    for g in range(4):
        e(f"ds_read_b64_tr_b16 {vr(XT+4*g,2)}, v{va} offset:{32*g}\nds_read_b64_tr_b16 {vr(XT+2+4*g,2)}, v{va} offset:{32*g+4*912}")
    e("s_waitcnt lgkmcnt(4)")
    for g in range(4):
        if g == 2:
            e("s_waitcnt lgkmcnt(0)")
            if mid: mid()
        if g == 3: e(f"s_cmp_eq_u32 s3, 1\ns_cbranch_scc1 {lab}")
        e(f"buffer_store_dwordx4 {vr(XT+4*g,4)}, v{vo}, s[44:47], s{so} offen sc1")
        if g < 3: e(f"s_add_i32 s{so}, s{so}, 65536")
    e(f"{lab}:")

def q_addr(e):
    e(f"""
    v_lshrrev_b32 v12, 5, v1
    v_bfe_u32 v13, v1, 2, 2
    v_lshl_add_u32 v10, v12, 3, v13
    v_lshlrev_b32 v10, 8, v10
    v_bfe_u32 v11, v1, 4, 1
    v_lshlrev_b32 v11, 5, v11
    v_and_b32 v16, 3, v1
    v_lshl_add_u32 v11, v16, 3, v11
    s_mul_i32 s65, s3, 56
    v_add_u32 v11, s65, v11
    v_lshlrev_b32 v13, 6, v13
    v_xor_b32 v11, v11, v13
    v_add_u32 v10, v10, v11
    v_add_u32 v7, {WB}, v10
    v_add_u32 v8, {WB + 65536}, v10
    s_lshl_b32 s65, s3, 11
    s_add_u32 s65, s65, {WB}
    v_add_u32 v10, s65, v2
    v_lshlrev_b32 v11, 2, v1
    s_lshl_b32 s65, s3, 16
    s_add_u32 s52, s42, s65
    s_addc_u32 s53, s43, 0
    s_mov_b32 s54, 0x10000
    s_mov_b32 s55, 0x00020000
    s_lshr_b32 s80, s2, 3
    s_add_u32 s80, s80, s5
    s_lshl_b32 s80, s80, 13
    s_and_b32 s80, s80, {0xffff if ROT else 0}
    s_mov_b32 s81, 0
    s_mov_b32 s82, 0
    """)
MASK = "s_mov_b32 exec_lo, 0xf3ff3fff\ns_mov_b32 exec_hi, 0xfff3ff3f"
def dma_loop(e, n, lab):
    e(f"""
    s_mov_b32 s66, {n//2}
    {lab}:
    buffer_load_dwordx4 v6, s[56:59], s65 offen lds
    s_add_u32 m0, m0, 2048
    s_add_u32 s65, s65, 7168
    buffer_load_dwordx4 v6, s[56:59], s65 offen lds
    s_add_u32 m0, m0, 2048
    s_add_u32 s65, s65, 7168
    s_sub_u32 s66, s66, 1
    s_cmp_lg_u32 s66, 0
    s_cbranch_scc1 {lab}
    """)

def attn_path(e):
    Q, S, P, KV, CR = 16, (48, 64), (80, 88), (96, 112), 8
    e(f"s_setprio {APRIO}")
    if PREF:
        e(f"""
        s_lshr_b32 s64, s2, 3
        v_lshlrev_b32 v8, 7, v1
        s_mov_b32 s55, 0x00020000
        s_cmp_lg_u32 s3, 0
        s_cbranch_scc1 A_P1
        s_mov_b32 s52, s8
        s_mov_b32 s53, s9
        s_lshl_b32 s65, s4, 2
        s_add_u32 s65, s65, s5
        s_mul_i32 s65, s65, 7168
        s_add_u32 s54, s65, 7168
        s_branch A_PGO
        A_P1:
        s_cmp_eq_u32 s3, 3
        s_cbranch_scc1 A_P3
        s_mov_b32 s52, s10
        s_mov_b32 s53, s11
        s_mul_i32 s65, s64, 12544
        s_add_u32 s54, s65, 12544
        s_cmp_eq_u32 s3, 1
        s_cselect_b32 s66, 0, 6272
        s_cselect_b32 s67, 6272, 0
        s_add_u32 s65, s65, s66
        s_sub_u32 s54, s54, s67
        s_branch A_PGO
        A_P3:
        s_cmp_lt_u32 s64, 16
        s_cselect_b32 s52, s12, s14
        s_cselect_b32 s53, s13, s15
        s_and_b32 s65, s64, 15
        s_mul_i32 s65, s65, 1664
        s_add_u32 s54, s65, 1664
        s_min_u32 s54, s54, {448*56}
        A_PGO:
        buffer_load_dword v79, v8, s[52:55], s65 offen
        """)
    e(f"""
    s_barrier
    v_lshrrev_b32 v16, 5, v1
    v_and_b32 v17, 31, v1
    v_mul_u32_u24 v17, 912, v17
    v_lshl_add_u32 v17, v16, 4, v17
    v_add_u32 v78, {XB}, v17
    v_lshrrev_b32 v16, 4, v1
    v_and_b32 v17, 15, v1
    v_lshlrev_b32 v16, 12, v16
    v_lshl_add_u32 v77, v17, 6, v16
    s_lshl_b32 s79, s3, 10
    s_add_u32 s79, s79, {FX}
    s_cmp_ge_u32 s3, 2
    s_cbranch_scc1 A_DMAW
    """)
    srd(e, 56, 36, 896)
    GW = 12
    e(f"""
    buffer_load_dwordx4 {vr(GW,4)}, v2, s[56:59], 0 offen
    s_and_b32 s74, s5, 1
    s_cmp_lt_u32 s5, 2
    s_cselect_b32 s65, s3, s74
    s_cselect_b32 s66, s74, s3
    s_cselect_b32 s67, 0, 2048
    s_lshl_b32 s65, s65, 10
    s_lshl_b32 s66, s66, 8
    s_lshl_b32 s68, s4, 12
    s_add_u32 s68, s68, s65
    s_add_u32 s68, s68, s66
    s_add_u32 s68, s68, s67
    v_lshrrev_b32 v16, 4, v1
    v_lshl_add_u32 v18, v16, 5, v17
    v_lshlrev_b32 v9, 4, v18
    v_mov_b32 v20, -1
    v_mov_b32 v21, -1
    v_mov_b32 v22, -1
    v_mov_b32 v23, -1
    s_mov_b32 exec_hi, 0
    buffer_store_dwordx4 v[20:23], v9, s[44:47], s68 offen sc1
    """)
    srd(e, 48, 8, 2048 * 896)
    e(f"""
    s_mul_i32 s64, s3, {16*912}
    s_add_u32 m0, s64, {XB}
    s_lshl_b32 s65, s4, 5
    s_lshl_b32 s66, s3, 4
    s_add_u32 s65, s65, s66
    s_mul_i32 s65, s65, 896
    s_mov_b32 exec_hi, 0x00ffffff
    """)
    for i in range(16):
        e("buffer_load_dwordx4 v2, s[48:51], s65 offen lds")
        if i < 15: e("s_add_u32 m0, m0, 912\ns_add_u32 s65, s65, 896")
    e(f"""
    s_mov_b32 exec_hi, -1
    s_cmp_lt_u32 s5, 2
    s_cselect_b32 s52, s12, s14
    s_cselect_b32 s53, s13, s15
    s_mov_b32 s54, {448*56}
    s_mov_b32 s55, 0x00020000
    s_mul_i32 s65, s3, {13*1024}
    s_add_u32 m0, s65, {IMG}
    s_nop 0
    """)
    for i in range(13):
        e("buffer_load_dwordx4 v2, s[52:55], s65 offen lds")
        if i < 12: e("s_add_u32 m0, m0, 1024\ns_add_u32 s65, s65, 1024")
    signal(e, ISS)
    e("@S 1")
    if ABL == "kgen": e("@E 0\ns_endpgm")
    nonce_issue(e, 30)
    XA, WA, XT = 6, 7, 60
    e(f"""
    v_and_b32 v16, 15, v1
    v_lshrrev_b32 v17, 4, v1
    s_lshl_b32 s65, s74, 4
    v_add_u32 v18, s65, v16
    v_mul_u32_u24 v18, 912, v18
    v_lshl_add_u32 v18, v17, 4, v18
    v_add_u32 v{XA}, {XB}, v18
    v_bfe_u32 v18, v1, 2, 2
    v_lshl_add_u32 v18, v17, 3, v18
    v_and_b32 v19, 3, v1
    v_lshlrev_b32 v19, 3, v19
    v_mad_u32_u24 v24, v18, 56, v19
    s_lshl_b32 s65, s3, 5
    s_add_u32 s65, s65, {IMG}
    v_add_u32 v{WA}, s65, v24
    v_mul_u32_u24 v18, 912, v18
    v_add_u32 v10, v18, v19
    s_mul_i32 s65, s5, 224
    s_lshl_b32 s66, s3, 7
    s_add_u32 s65, s65, s66
    s_add_u32 s65, s65, {XB}
    v_add_u32 v10, s65, v10
    v_lshrrev_b32 v18, 1, v16
    v_lshlrev_b32 v18, 13, v18
    v_and_b32 v19, 1, v1
    v_lshl_add_u32 v18, v19, 6, v18
    v_lshl_add_u32 v11, v17, 4, v18
    s_mul_i32 s65, s5, 56
    s_lshl_b32 s66, s3, 5
    s_add_u32 s65, s65, s66
    s_lshl_b32 s65, s65, 13
    s_lshl_b32 s66, s4, 7
    s_add_u32 s65, s65, s66
    s_add_u32 s69, s65, {XT2}
    s_lshl_b32 s65, s5, 6
    s_add_u32 s65, s65, s4
    s_lshl_b32 s65, s65, 6
    s_add_u32 s70, s65, {FX}
    s_lshl_b32 s65, s4, 1
    s_add_u32 s65, s65, s74
    s_lshl_b32 s65, s65, 6
    s_add_u32 s71, s65, {FLG}
    s_mov_b32 s72, {f2u(QSCALE)}
    s_mov_b32 s75, 0xfffffffe
    s_lshl_b32 s65, s5, 1
    s_add_u32 s65, s65, s3
    s_lshl_b32 s65, s65, 6
    s_add_u32 s65, s65, s4
    s_lshl_b32 s65, s65, 6
    s_add_u32 s83, s65, {FXT}
    """)
    for i in range(64): e(f"v_accvgpr_write_b32 a{i}, 0")
    e("s_waitcnt vmcnt(1)")
    signal(e, C1)
    wait(e, C1, 2)
    e("@S 2\n@U 1")
    D = 16
    KB = [80 + 8*i for i in range(6)]
    def kvgemm(kfirst):
        L = Lds(e)
        def rd(s):
            b = KB[s % 6]
            L.op(f"ds_read_b128 {vr(b+4,4)}, v{XA} offset:{64*s}")
            L.op(f"ds_read_b64_tr_b16 {vr(b,2)}, v{WA} offset:{1792*s}")
            L.op(f"ds_read_b64_tr_b16 {vr(b+2,2)}, v{WA} offset:{1792*s+224}", s)
        for s in range(5): rd(s)
        lab = e.lab("F")
        e(f"s_cmp_lg_u32 s3, 0\ns_cbranch_scc1 {lab}\ns_waitcnt vmcnt(0)")
        nonce_check(e, 30)
        flag_store(e, "v30", "s70")
        e(f"{lab}:")
        for s in range(14):
            L.wait(s)
            b = KB[s % 6]
            a_, b_ = (vr(b,4), vr(b+4,4)) if kfirst else (vr(b+4,4), vr(b,4))
            e(f"v_mfma_f32_16x16x32_bf16 {vr(D,4)}, {a_}, {b_}, " + ("0" if s == 0 else vr(D,4)))
            if s + 5 < 14: rd(s + 5)
        signal(e, KVD)
    def kvstore():
        e(f"""
        v_mov_b32 v26, v24
        v_mov_b32 v27, v25
        s_nop 1
        v_permlane32_swap_b32 v24, v26
        v_permlane32_swap_b32 v25, v27
        s_nop 0
        v_min_u32 v24, s75, v24
        s_mov_b32 exec_hi, 0
        buffer_store_dwordx4 v[24:27], v9, s[44:47], s68 offen sc1
        s_mov_b32 exec_hi, -1
        """)
    e("s_cmp_ge_u32 s5, 2\ns_cbranch_scc1 A_V")
    kvgemm(True)
    e(f"""
    s_mov_b32 s66, 0
    s_cmp_eq_u32 s3, 1
    s_cselect_b32 s67, 0xffff0000, 0
    v_mov_b32 v28, 0x3f803f80
    v_mov_b32 v29, 0x00003f80
    s_nop 1
    """)
    for i in range(4): e(f"v_mul_f32 v{16+i}, s72, v{16+i}")
    e(f"""
    v_cvt_pk_bf16_f32 v24, v16, v17
    v_cvt_pk_bf16_f32 v25, v18, v19
    v_cndmask_b32 v24, v24, v28, s[66:67]
    v_cndmask_b32 v25, v25, v29, s[66:67]
    """)
    kvstore()
    e(f"""
    v_mul_f32 v28, v16, v16
    v_fmac_f32 v28, v17, v17
    v_fmac_f32 v28, v18, v18
    v_fmac_f32 v28, v19, v19
    v_cndmask_b32 v28, v28, 0, s[66:67]
    v_mov_b32 v29, v28
    s_nop 1
    v_permlane16_swap_b32 v28, v29
    s_nop 1
    v_add_f32 v28, v28, v29
    v_mov_b32 v29, v28
    s_nop 1
    v_permlane32_swap_b32 v28, v29
    v_lshlrev_b32 v8, 2, v1
    v_add_f32 v31, v28, v29
    s_cmp_eq_u32 s3, 1
    s_cbranch_scc1 A_KVFLAG
    ds_write_b32 v8, v31 offset:{KNP}
    """)
    signal(e, KC)
    e("s_branch A_KVFLAG\nA_V:")
    kvgemm(False)
    e(f"""
    v_and_b32 v28, 15, v1
    s_lshl_b32 s65, s3, 4
    v_add_u32 v28, s65, v28
    v_cmp_eq_u32 vcc, 28, v28
    v_mov_b32 v28, 0x3f803f80
    s_nop 0
    v_cvt_pk_bf16_f32 v24, v16, v17
    v_cvt_pk_bf16_f32 v25, v18, v19
    v_cndmask_b32 v24, v24, v28, vcc
    v_cndmask_b32 v25, v25, v28, vcc
    """)
    kvstore()
    e("A_KVFLAG:\n@U 2")
    xt_copy(e, XT, 10, 11, 69, "A_XT3")
    xfrag_reads(e, 78)
    signal(e, XF_)
    srd(e, 56, 10, 448 * 896)
    e(f"""
    @U 3
    v_lshrrev_b32 v26, 4, v1
    v_and_b32 v27, 15, v1
    v_lshlrev_b32 v6, 2, v26
    v_xor_b32 v27, v27, v6
    v_mul_u32_u24 v26, 896, v26
    v_lshl_add_u32 v6, v27, 4, v26
    """)
    wait(e, KVD, 2)
    e(f"s_cmp_eq_u32 s3, 0\ns_cbranch_scc1 A_NG0\nv_lshlrev_b32 v9, 11, v1\nv_add_u32 v9, {WB}, v9\ns_mov_b32 exec_hi, 0x00ffffff")
    for j in range(8):
        op = "ds_write_b16_d16_hi" if j & 1 else "ds_write_b16"
        e(f"{op} v9, v{GW + j//2} offset:{256*j + (224 ^ (64*(j&3)))}")
    e("s_mov_b32 exec_hi, -1")
    signal(e, CA)
    e(f"""
    A_NG0:
    s_lshl_b32 s66, s3, 10
    s_add_u32 m0, s66, {WB + N1*2048}
    s_mul_i32 s65, s3, 3584
    s_mul_i32 s66, s5, 224
    s_add_u32 s65, s65, s66
    s_add_u32 s65, s65, {N1*7168}
    """)
    e(MASK)
    dma_loop(e, 56 - N1, "A_DL3")
    e(f"s_mov_b64 exec, -1\ns_cmp_eq_u32 s3, 0\ns_cbranch_scc1 A_NG1\ns_waitcnt vmcnt({4 + 56 - N1})")
    nonce_check(e, 30)
    e("s_cmp_ge_u32 s5, 2\ns_cbranch_scc1 A_NG1")
    wait(e, KC, 1)
    e(f"ds_read_b32 v29, v8 offset:{KNP}\ns_waitcnt lgkmcnt(0)\nv_add_f32 v31, v31, v29")
    for c in (1, 2, 4, 8): e(f"s_nop 1\nv_max_f32_dpp v31, v31, v31 row_ror:{c} row_mask:0xf bank_mask:0xf")
    flag_store(e, "v[30:31]", "s71", True)
    e("A_NG1:\n@S 3\n@U 4")
    if XTE and not XTH:
        e("s_waitcnt vmcnt(0)")
        flag_store(e, "v30", "s83")
    q_addr(e)
    e("s_branch A_QSYNC\nA_DMAW:")
    srd(e, 56, 10, 448 * 896)
    wdma_voff(e, 6)
    for i in range(64): e(f"v_accvgpr_write_b32 a{i}, 0")
    q_addr(e)
    e(f"""
    s_sub_u32 s65, s3, 2
    s_lshl_b32 s66, s65, 10
    s_add_u32 m0, s66, {WB}
    s_mul_i32 s65, s65, 3584
    s_mul_i32 s66, s5, 224
    s_add_u32 s65, s65, s66
    """)
    wait(e, ISS, 2)
    e("@S 1")
    if ABL == "kgen": e("@E 0\ns_endpgm")
    e(MASK)
    dma_loop(e, N1, "A_DL2")
    e("s_mov_b64 exec, -1")
    nonce_issue(e, 30)
    e("@S 2\n@U 1")
    if ORD == 0:
        wait(e, C1, 2)
        xfrag_reads(e, 78)
        signal(e, XF_)
    if D2W: wait(e, C1, 2)
    else:
        wait(e, KVD, 2)
        e("@U 2")
        e(MASK)
        dma_loop(e, 14, "A_DL3")
    e("s_mov_b64 exec, -1\n@S 3\n@U 3")
    if ORD == 1:
        xfrag_reads(e, 78)
        signal(e, XF_)
    e(f"s_waitcnt vmcnt({0 if D2W else 14})\n@U 4")
    signal(e, CA)
    nonce_check(e, 30)
    e("A_QSYNC:\nbuffer_load_dword v14, v77, s[44:47], s79 offen sc1")
    wait(e, CA, 3)
    e("@S 4\n@V 1")
    def kv_first():
        e(f"""
        s_add_u32 s70, s80, 4096
        buffer_load_dwordx4 {vr(KV[0],4)}, v2, s[52:55], s80 offen sc1
        buffer_load_dwordx4 {vr(KV[0]+4,4)}, v2, s[52:55], s80 offen offset:1024 sc1
        buffer_load_dwordx4 {vr(KV[0]+8,4)}, v2, s[52:55], s80 offen offset:2048 sc1
        buffer_load_dwordx4 {vr(KV[0]+12,4)}, v2, s[52:55], s80 offen offset:3072 sc1
        buffer_load_dwordx4 {vr(KV[1],4)}, v2, s[52:55], s70 offen sc1
        buffer_load_dwordx4 {vr(KV[1]+4,4)}, v2, s[52:55], s70 offen offset:1024 sc1
        """)
    ACC, FB = 48, 64
    WBUF = [16, 20, 24, 32, 36, 40]
    L = Lds(e); DEP = 5
    def rq(s):
        b = WBUF[s % 6]; w = 7 if s < 16 else 8; o = 4096 * (s % 16)
        L.op(f"ds_read_b64_tr_b16 {vr(b,2)}, v{w} offset:{o}")
        L.op(f"ds_read_b64_tr_b16 {vr(b+2,2)}, v{w} offset:{o+1024}", s)
    CBS = N1 // 2 - DEP
    QA = [72, 73, 74, 75]
    fill = [f"v_mov_b32 v{P[1]+i}, 0" for i in range(8)] + [f"v_mov_b32 v{KV[1]+8+i}, 0" for i in range(8)]
    for j in range(4):
        fill.append(f"s_add_u32 s65, s3, {j+1}\ns_and_b32 s65, s65, 3\ns_lshl_b32 s66, s65, 11\ns_add_u32 s66, s66, {WB}\nv_add_u32 v{QA[j]}, s66, v2")
    fill.append("v_lshlrev_b32 v15, 2, v1")
    for s in range(DEP): rq(s)
    L.op(f"s_mov_b64 exec, 1\nds_add_u32 v3, v4 offset:{C3}\ns_mov_b64 exec, -1")
    for s in range(28):
        if s == CBS - 3:
            e(f"s_cmp_{'ge' if D2W else 'lt'}_u32 s3, 2\ns_cbranch_scc1 A_NOCB\ns_waitcnt vmcnt(1)")
            signal(e, CB)
            e("A_NOCB:")
        if s == CBS - 2: L.op(f"ds_read_b64 v[44:45], v3 offset:{CB}", "cb")
        if s == CBS:
            L.wait("cb")
            e(f"""
            @V 2
            v_readfirstlane_b32 s64, v44
            v_readfirstlane_b32 s65, v45
            s_cmp_ge_u32 s64, 2
            s_cbranch_scc1 A_CBOK
            """)
            wait(e, CB, 2)
            e("A_CBOK:\ns_cmp_ge_u32 s65, 4\ns_cbranch_scc1 A_C3OK")
            wait(e, C3, 4)
            e("A_C3OK:\n@V 3")
        if s == KVCHK:
            e(f"""
            s_waitcnt vmcnt(0)
            """)
            if not XTE and not XTH: e(f"""
            s_cmp_ge_u32 s3, 2
            s_cbranch_scc1 A_NOXF
            s_mov_b64 exec, 1
            buffer_store_dword v30, v3, s[44:47], s83 offen sc1
            s_mov_b64 exec, -1
            A_NOXF:
            """)
            e(f"""
            v_cmp_ne_u32 vcc, s60, v14
            s_cbranch_vccnz A_NOTYET
            """)
            kv_first()
            e(f"""
            s_mov_b32 s81, 1
            s_branch A_YET
            A_NOTYET:
            buffer_load_dword v14, v77, s[44:47], s79 offen sc1
            A_YET:
            """)
        if s + DEP < 28: rq(s + DEP)
        L.wait(s)
        e(f"v_mfma_f32_32x32x16_bf16 {vr(ACC,16)}, {vr(WBUF[s%6],4)}, {xfrag(s)}, " + ("0" if s == 0 else vr(ACC,16)))
        if s >= 14:
            for x in fill[:2]: e(x)
            del fill[:2]
    assert not fill
    e("@V 4")
    for d in range(3):
        e(f"s_sub_u32 s65, s3, {d+1}\ns_and_b32 s65, s65, 3\ns_mul_i32 s65, s65, 12288\ns_add_u32 s{66+d}, s65, {WB + 4096*d}")
    for i in range(8): e(f"v_cvt_pk_bf16_f32 v{FB+i}, v{ACC+2*i}, v{ACC+2*i+1}")
    e(f"""
    v_cndmask_b32 v{FB+6}, v{FB+6}, 0, s[62:63]
    v_cndmask_b32 v{FB+7}, v{FB+7}, 0, s[62:63]
    ds_write_b128 v10, {vr(FB,4)}
    ds_write_b128 v10, {vr(FB+4,4)} offset:1024
    """)
    signal(e, C4)
    e(f"""
    s_cmp_lg_u32 s3, 3
    s_cbranch_scc1 A_NOG
    v_mul_f32 v6, {f2u(-LOG2E)}, v{ACC+12}
    v_exp_f32 v6, v6
    s_nop 0
    v_add_f32 v6, 1.0, v6
    v_rcp_f32 v6, v6
    s_mov_b32 exec_lo, 0
    ds_write_b32 v11, v6 offset:{GOF - 128}
    ds_write_b32 v11, v6 offset:{GOF}
    s_mov_b32 exec_lo, -1
    A_NOG:
    @V 5
    """)
    wait(e, C4, 4, sleep=0)
    for j in range(4):
        e(f"ds_read_b128 {vr(Q+8*j,4)}, v{QA[j]}\nds_read_b128 {vr(Q+8*j+4,4)}, v{QA[j]} offset:1024")
    e("v_mov_b32 v6, 0")
    for i in range(8): e(f"v_dot2c_f32_bf16 v6, v{FB+i}, v{FB+i}")
    e(f"""
    v_add_u32 v12, s66, v2
    v_add_u32 v13, s67, v2
    s_nop 0
    v_mov_b32 v7, v6
    s_nop 1
    v_permlane32_swap_b32 v6, v7
    s_nop 1
    v_add_f32 v6, v6, v7
    s_mov_b32 exec_hi, 0
    ds_max_u32 v3, v6 offset:{QN}
    s_mov_b32 exec_hi, -1
    """)
    e(f"""
    @S 5
    s_cmp_lg_u32 s81, 0
    s_cbranch_scc1 A_GOT
    A_POLL:
    s_waitcnt vmcnt(0)
    v_cmp_ne_u32 vcc, s60, v14
    s_cbranch_vccz A_GOT0
    s_sub_u32 s61, s61, 1
    s_cbranch_scc1 BAIL
    buffer_load_dword v14, v77, s[44:47], s79 offen sc1
    s_branch A_POLL
    A_GOT0:
    @U 5
    """)
    kv_first()
    e("A_GOT:")
    signal(e, C5)
    e(f"""
    s_mul_i32 s65, s3, 12288
    s_add_u32 s65, s65, {WB}
    v_add_u32 v6, s65, v2
    v_add_u32 v14, s68, v2
    s_waitcnt lgkmcnt(2)
    """)
    e(f"""
    s_waitcnt vmcnt(2)
    A_MAIN:
    s_setprio {LPRIO}
    @S 6
    """)
    def qk(i, tile):
        kb = KV[(tile >> 2) & 1]; s = S[tile & 1]; q = Q + 8 * (tile & 3)
        return f"v_mfma_f32_32x32x16_bf16 {vr(s,16)}, {vr(kb+4*i,4)}, {vr(q+4*i,4)}, " + ("0" if i == 0 else vr(s,16))
    def pv(i, tile):
        vb = KV[(tile >> 2) & 1] + 8; p = P[tile & 1]; o = 16 * (tile & 3)
        return f"v_mfma_f32_32x32x16_bf16 {ar(o,16)}, {vr(vb+4*i,4)}, {vr(p+4*i,4)}, {ar(o,16)}"
    def ld(reg, off): return f"buffer_load_dwordx4 {vr(reg,4)}, v2, s[52:55], s70 offen offset:{off} sc1"
    def pw(d, i): return f"ds_write_b128 v6, {ar(16*d+4*i,4)} offset:{4096*d+1024*i}"
    stubs = []
    def chk(reg): return [f"v_max_u32 v7, v{reg}, v{reg+4}", "v_cmp_eq_u32 vcc, -1, v7"]
    def br(reg, off):
        n = len(stubs); stubs.append((reg, off))
        return [f"s_cbranch_vccnz A_RL{n}", f"A_RB{n}:"]
    for x in chk(KV[0]) + ["s_nop 0"] + br(KV[0], 0): e(x)
    e("@U 6\n@V 6")
    e(qk(0, 0)); e(qk(1, 0))
    e(f"v_mov_b32 v{S[1]+14}, 0\nv_mov_b32 v{S[1]+15}, 0\ns_mov_b32 s73, 7\ns_mov_b32 s71, 0x07060302\ns_mov_b32 s72, {f2u(SAFE_BOUND**2)}\ns_nop 4")
    pat = "pCeeee" "qceecee" "Qceeceec" "Peeceec"
    if PAT: pat = PAT
    def pack(d, a): return f"v_perm_b32 v{d}, v{a+1}, v{a}, s71" if PERM else f"v_cvt_pk_bf16_f32 v{d}, v{a}, v{a+1}"
    def step(j, last):
        s = S[j & 1]; p = P[j & 1]; sp = S[(j + 1) & 1]; pp = P[(j + 1) & 1]
        ex = [f"v_exp_f32 v{s+i}, v{s+i}" for i in range(16)]
        cv = [pack(p+i, s+2*i) for i in range(7)]
        side = {"p": [], "q": [], "Q": [], "P": []}
        pre = {"p": [], "q": []}
        if j == 0: side["P"] = ["s_waitcnt vmcnt(2)"] + chk(KV[0] + 8)
        if j == 1: pre["p"] = br(KV[0] + 8, 2048); side["q"] = [ld(KV[1] + 8, 2048)]; side["Q"] = [ld(KV[1] + 12, 3072)]; side["P"] = ["s_add_u32 s70, s70, 4096", "s_and_b32 s70, s70, 0xffff"]
        if j == 3: side["p"] = ["s_waitcnt vmcnt(2)"] + chk(KV[1]); pre["q"] = br(KV[1], 0)
        if not last:
            if j == 4: side["P"] = ["s_waitcnt vmcnt(2)"] + chk(KV[1] + 8)
            if j == 3: side["Q"] = [ld(KV[0], 0)]; side["P"] = [ld(KV[0] + 4, 1024)]
            if j == 5: pre["p"] = br(KV[1] + 8, 2048); side["q"] = [ld(KV[0] + 8, 2048)]; side["Q"] = [ld(KV[0] + 12, 3072)]; side["P"] = ["s_add_u32 s70, s70, 4096"]
            if j == 7: side["p"] = ["s_waitcnt vmcnt(2)"] + chk(KV[0]); pre["q"] = br(KV[0], 0); side["Q"] = [ld(KV[1], 0), "s_sub_u32 s73, s73, 1"]; side["P"] = [ld(KV[1] + 4, 1024), "s_cmp_lg_u32 s73, 0"]
        else:
            if j == 0: side["q"] = [f"ds_read_b32 v5, v3 offset:{C7}"]
            if j == 2:
                side["p"] = ["s_waitcnt lgkmcnt(0)"]; side["q"] = ["v_readfirstlane_b32 s64, v5"]
                side["Q"] = ["s_cmp_ge_u32 s64, 4", "s_cbranch_scc0 A_C7WAIT", "A_C7OK:", f"ds_read_b64 {vr(KV[0],2)}, v3 offset:{QN}"]
                side["P"] = [f"ds_read_b32 v{KV[0]+2}, v15 offset:{GOF}"]
            if j == 4:
                k = KV[0]
                side["Q"] = ["s_waitcnt lgkmcnt(0)", f"v_mul_f32 v{k}, v{k}, v{k+1}"]
                side["P"] = [f"v_cmp_nle_f32 s[76:77], v{k}, s72", "s_waitcnt vmcnt(0)"] + chk(KV[1] + 8)
            if j == 5:
                pre["p"] = br(KV[1] + 8, 2048)
                side["p"] = ["s_cmp_lg_u64 s[76:77], 0", "s_cbranch_scc1 A_UNSAFE", "A_SAFE:"]
            if j >= 6: side["q"] = [pw(j-6, 0)]; side["Q"] = [pw(j-6, 1)]; side["P"] = [pw(j-6, 2), pw(j-6, 3)]
        for ch in pat:
            if ch == "p":
                for x in pre["p"]: e(x)
                e(pv(0, (j - 1) & 7))
            elif ch == "P": e(pv(1, (j - 1) & 7))
            elif ch == "q":
                for x in pre["q"]: e(x)
                if not (last and j == 7): e(qk(0, j + 1))
            elif ch == "Q":
                if not (last and j == 7): e(qk(1, j + 1))
            elif ch == "C": e(pack(pp+7, sp+14))
            elif ch == "e": e(ex.pop(0))
            elif ch == "c": e(cv.pop(0))
            if ch in side:
                for x in side[ch]: e(x)
        assert not ex and not cv
    if STAMP == 4 and CYC: e("s_memtime s[86:87]\ns_waitcnt lgkmcnt(0)")
    e(".p2align 6\nA_LOOP:")
    for j in range(8): step(j, False)
    if STAMP == 4: e(("s_memtime" if CYC else "s_memrealtime") + " s[84:85]\ns_waitcnt lgkmcnt(0)\ns_mov_b32 m0, s73\nv_writelane_b32 v8, s84, m0")
    e("s_cbranch_scc1 A_LOOP")
    if STAMP == 4:
        if CYC: e("v_subrev_u32 v8, s86, v8\nv_add_u32 v8, s100, v8\ns_nop 1")
        for i in range(1, 7): e(f"v_readlane_b32 s{100-2*i}, v8, {LSEL[i-1]}\ns_mov_b32 s{101-2*i}, s101")
    for j in range(8): step(j, True)
    e("s_setprio 3")
    e(pv(0, 7))
    e(f"""
    {pack(P[1]+7, S[1]+14)}
    s_lshl_b32 s65, s3, 10
    s_add_u32 s65, s65, {CX}
    """)
    e(pv(1, 7))
    e(f"""
    v_add_u32 v7, s65, v15
    s_lshl_b32 s65, s4, 2
    s_add_u32 s65, s65, s5
    s_lshl_b32 s65, s65, 13
    """)
    for i in range(4): e(pw(2, i))
    e(f"""
    @T 1
    s_lshl_b32 s66, s3, 11
    s_add_u32 s74, s65, s66
    s_add_u32 s74, s74, {OF}
    s_add_u32 s65, s66, {STG}
    v_add_u32 v6, s65, v2
    s_nop 1
    """)
    for d in range(1, 4):
        e(f"""
        s_add_u32 s65, s5, {d}
        s_and_b32 s65, s65, 3
        s_lshl_b32 s65, s65, 13
        s_add_u32 s65, s65, s66
        s_lshl_b32 s{75+d}, s4, 15
        s_add_u32 s{75+d}, s{75+d}, s65
        s_add_u32 s{75+d}, s{75+d}, {OF}
        """)
    GB = 96
    def ask(d):
        e(f"""
        buffer_load_dwordx4 {vr(GB+8*d,4)}, v2, s[44:47], s{75+d} offen sc1
        buffer_load_dwordx4 {vr(GB+4+8*d,4)}, v2, s[44:47], s{75+d} offen offset:1024 sc1
        """)
    for i in range(16): e(f"v_accvgpr_read_b32 v{16+i}, a{48+i}")
    if EG == 2:
        for d in range(1, 4): ask(d)
    e(f"""
    s_waitcnt lgkmcnt(0)
    s_barrier
    @T 2
    """)
    if EG == 1:
        for d in range(1, 4): ask(d)
    R = 48
    for d in range(3):
        for i in range(4): e(f"ds_read_b128 {vr(R+16*d+4*i,4)}, v{12+d} offset:{1024*i}")
    e("s_cmp_lg_u32 s82, 0\ns_cbranch_scc1 A_RESCALE\nA_SUM:")
    def pk(op, d, x, y, m=""): e(f"v_pk_{op}_f32 {vr(d,2)}, {vr(x,2)}, {vr(y,2)}{m}")
    G_ = KV[0] + 2
    for d in range(3):
        e(f"s_waitcnt lgkmcnt({4*(2-d)})")
        for i in [12] + [i for i in range(0, 16, 2) if i != 12]:
            if d < 2 or i == 12: pk("add", 16+i, 16+i, R+16*d+i)
    e("v_mov_b32 v36, v28\nv_mov_b32 v37, v28")
    pk("add", 16, 16, R+32); pk("add", 18, 18, R+34)
    e("v_permlane32_swap_b32 v36, v37")
    pk("add", 20, 20, R+36); pk("add", 22, 22, R+38)
    e("v_rcp_f32 v37, v37")
    pk("add", 24, 24, R+40); pk("add", 26, 26, R+42)
    e(f"v_mul_f32 v37, v{G_}, v37")
    pk("add", 30, 30, R+46)
    e("s_mov_b32 s75, 0xfffffffe")
    for i in range(0, 16, 2): pk("mul", 16+i, 16+i, 36, " op_sel:[0,1] op_sel_hi:[1,1]")
    for i in range(8): e(f"v_cvt_pk_bf16_f32 v{40+i}, v{16+2*i}, v{17+2*i}")
    e(f"v_min_u32 v40, s75, v40\nv_min_u32 v44, s75, v44\nv_cndmask_b32 v46, v46, 0, s[62:63]\nv_cndmask_b32 v47, v47, 0, s[62:63]")
    e(f"""
    {"" if NOFAST else "buffer_store_dwordx4 v[40:43], v2, s[44:47], s74 offen " + OFP}
    {"" if NOFAST else "buffer_store_dwordx4 v[44:47], v2, s[44:47], s74 offen offset:1024 " + OFP}
    ds_write_b128 v6, v[40:43]
    ds_write_b128 v6, v[44:47] offset:1024
    """)
    signal(e, G0)
    e("@T 3\ns_mov_b32 s73, 14\ns_mov_b32 s72, 0")
    def take(d, t):
        b = GB + 8*d
        e(f"""
        v_max_u32 v16, v{b}, v{b+4}
        v_cmp_eq_u32 vcc, -1, v16
        s_cbranch_vccnz A_G{t}{d}
        ds_write_b128 v6, {vr(b,4)} offset:{8192*d}
        ds_write_b128 v6, {vr(b+4,4)} offset:{8192*d+1024}
        s_bitset0_b32 s73, {d}
        """)
        signal(e, G0 + 4*d)
        e(f"A_G{t}{d}:")
    if EG:
        for d in range(1, 4):
            e(f"s_waitcnt vmcnt({2*(3-d) + (0 if NOFAST else 2)})"); take(d, "E")
        e("s_cmp_eq_u32 s73, 0\ns_cbranch_scc1 A_DONE")
    e("A_GATHER:\ns_cmp_eq_u32 s73, 14\ns_cbranch_scc0 A_GSOME")
    for d in range(1, 4): ask(d)
    for d in range(1, 4):
        e(f"s_waitcnt vmcnt({2*(3-d)})"); take(d, "F")
    e("s_branch A_GEND\nA_GSOME:")
    for d in range(1, 4):
        e(f"s_bitcmp0_b32 s73, {d}\ns_cbranch_scc1 A_GL{d}"); ask(d); e(f"A_GL{d}:")
    e("s_waitcnt vmcnt(0)")
    for d in range(1, 4):
        e(f"s_bitcmp0_b32 s73, {d}\ns_cbranch_scc1 A_GC{d}"); take(d, "C")
    e("A_GEND:")
    e(f"""
    s_cmp_eq_u32 s73, 0
    s_cbranch_scc1 A_DONE
    s_sub_u32 s61, s61, 1
    s_cbranch_scc1 BAIL
    s_add_u32 s72, s72, 1
    s_and_b32 s65, s72, 7
    s_cmp_lg_u32 s65, 0
    s_cbranch_scc1 A_GATHER
    v_add_u32 v16, s5, v1
    v_and_b32 v16, 3, v16
    v_lshlrev_b32 v16, 8, v16
    s_lshl_b32 s65, s4, 10
    s_lshl_b32 s66, s3, 6
    s_add_u32 s65, s65, s66
    s_add_u32 s65, s65, {FO}
    buffer_load_dword v17, v16, s[44:47], s65 offen sc1
    s_waitcnt vmcnt(0)
    """)
    for d in range(1, 4):
        e(f"""
        v_readlane_b32 s65, v17, {d}
        s_cmp_eq_u32 s65, s60
        s_cselect_b32 s65, {OF - OX}, 0
        s_cmp_ge_u32 s{75+d}, {OF}
        s_cselect_b32 s65, s65, 0
        s_sub_u32 s{75+d}, s{75+d}, s65
        """)
    e(f"""
    s_branch A_GATHER
    A_DONE:
    {"s_cmp_lg_u32 s3, 0" if WBL == 1 else "s_or_b32 s65, s3, s5" if WBL == 2 else ""}
    {"s_cbranch_scc1 A_NWB" if WBL else ""}
    {"buffer_wbl2 sc1" if WBL else ""}
    A_NWB:
    {f"s_sub_u32 s74, s74, {OF - XT2}" if XD else ""}
    {"buffer_store_dwordx4 v[40:43], v2, s[44:47], s74 offen" if XD else ""}
    {"buffer_store_dwordx4 v[44:47], v2, s[44:47], s74 offen offset:1024" if XD else ""}
    s_waitcnt lgkmcnt(0)
    @T 4
    @E 0
    s_endpgm
    A_C7WAIT:
    """)
    wait(e, C7, 4)
    e("s_branch A_C7OK")
    for n, (reg, off) in enumerate(stubs):
        e(f"""
        A_RL{n}:
        s_sub_u32 s61, s61, 1
        s_cbranch_scc1 BAIL
        s_sub_u32 s65, s70, 4096
        s_and_b32 s65, s65, 0xffff
        s_waitcnt vmcnt(0)
        buffer_load_dwordx4 {vr(reg,4)}, v2, s[52:55], s65 offen offset:{off} sc1
        buffer_load_dwordx4 {vr(reg+4,4)}, v2, s[52:55], s65 offen offset:{off+1024} sc1
        s_waitcnt vmcnt(0)
        v_max_u32 v7, v{reg}, v{reg+4}
        v_cmp_eq_u32 vcc, -1, v7
        s_cbranch_vccnz A_RL{n}
        s_branch A_RB{n}
        """)
    e(f"""
    A_RESCALE:
    ds_read2st64_b32 v[32:33], v7 offset0:0 offset1:1
    ds_read2st64_b32 v[34:35], v7 offset0:2 offset1:3
    s_waitcnt lgkmcnt(0)
    v_min_f32 v36, v32, v33
    v_min3_f32 v36, v36, v34, v35
    """)
    for d in range(4): e(f"v_sub_f32 v{32+d}, v36, v{32+d}")
    for d in range(4): e(f"v_exp_f32 v{32+d}, v{32+d}")
    e("s_nop 0")
    for i in range(16): e(f"v_mul_f32 v{16+i}, v35, v{16+i}")
    for d in range(3):
        for i in range(16): e(f"v_mul_f32 v{R+16*d+i}, v{32+d}, v{R+16*d+i}")
    e("s_branch A_SUM")
    e("A_UNSAFE:\ns_cmp_eq_u32 s82, 0\ns_cbranch_scc1 A_FALLBACK")
    for k in range(4):
        e(f"""
        s_add_u32 s65, s3, {k+1}
        s_and_b32 s65, s65, 3
        s_lshl_b32 s65, s65, 10
        s_add_u32 s65, s65, {CX + 256*k}
        v_add_u32 v7, s65, v15
        ds_write_b32 v7, v{CR+k}
        """)
    e("s_branch A_SAFE")
    T = 52
    e(f"""
    A_FALLBACK:
    s_mov_b32 s82, 1
    s_mov_b32 s74, 0
    s_mov_b32 s75, 16
    s_nop 15
    """)
    for j in range(4): e(f"v_mov_b32 v{48+j}, 0xff800000")
    e(f"""
    A_FB_LOOP:
    buffer_load_dwordx4 {vr(T,4)}, v2, s[52:55], s74 offen sc1
    buffer_load_dwordx4 {vr(T+4,4)}, v2, s[52:55], s74 offen offset:1024 sc1
    s_add_u32 s74, s74, 4096
    s_waitcnt vmcnt(0)
    """)
    for j in range(4):
        e(f"v_mfma_f32_32x32x16_bf16 {vr(64,16)}, {vr(T,4)}, {vr(Q+8*j,4)}, 0")
        e(f"v_mfma_f32_32x32x16_bf16 {vr(64,16)}, {vr(T+4,4)}, {vr(Q+8*j+4,4)}, {vr(64,16)}")
        e("s_nop 11")
        for i in range(8): e(f"v_max3_f32 v{48+j}, v{48+j}, v{64+2*i}, v{65+2*i}")
    e(f"""
    s_sub_u32 s75, s75, 1
    s_cmp_lg_u32 s75, 0
    s_cbranch_scc1 A_FB_LOOP
    s_add_u32 s70, s80, 4096
    buffer_load_dwordx4 {vr(KV[0],4)}, v2, s[52:55], s80 offen sc1
    buffer_load_dwordx4 {vr(KV[0]+4,4)}, v2, s[52:55], s80 offen offset:1024 sc1
    buffer_load_dwordx4 {vr(KV[0]+8,4)}, v2, s[52:55], s80 offen offset:2048 sc1
    buffer_load_dwordx4 {vr(KV[0]+12,4)}, v2, s[52:55], s80 offen offset:3072 sc1
    buffer_load_dwordx4 {vr(KV[1],4)}, v2, s[52:55], s70 offen sc1
    buffer_load_dwordx4 {vr(KV[1]+4,4)}, v2, s[52:55], s70 offen offset:1024 sc1
    """)
    for j in range(4): e(f"v_mov_b32 v{52+j}, v{48+j}")
    e("s_nop 0")
    for j in range(4): e(f"v_permlane32_swap_b32 v{48+j}, v{52+j}")
    e("s_nop 0")
    for j in range(4):
        m = 48 + j; t = 56
        e(f"""
        v_max_f32 v{m}, v{m}, v{52+j}
        v_sub_f32 v{m}, 0, v{m}
        v_cvt_pk_bf16_f32 v{t}, v{m}, v{m}
        v_and_b32 v{t+4}, 0xffff0000, v{t}
        v_sub_f32 v{m}, v{m}, v{t+4}
        v_cvt_pk_bf16_f32 v{t+2}, v{m}, v{m}
        v_and_b32 v{t+1}, 0xffff0000, v{t+2}
        v_sub_f32 v{m}, v{m}, v{t+1}
        v_cvt_pk_bf16_f32 v{t+3}, v{m}, 0
        v_and_b32 v{t}, 0xffff, v{t}
        v_or_b32 v{t}, v{t}, v{t+1}
        v_cndmask_b32 v{Q+8*j+6}, v{Q+8*j+6}, v{t}, s[62:63]
        v_cndmask_b32 v{Q+8*j+7}, v{Q+8*j+7}, v{t+3}, s[62:63]
        v_lshlrev_b32 v{t+3}, 16, v{t+3}
        v_add_f32 v{t+1}, v{t+1}, v{t+3}
        v_add_f32 v{CR+j}, v{t+4}, v{t+1}
        """)
    for i in range(64): e(f"v_accvgpr_write_b32 a{i}, 0")
    for i in range(8): e(f"v_mov_b32 v{P[1]+i}, 0\nv_mov_b32 v{KV[1]+8+i}, 0")
    e("s_waitcnt vmcnt(2)\ns_branch A_MAIN")

def helper_path(e):
    e.h = True
    e(f"""
    HELPER:
    s_setprio {HPRIO}
    s_sub_u32 s3, s3, 4
    s_lshr_b32 s6, s3, 1
    s_and_b32 s7, s3, 1
    s_min_u32 s76, s2, 223
    s_or_b32 s65, s2, s3
    s_cmp_lg_u32 s65, 0
    s_cbranch_scc1 H_NON
    s_memrealtime s[66:67]
    s_waitcnt lgkmcnt(0)
    s_or_b32 s66, s66, 1
    v_mov_b32 v5, s66
    global_store_dword v3, v5, s[40:41] sc0 sc1
    H_NON:
    s_lshl_b32 s65, s76, 2
    s_load_dword s66, s[32:33], s65
    s_load_dword s67, s[34:35], s65
    s_lshl_b32 s65, s76, 10
    s_lshl_b32 s68, s3, 8
    s_add_u32 s65, s65, s68
    v_lshl_add_u32 v8, v1, 2, s65
    """)
    for i in range(6): e(f"global_load_dword v{96+i}, v8, s[{20+2*i}:{21+2*i}]")
    if CPF in (1, 2):
        e(f"""
        s_cmp_eq_u32 s3, 3
        s_cbranch_scc0 H_NCPF
        s_getpc_b64 s[84:85]
        H_PC:
        s_sub_u32 s84, s84, H_PC - {NAME}
        s_subb_u32 s85, s85, 0
        """)
        if CPF == 1:
            e(f"""
            s_lshr_b32 s65, s2, 3
            s_mul_i32 s65, s65, {6*128}
            v_lshl_add_u32 v9, v1, 7, s65
            v_min_u32 v9, CODE_END - {NAME} - 4, v9
            s_mov_b64 exec, 63
            global_load_dword v90, v9, s[84:85]
            s_mov_b64 exec, -1
            """)
        else:
            for i in range(3):
                e(f"""
                v_lshlrev_b32 v9, 7, v1
                v_add_u32 v9, {8192*i}, v9
                v_min_u32 v9, CODE_END - {NAME} - 4, v9
                global_load_dword v{90+i}, v9, s[84:85]
                """)
        e("H_NCPF:")
    e("s_barrier")
    srd(e, 48, 16, 448 * 896)
    if 'noH' in ABL:
        signal(e, C7)
        e("@T 2\ns_barrier\n@E 0\ns_endpgm")
    e(f"""
    s_mul_i32 s77, s3, {KGS}
    v_and_b32 v9, 15, v1
    v_lshrrev_b32 v10, 4, v1
    s_mov_b32 s8, 0xaaaaaaaa
    s_mov_b32 s9, s8
    s_mov_b32 s10, 0xcccccccc
    s_mov_b32 s11, s10
    s_mov_b32 s12, 0xf0f0f0f0
    s_mov_b32 s13, s12
    s_mov_b32 s14, 0xff00ff00
    s_mov_b32 s15, s14
    v_mul_u32_u24 v12, 1088, v10
    v_lshl_add_u32 v12, v9, 2, v12
    v_add_u32 v12, s77, v12
    s_lshl_b32 s68, s6, 4
    s_lshl_b32 s78, s6, 2
    v_mov_b32 v6, s78
    v_bfe_u32 v11, v1, 2, 2
    v_lshl_add_u32 v11, v10, 3, v11
    v_mul_u32_u24 v11, 912, v11
    v_and_b32 v8, 3, v1
    v_lshl_add_u32 v11, v8, 3, v11
    s_mul_i32 s65, s5, 224
    s_lshl_b32 s56, s3, 7
    s_add_u32 s65, s65, s56
    s_add_u32 s65, s65, {XB}
    v_add_u32 v11, s65, v11
    v_lshrrev_b32 v9, 1, v9
    v_lshlrev_b32 v9, 13, v9
    v_and_b32 v8, 1, v1
    v_lshl_add_u32 v9, v8, 6, v9
    v_lshl_add_u32 v10, v10, 4, v9
    s_mul_i32 s65, s5, 56
    s_lshl_b32 s56, s3, 5
    s_add_u32 s65, s65, s56
    s_lshl_b32 s65, s65, 13
    s_lshl_b32 s56, s4, 7
    s_add_u32 s65, s65, s56
    s_add_u32 s56, s65, {XT2}
    s_lshl_b32 s65, s5, 1
    s_add_u32 s65, s65, s3
    s_lshl_b32 s65, s65, 6
    s_add_u32 s65, s65, s4
    s_lshl_b32 s65, s65, 6
    s_add_u32 s57, s65, {FXT}
    @S 1
    s_waitcnt lgkmcnt(0)
    s_lshr_b32 s66, s66, s68
    s_lshl_b32 s66, s66, 16
    s_lshr_b32 s67, s67, s68
    s_lshl_b32 s67, s67, 16
    v_mov_b32 v13, s66
    v_mul_f32 v13, {f2u(LOG2E)}, v13
    v_exp_f32 v13, v13
    s_nop 0
    v_cvt_pk_bf16_f32 v13, v13, v13
    v_and_b32 v13, 0xffff0000, v13
    """)
    P1_, P8, P256, P32 = 14, 16, 18, 20
    Y = [22, 24, 26, 28]
    X0, X2, X4, X6, XC = 30, 32, 34, 36, 38
    T0, T1 = 40, 42
    C = 44
    YF, XF, D = 48, 80, 112
    PR = 2
    e("s_waitcnt vmcnt(0)\n@S 2\n@U 1")
    for i in range(6): e(f"v_and_b32 v{102+i}, 0xffff0000, v{96+i}")
    for i in range(6): e(f"v_accvgpr_write_b32 a{i}, v{102+i}")
    for i in range(6): e(f"v_lshlrev_b32 v{96+i}, 16, v{96+i}")
    AR, AI, BR, BI, CRE, CIM = 96, 97, 98, 99, 100, 101
    def unit(mode, first):
        e(f"""
        v_mul_f32 v{AR}, v13, v{AR}
        v_mul_f32 v{AI}, v13, v{AI}
        v_mul_f32 v{AR}, {f2u(LOG2E)}, v{AR}
        v_mul_f32 v{AI}, 0.15915494, v{AI}
        v_mul_f32 v{BR}, v13, v{BR}
        v_mul_f32 v{BI}, v13, v{BI}
        """)
        R = {}
        free = [(r, r + 1) for r in range(14, 44, 2)]
        def alloc(): return free.pop(0)
        def anchor(name, l):
            t = alloc(); d = alloc(); R[name] = d
            if l == 1:
                e(f"v_fract_f32 v{t[1]}, v{AI}\nv_exp_f32 v{t[0]}, v{AR}")
            else:
                e(f"v_mul_f32 v{t[1]}, {f2u(float(l))}, v{AI}\nv_mul_f32 v{t[0]}, {f2u(float(l))}, v{AR}\nv_fract_f32 v{t[1]}, v{t[1]}\nv_exp_f32 v{t[0]}, v{t[0]}")
            e(f"v_cos_f32 v{d[0]}, v{t[1]}\nv_sin_f32 v{d[1]}, v{t[1]}\ns_nop 0")
            e(f"v_mul_f32 v{d[0]}, v{d[0]}, v{t[0]}\nv_mul_f32 v{d[1]}, v{d[1]}, v{t[0]}")
            free.append(t)
        UB_ = 96
        DP1 = ["quad_perm:[1,0,3,2]", "quad_perm:[2,3,0,1]", "row_ror:12", "row_ror:8"]
        DP0 = ["quad_perm:[1,0,3,2]", "quad_perm:[2,3,0,1]", "row_ror:4", "row_ror:8"]
        class Tile:
            def __init__(t, T, rows):
                t.T = T; valid = set(rows); t.plan = []; moves = [0] * 16
                for b in range(4):
                    g1, g0 = [], []
                    for A_ in range(16):
                        if A_ >> b & 1: continue
                        B_ = A_ | 1 << b
                        va, vb = A_ in valid, B_ in valid
                        if va and vb: g1.append(("c", B_, A_)); g0.append(("c", A_, B_)); moves[B_] += 1
                        elif va: g1.append(("m", B_, A_)); moves[B_] = 0
                        elif vb: g0.append(("m", A_, B_)); moves[A_] = 0
                        if va or vb: valid |= {A_, B_}
                    t.plan.append((g1, g0))
                t.left = moves
                t.loc = {r: (T + r if moves[r] % 2 == 0 else UB_ + r) for r in range(16)}
            def ops(t):
                out = []
                for b, (g1, g0) in enumerate(t.plan):
                    new = {}
                    if any(k == "c" for k, _, _ in g1): out.append(f"s_mov_b64 vcc, s[{8+2*b}:{9+2*b}]")
                    for k, B_, A_ in g1:
                        if k == "c":
                            d = (t.T + B_) + (UB_ + B_) - t.loc[B_]; new[B_] = d
                            out.append(f"v_cndmask_b32_dpp v{d}, v{t.loc[A_]}, v{t.loc[B_]}, vcc {DP1[b]} row_mask:0xf bank_mask:0xf")
                        else: out.append(f"v_mov_b32_dpp v{t.loc[B_]}, v{t.loc[A_]} {DP1[b]} row_mask:0xf bank_mask:0xf")
                    if any(k == "c" for k, _, _ in g0): out.append("s_not_b64 vcc, vcc")
                    for k, A_, B_ in g0:
                        if k == "c": out.append(f"v_cndmask_b32_dpp v{t.loc[A_]}, v{t.loc[B_]}, v{t.loc[A_]}, vcc {DP0[b]} row_mask:0xf bank_mask:0xf")
                        else: out.append(f"v_mov_b32_dpp v{t.loc[A_]}, v{t.loc[B_]} {DP0[b]} row_mask:0xf bank_mask:0xf")
                    t.loc.update(new)
                assert all(t.loc[r] == t.T + r for r in range(16))
                return out
        pend = []; cur = [None]
        def op(x): return f"v{x}" if isinstance(x, int) else x
        def flush():
            while pend:
                src, d = pend.pop(0)
                e(f"v_cvt_pk_bf16_f32 v{d}, {op(src[0])}, {op(src[1])}")
        def rel(p): free.append(p)
        def mul(z, x, y, conj=False):
            X, Y_ = R[x], R[y]
            t = alloc()
            if mode == "p":
                if z in R and all(p[0] != R[z] for p in pend): d = R[z]
                else: d = alloc()
                cmul(e, d[0], X[0], Y_[0], t[0], conj)
                rel(t)
            else:
                d = t
                e(f"v_mul_f32 v{d[0]}, v{X[0]}, v{Y_[0]}\nv_mul_f32 v{d[1]}, v{X[1]}, v{Y_[0]}")
                n0, n1 = ("", "-") if conj else ("-", "")
                e(f"v_fma_f32 v{d[0]}, {n0}v{X[1]}, v{Y_[1]}, v{d[0]}")
                e(f"v_fma_f32 v{d[1]}, {n1}v{X[0]}, v{Y_[1]}, v{d[1]}" if conj else f"v_fmac_f32 v{d[1]}, v{X[0]}, v{Y_[1]}")
            flush()
            if z in R and R[z] != d: rel(R[z])
            R[z] = d
        def put(name, row): pend.append((R[name], cur[0].loc[row]))
        def turn(nxt):
            flush()
            e("s_nop 0")
            hist = [None, None]
            for x in cur[0].ops():
                if "_dpp" in x:
                    w = x.replace(",", " ").split()
                    if w[2] == hist[1]: e("s_nop 1"); hist = [None, None]
                    elif w[2] == hist[0]: e("s_nop 0"); hist = [None, None]
                    hist = [hist[1], w[1]]
                else: hist = [hist[1], None]
                e(x)
            cur[0] = nxt
        def mm(rt, xf):
            e("s_nop 1")
            for ks in range(4):
                for ct in range(2):
                    d = D + 4 * (2 * rt + ct)
                    e(f"v_mfma_f32_16x16x32_bf16 {vr(d,4)}, {vr(xf+4*ks,4)}, {vr(YF+16*ct+4*ks,4)}, " + ("0" if first and ks == 0 else vr(d,4)))
        anchor("P8", 8)
        anchor("P1", 1)
        anchor("P256", 256)
        R["C"] = (CRE, CIM); R["B"] = (BR, BI); R["one"] = ("1.0", "0")
        mul("X0", "C", "B")
        e(f"v_xor_b32 v{R['X0'][1]}, 0x80000000, v{R['X0'][1]}")
        cur[0] = Tile(YF, range(16))
        put("one", 0); put("P8", 1)
        mul("Y2", "P8", "P8"); put("Y2", 2)
        mul("Y3", "Y2", "P8"); put("Y3", 3)
        mul("P32", "Y2", "Y2"); put("P32", 4)
        mul("Y1", "P8", "P32"); put("Y1", 5)
        rel(R.pop("P8"))
        mul("Y2", "Y2", "P32"); put("Y2", 6)
        mul("Y3", "Y3", "P32"); put("Y3", 7)
        mul("Y0", "P32", "P32"); put("Y0", 8)
        for c in range(9, 32):
            mul(f"Y{c%4}", f"Y{c%4}", "P32")
            if c == 16: turn(Tile(YF + 16, range(16)))
            put(f"Y{c%4}", c % 16)
        mul("XC", "X0", "P1", True)
        turn(Tile(XF, range(16)))
        e("@U 2" if first else "@U 4")
        for n in ("Y0", "Y1", "Y2", "Y3", "P32"): rel(R.pop(n))
        put("X0", 4); put("XC", 5)
        mul("Z0", "X0", "P256", True); put("Z0", 0)
        mul("X2", "XC", "P1", True); put("X2", 6)
        mul("Z0", "Z0", "P256", True); put("Z0", 1)
        mul("XC", "X2", "P1", True); put("XC", 7)
        mul("Z0", "Z0", "P256", True); put("Z0", 2)
        mul("X4", "XC", "P1", True); put("X4", 8)
        mul("Z0", "Z0", "P256", True); put("Z0", 3)
        mul("XC", "X4", "P1", True); put("XC", 9)
        mul("X2", "X2", "P256", True); put("X2", 12)
        mul("X6", "XC", "P1", True); put("X6", 10)
        mul("X4", "X4", "P256", True); put("X4", 13)
        mul("XC", "X6", "P1", True); put("XC", 11)
        mul("X6", "X6", "P256", True); put("X6", 14)
        mul("X4", "X4", "P256", True); put("X4", 15)
        mul("Z0", "Z0", "P256", True)
        turn(None)
        mm(0, XF)
        mul("Z1", "Z0", "P256", True)
        mul("X4", "X4", "P256", True)
        mul("Z2", "Z1", "P256", True)
        mul("Z3", "Z2", "P256", True)
        cur[0] = Tile(XF, [0, 1, 2, 3, 12])
        put("Z0", 0); put("Z1", 1); put("X4", 12); put("Z2", 2); put("Z3", 3)
        turn(None)
        mm(1, XF)
        e("@U 3" if first else "@U 5")
    unit(KG[0], True)
    if 'half' not in ABL:
        for i in range(6): e(f"v_accvgpr_read_b32 v{96+i}, a{i}")
        unit(KG[1], False)
    nonce_issue(e, 8)
    e(f"""
    s_lshr_b32 s65, s2, 3
    s_mul_i32 s65, s65, 12544
    s_lshl_b32 s68, s3, 12
    s_add_u32 s65, s65, s68
    v_lshlrev_b32 v9, 6, v1
    buffer_load_dword v7, v9, s[48:51], s65 offen
    """)
    for rt in range(2):
        for ct in range(2):
            for r in range(4):
                e(f"ds_write_b32 v12, v{D+4*(2*rt+ct)+r} offset:{(4*rt+r)*128+ct*64}")
    signal(e, P1, "v6")
    e(f"@S 3\ns_setprio {HP3}")
    if ABL == "kgen" or 'dmaonly' in ABL: e("@E 0\ns_endpgm")
    e(f"""
    s_mul_i32 s80, s76, 1171
    s_lshr_b32 s80, s80, 16
    s_mul_i32 s65, s80, 56
    s_sub_u32 s65, s76, s65
    s_lshr_b32 s66, s65, 4
    s_lshr_b32 s65, s65, 5
    s_lshl_b32 s81, s80, 2
    s_add_u32 s66, s66, s81
    s_lshl_b32 s66, s66, 12
    s_add_u32 s84, s66, {FC}
    s_lshl_b32 s66, s80, 1
    s_add_u32 s65, s65, s66
    s_lshl_b32 s65, s65, 12
    s_add_u32 s81, s65, {FXT}
    v_lshlrev_b32 v9, 6, v1
    s_mul_i32 s77, s6, {2*KGS}
    s_waitcnt vmcnt(0)
    """)
    nonce_check(e, 8)
    if XTH:
        e("s_cmp_ge_u32 s3, 2\ns_cbranch_scc1 H_NXT")
        wait(e, XF_, 4)
        xt_copy(e, 64, 11, 10, 56, "H_XT3", lambda: signal(e, XF_))
        e("s_waitcnt vmcnt(0)")
        flag_store(e, "v8", "s57")
        e("H_NXT:")
    e("buffer_load_dword v10, v9, s[44:47], s81 offen sc1")
    wait(e, P1, 2, "v6")
    e(f"""
    s_lshl_b32 s65, s7, 6
    v_add_u32 v14, s65, v1
    v_lshlrev_b32 v15, 2, v14
    v_add_u32 v15, s77, v15
    ds_read2st64_b32 v[16:17], v15 offset0:{(512-128)//256} offset1:{(512-128)//256+18}
    """)
    e.l.pop()
    e(f"""
    v_add_u32 v18, 384, v15
    v_add_u32 v19, 388, v15
    ds_read2st64_b32 v[16:17], v18 offset0:0 offset1:18
    ds_read2st64_b32 v[20:21], v19 offset0:0 offset1:18
    v_and_b32 v22, 1, v1
    v_cmp_eq_u32 vcc, 1, v22
    s_cmp_eq_u32 s7, 0
    s_cbranch_scc1 H_T0
    v_subrev_u32 v18, 128, v15
    v_subrev_u32 v19, 124, v15
    v_add_u32 v22, {3648-256}, v15
    ds_read2st64_b32 v[24:25], v18 offset0:0 offset1:18
    ds_read2st64_b32 v[26:27], v19 offset0:0 offset1:18
    ds_read2st64_b32 v[28:29], v22 offset0:0 offset1:18
    s_waitcnt lgkmcnt(0)
    v_add_f32 v24, v24, v25
    v_add_f32 v26, v26, v27
    v_add_f32 v28, v28, v29
    v_cvt_pk_bf16_f32 v48, v26, v26
    v_cvt_pk_bf16_f32 v49, v28, v28
    v_cvt_pk_bf16_f32 v50, v28, v24
    v_cvt_pk_bf16_f32 v51, v24, v24
    v_mov_b32 v30, v51
    s_branch H_T2
    H_T0:
    v_and_b32 v18, 31, v1
    v_lshlrev_b32 v18, 2, v18
    v_add_u32 v18, s77, v18
    v_lshrrev_b32 v19, 5, v1
    """)
    A0 = [1088, 1216, 1344, 1472, 2176, 2304, 2432, 2560]
    A1 = [0, 0, 3264, 3392, 3392, 3392, 3520, 4]
    for j in range(8):
        e(f"""
        s_movk_i32 s65, {A1[j]-A0[j]}
        v_add_u32 v22, {A0[j]}, v18
        v_mad_i32_i24 v22, v19, s65, v22
        ds_read2st64_b32 {vr(32+2*j,2)}, v22 offset0:0 offset1:18
        """)
    e(f"""
    v_cmp_eq_u32 s[68:69], 0, v1
    v_mov_b32 v23, s67
    s_nop 0
    v_cndmask_b32 v23, 0, v23, s[68:69]
    s_waitcnt lgkmcnt(0)
    """)
    for j in range(8): e(f"v_add_f32 v{32+2*j}, v{32+2*j}, v{33+2*j}")
    e("v_add_f32 v32, v32, v23\nv_mov_b32 v30, 0")
    for i in range(4): e(f"v_cvt_pk_bf16_f32 v{48+i}, v{32+2*(7-2*i)}, v{32+2*(6-2*i)}")
    e(f"""
    s_nop 1
    v_mov_b32_dpp v30, v48 wave_shr:1 row_mask:0xf bank_mask:0xf
    H_T2:
    v_add_f32 v16, v16, v17
    v_add_f32 v20, v20, v21
    v_cndmask_b32 v24, v16, v20, vcc
    v_cvt_pk_bf16_f32 v56, v20, v20
    v_cvt_pk_bf16_f32 v57, v20, v24
    v_cvt_pk_bf16_f32 v58, v16, v16
    v_cvt_pk_bf16_f32 v59, v16, v16
    v_alignbit_b32 v52, v49, v48, 16
    v_alignbit_b32 v53, v50, v49, 16
    v_alignbit_b32 v54, v51, v50, 16
    v_alignbit_b32 v55, v30, v51, 16
    v_alignbit_b32 v60, v57, v56, 16
    v_alignbit_b32 v61, v58, v57, 16
    v_mov_b32 v62, v58
    v_mov_b32 v63, v58
    v_sub_u32 v14, 127, v14
    v_lshlrev_b32 v14, 4, v14
    s_mul_i32 s77, s6, {ECH}
    s_add_u32 s77, s77, {XB}
    v_add_u32 v14, s77, v14
    H_XPOLL:
    s_waitcnt vmcnt(0)
    v_cmp_ne_u32 vcc, s60, v10
    s_cbranch_vccz H_XOK
    s_sub_u32 s61, s61, 1
    s_cbranch_scc1 BAIL
    s_sleep 2
    buffer_load_dword v10, v9, s[44:47], s81 offen sc1
    s_branch H_XPOLL
    H_XOK:
    v_lshrrev_b32 v16, 2, v1
    v_and_b32 v17, 3, v1
    v_lshlrev_b32 v18, 7, v16
    v_lshl_add_u32 v18, v17, 4, v18
    s_lshl_b32 s65, s76, 13
    s_lshl_b32 s66, s7, 12
    s_add_u32 s65, s65, s66
    s_lshl_b32 s66, s6, 6
    s_add_u32 s65, s65, s66
    s_add_u32 s83, s65, {XT2}
    buffer_load_dwordx4 v[64:67], v18, s[44:47], s83 offen sc1
    buffer_load_dwordx4 v[68:71], v18, s[44:47], s83 offen offset:2048 sc1
    s_mul_i32 s82, s6, {UCH}
    s_add_u32 s82, s82, {UB}
    v_and_b32 v19, 0x1f0, v2
    v_add_u32 v19, s82, v19
    s_lshl_b32 s65, s7, 11
    s_add_u32 s65, s65, s82
    v_add_u32 v17, s65, v2
    v_mov_b32 v72, 0
    v_mov_b32 v73, 0
    v_mov_b32 v74, 0
    v_mov_b32 v75, 0
    s_mul_i32 s65, s7, {OOF}
    s_add_u32 s65, s65, s77
    v_add_u32 v20, s65, v2
    """)
    e(f"@U 6\ns_setprio {HP4}")
    wait(e, XF_, 6 if XTH else 4)
    e(f"""
    ds_write_b128 v14, v[56:59]
    ds_write_b128 v14, v[60:63] offset:{OOF}
    ds_write_b128 v14, v[48:51] offset:2048
    ds_write_b128 v14, v[52:55] offset:{2048+OOF}
    ds_write_b128 v19, v[72:75]
    s_mov_b64 exec, 15
    ds_write_b128 v20, v[72:75] offset:4096
    s_mov_b64 exec, -1
    s_waitcnt vmcnt(0)
    ds_write_b128 v17, v[64:67] offset:512
    ds_write_b128 v17, v[68:71] offset:1536
    """)
    signal(e, P2, "v6")
    wdma_voff(e, 7)
    e(f"""
    v_and_b32 v21, 31, v1
    v_lshrrev_b32 v22, 5, v1
    v_and_b32 v10, 15, v1
    v_lshrrev_b32 v11, 4, v1
    v_lshlrev_b32 v8, 3, v11
    v_sub_u32 v8, v8, v10
    v_add_u32 v8, 2031, v8
    v_and_b32 v9, 1, v8
    v_lshrrev_b32 v8, 1, v8
    v_mul_u32_u24 v9, {OOF}, v9
    v_lshl_add_u32 v8, v8, 2, v9
    s_lshl_b32 s65, s7, 8
    s_sub_u32 s65, s77, s65
    s_sub_u32 s65, s65, 704
    v_add_u32 v12, s65, v8
    v_subrev_u32 v13, 1024, v12
    v_subrev_u32 v14, 2048, v12
    v_subrev_u32 v15, 3072, v12
    v_lshlrev_b32 v8, 5, v10
    v_lshl_add_u32 v8, v11, 4, v8
    s_lshl_b32 s65, s7, 8
    s_sub_u32 s65, s82, s65
    s_add_u32 s65, s65, 288
    v_add_u32 v16, s65, v8
    s_lshl_b32 s65, s3, 10
    s_add_u32 s69, s65, {WB}
    s_mul_i32 s68, s3, 3584
    s_mul_i32 s66, s5, 224
    s_add_u32 s68, s68, s66
    """)
    AC, CF = 64, (32, 48)
    e(f"""
    v_mov_b32 v24, -1
    v_mov_b32 v25, -1
    v_mov_b32 v26, -1
    v_mov_b32 v27, -1
    s_lshl_b32 s70, s3, 1
    s_add_u32 s71, s70, 1
    s_min_u32 s71, s71, 6
    s_lshl_b32 s70, s70, 10
    s_lshl_b32 s71, s71, 10
    s_mul_i32 s65, s4, 28672
    s_mul_i32 s66, s5, 7168
    s_add_u32 s65, s65, s66
    s_add_u32 s65, s65, {BT2}
    s_add_u32 s70, s70, s65
    s_add_u32 s71, s71, s65
    s_lshl_b32 s65, s4, 2
    s_add_u32 s65, s65, s5
    s_lshl_b32 s65, s65, 13
    s_lshl_b32 s66, s3, 11
    s_add_u32 s65, s65, s66
    s_add_u32 s65, s65, {OF}
    buffer_store_dwordx4 v[24:27], v2, s[44:47], s70 offen sc1
    buffer_store_dwordx4 v[24:27], v2, s[44:47], s71 offen sc1
    buffer_store_dwordx4 v[24:27], v2, s[44:47], s65 offen sc1
    buffer_store_dwordx4 v[24:27], v2, s[44:47], s65 offen offset:1024 sc1
    s_lshl_b32 s65, s5, 2
    s_add_u32 s65, s65, s3
    s_lshl_b32 s65, s65, 6
    s_add_u32 s65, s65, s4
    s_lshl_b32 s65, s65, 6
    s_add_u32 s85, s65, {FC}
    s_getreg_b32 s58, hwreg(HW_REG_XCC_ID, 0, 4)
    v_mov_b32 v28, s60
    v_mov_b32 v29, s58
    """)
    wait(e, P2, 2, "v6")
    e(f"s_setprio {CPRIO}\n@S 4")
    DMA1 = """
    s_mov_b32 m0, s69
    s_add_u32 s69, s69, 4096
    buffer_load_dwordx4 v7, s[48:51], s68 offen lds
    s_add_u32 s68, s68, 14336
    """
    DMA2 = DMA1 + DMA1
    BFR, AFR = 32, 96
    def rdA(L, n):
        c, a = divmod(n, 8)
        if c > 3: return
        r = AFR + 4 * (a % 4); v = 12 + a // 2; o = (0 if a & 1 else 128) + 48 - 16 * c
        L.op(f"ds_read2_b32 {vr(r,2)}, v{v} offset0:{o} offset1:{o+1}")
        L.op(f"ds_read2_b32 {vr(r+2,2)}, v{v} offset0:{o+2} offset1:{o+3}", ("A", n))
    def rdB(L, d, c):
        if c <= 3: L.op(f"ds_read_b128 {vr(BFR+4*d,4)}, v16 offset:{512*d + 192 - 64*c}", ("B", c, d))
    if WOC: wait(e, C5, 4)
    L = Lds(e)
    rdA(L, 0)
    for d in range(7, -1, -1): rdB(L, d, 0)
    rdA(L, 1); rdA(L, 2)
    for it in range(4):
        for a in range(8):
            for d in range(7 - a, -1, -1):
                need = []
                if d == 7 - a: need.append(("A", 8 * it + a))
                if a == 0: need.append(("B", it, d))
                if need:
                    t = max(need, key=lambda t: L.mark[t])
                    if L.n - L.mark[t] < 16: L.wait(t)
                e(f"v_mfma_f32_16x16x32_bf16 {vr(AC+4*(a+d),4)}, {vr(AFR+4*(a%4),4)}, {vr(BFR+4*d,4)}, " + ("0" if it == 0 and a == 0 else vr(AC+4*(a+d),4)))
                if d == 7 - a:
                    rdB(L, d, it + 1)
                    rdA(L, 8 * it + a + 3)
                    if WOC and a < 7: e(DMA1)
        if it == 3 - FCIT:
            e(f"""
            s_waitcnt vmcnt({7*(4-FCIT) if WOC else 0})
            s_mov_b64 exec, 1
            buffer_store_dwordx2 v[28:29], v3, s[44:47], s85 offen sc1
            s_mov_b64 exec, -1
            """)
    e(f"""
    v_lshlrev_b32 v29, 6, v1
    buffer_load_dword v30, v29, s[44:47], s84 offen sc1
    s_setprio {HPRIO2}
    s_mul_i32 s65, s3, {KGS}
    v_add_u32 v8, s65, v2
    s_xor_b32 s65, s3, 1
    s_mul_i32 s65, s65, {KGS}
    v_add_u32 v9, s65, v2
    s_waitcnt lgkmcnt(0)
    s_nop 7
    s_cmp_eq_u32 s7, 0
    s_cbranch_scc1 H_C0
    """)
    for i in range(4): e(f"ds_write_b128 v8, {vr(AC+4*i,4)} offset:{1024*i}")
    e("s_branch H_C1\nH_C0:")
    for i in range(4): e(f"ds_write_b128 v8, {vr(AC+16+4*i,4)} offset:{1024*i}")
    e("H_C1:")
    signal(e, P3, "v6")
    if not WOC:
        wait(e, C5, 4, sleep=2)
        e(DMA2); e(DMA2)
    wait(e, P3, 2, "v6", sleep=2)
    for i in range(4): e(f"ds_read_b128 {vr(32+4*i,4)}, v9 offset:{1024*i}")
    e(f"""
    v_and_b32 v8, 1, v11
    v_lshlrev_b32 v8, 3, v8
    v_lshrrev_b32 v12, 1, v10
    v_add_u32 v8, v8, v12
    v_mul_u32_u24 v8, 28672, v8
    v_and_b32 v12, 1, v1
    v_lshl_add_u32 v8, v12, 5, v8
    v_lshl_add_u32 v8, v22, 4, v8
    s_lshl_b32 s65, s76, 1
    s_add_u32 s65, s65, s6
    s_lshl_b32 s65, s65, 6
    s_mul_i32 s66, s7, {32*28672}
    s_add_u32 s65, s65, s66
    s_add_u32 s65, s65, {BT2}
    s_add_u32 s66, s65, {16*28672}
    s_mov_b32 s75, 0xfffffffe
    s_cmp_eq_u32 s7, 0
    s_waitcnt lgkmcnt(0)
    s_cbranch_scc1 H_A0
    """)
    for i in range(16): e(f"v_add_f32 v{48+i}, v{AC+16+i}, v{32+i}")
    e("s_branch H_A1\nH_A0:")
    for i in range(16): e(f"v_add_f32 v{48+i}, v{AC+i}, v{32+i}")
    e("H_A1:")
    for i in range(8): e(f"v_cvt_pk_bf16_f32 v{32+i}, v{48+2*i}, v{49+2*i}")
    e(f"""
    s_cmp_ge_u32 s2, 224
    s_nop 0
    v_permlane16_swap_b32 v32, v34
    v_permlane16_swap_b32 v33, v35
    v_permlane16_swap_b32 v36, v38
    v_permlane16_swap_b32 v37, v39
    v_min_u32 v32, s75, v32
    v_min_u32 v36, s75, v36
    s_cbranch_scc1 H_NOBT
    s_waitcnt vmcnt({0 if WOC else 4})
    H_FCP:
    v_cmp_ne_u32 vcc, s60, v30
    s_cbranch_vccz H_FCOK
    s_sub_u32 s61, s61, 1
    s_cbranch_scc1 BAIL
    buffer_load_dword v30, v29, s[44:47], s84 offen sc1
    s_waitcnt vmcnt(0)
    s_branch H_FCP
    H_FCOK:
    buffer_store_dwordx4 v[32:35], v8, s[44:47], s65 offen sc1
    buffer_store_dwordx4 v[36:39], v8, s[44:47], s66 offen sc1
    H_NOBT:
    v_lshlrev_b32 v28, 6, v21
    s_lshl_b32 s80, s3, 11
    s_add_u32 s80, s80, {FLG}
    buffer_load_dwordx2 v[30:31], v28, s[44:47], s80 offen sc1
    v_and_b32 v29, 15, v1
    v_lshlrev_b32 v29, 12, v29
    s_lshl_b32 s84, s4, 6
    s_add_u32 s84, s84, {FC}
    buffer_load_dwordx2 v[18:19], v29, s[44:47], s84 offen sc1
    @S 5
    """)
    if not WOC: e(f"""
    s_mov_b32 s79, {1 if 'nowo' in ABL else 12}
    H_WO:
    s_waitcnt vmcnt(2)
    {DMA2}
    s_sub_u32 s79, s79, 1
    s_cmp_lg_u32 s79, 0
    s_cbranch_scc1 H_WO
    """)
    e(f"""
    v_bfe_u32 v8, v1, 2, 2
    v_lshl_add_u32 v9, v22, 2, v8
    v_lshlrev_b32 v9, 8, v9
    v_bfe_u32 v10, v1, 4, 1
    v_lshlrev_b32 v10, 5, v10
    v_and_b32 v11, 3, v1
    v_lshl_add_u32 v10, v11, 3, v10
    s_lshl_b32 s65, s3, 6
    v_add_u32 v10, s65, v10
    v_lshlrev_b32 v8, 6, v8
    v_xor_b32 v10, v10, v8
    v_add_u32 v9, v9, v10
    """)
    for d in range(4):
        e(f"s_add_u32 s65, s5, {d}\ns_and_b32 s65, s65, 3\ns_mul_i32 s65, s65, 28672\ns_add_u32 s65, s65, {WB}\nv_add_u32 v{24+d}, s65, v9")
    e(f"v_lshlrev_b32 v13, 2, v21\nds_read_b32 v15, v13 offset:{GOF}\ns_waitcnt vmcnt(0)")
    signal(e, C6)
    e("""
    H_KN:
    v_cmp_ne_u32 vcc, s60, v30
    v_cmp_ne_u32 s[70:71], s60, v18
    s_or_b64 vcc, vcc, s[70:71]
    s_cbranch_vccz H_KNOK
    s_sub_u32 s61, s61, 1
    s_cbranch_scc1 BAIL
    buffer_load_dwordx2 v[30:31], v28, s[44:47], s80 offen sc1
    buffer_load_dwordx2 v[18:19], v29, s[44:47], s84 offen sc1
    s_waitcnt vmcnt(0)
    s_branch H_KN
    H_KNOK:
    v_cmp_ne_u32 vcc, s58, v19
    s_nop 1
    s_cmp_lg_u64 vcc, 0
    s_cselect_b32 s59, 1, """ + ("0" if XC and not NOFAST else "1") + """
    """)
    e(f"s_mov_b32 exec_hi, 0\nds_max_u32 v3, v31 offset:{KN}\ns_mov_b32 exec_hi, -1")
    wait(e, C6, 4, sleep=2)
    for h in range(16):
        for s in range(2):
            for i in range(2):
                e(f"ds_read_b64_tr_b16 {ar(8*h+4*s+2*i,2)}, v{24 + h//4} offset:{7168*(h%4)+4096*s+2048*i}")
    ID, BF, YA, OA = 40, 48, 64, 80
    e(f"""
    v_sub_f32 v9, 1.0, v15
    v_and_b32 v8, 1, v21
    v_cvt_pk_bf16_f32 v9, v9, 0
    v_lshlrev_b32 v8, 4, v8
    v_lshlrev_b32 v9, v8, v9
    v_lshrrev_b32 v10, 1, v21
    v_lshlrev_b32 v11, 2, v22
    v_sub_u32 v10, v10, v11
    """)
    for s in range(2):
        for w in range(4):
            e(f"v_cmp_eq_u32 vcc, {8*s+w}, v10\ns_nop 1\nv_cndmask_b32 v{ID+4*s+w}, 0, v9, vcc")
    e(f"""
    v_lshlrev_b32 v8, 6, v21
    v_lshl_add_u32 v8, v22, 4, v8
    s_mul_i32 s65, s4, 28672
    s_mul_i32 s66, s5, 7168
    s_add_u32 s65, s65, s66
    s_lshl_b32 s66, s3, 11
    s_add_u32 s65, s65, s66
    s_add_u32 s65, s65, {BT2}
    v_mul_u32_u24 v12, 896, v21
    v_lshl_add_u32 v12, v22, 4, v12
    s_mul_i32 s66, s4, {32*896}
    s_mul_i32 s67, s5, 224
    s_add_u32 s66, s66, s67
    s_lshl_b32 s67, s3, 6
    s_add_u32 s66, s66, s67
    v_add_u32 v14, {STG}, v2
    s_cmp_eq_u32 s3, 3
    s_cselect_b32 s70, 0xffff, -1
    s_mov_b32 s71, s70
    s_waitcnt lgkmcnt(0)
    """)
    signal(e, C7)
    srd(e, 48, 38, 2048 * 896)
    e(f"""
    @S 6
    @T 1
    H_YPOLL:
    buffer_load_dwordx4 {vr(BF,4)}, v8, s[44:47], s65 offen sc1
    buffer_load_dwordx4 {vr(BF+4,4)}, v8, s[44:47], s65 offen offset:32 sc1
    s_waitcnt vmcnt(0)
    v_max_u32 v16, v{BF}, v{BF+4}
    v_cmp_eq_u32 vcc, -1, v16
    s_and_b64 vcc, vcc, s[70:71]
    s_cbranch_vccz H_YOK
    s_sub_u32 s61, s61, 1
    s_cbranch_scc1 BAIL
    s_sleep 8
    s_branch H_YPOLL
    H_YOK:
    v_mfma_f32_32x32x16_bf16 {vr(YA,16)}, {vr(BF,4)}, {vr(ID,4)}, 0
    v_mfma_f32_32x32x16_bf16 {vr(YA,16)}, {vr(BF+4,4)}, {vr(ID+4,4)}, {vr(YA,16)}
    """)
    e(f"""
    s_lshl_b32 s80, s3, 11
    v_add_u32 v17, s80, v14
    s_lshl_b32 s81, s4, 2
    s_add_u32 s81, s81, s5
    s_lshl_b32 s79, s81, 13
    s_add_u32 s80, s80, s79
    s_add_u32 s80, s80, {OX}
    s_lshl_b32 s81, s81, 8
    s_lshl_b32 s79, s3, 6
    s_add_u32 s81, s81, s79
    s_add_u32 s81, s81, {FO}
    v_mov_b32 v18, s60
    """)
    e("@T 2\ns_setprio 3\ns_barrier\n@T 3")
    FB = 96
    def slot(n): n %= 16; return vr(FB + 4*n, 4) if n < 8 else ar(4*(n-8), 4)
    def blocks(ds):
        fr = [(d, s) for d in ds for s in range(8)]
        L = Lds(e); LA = 8 if ds == [0] else 12
        def rd(n):
            if n < len(fr): L.op(f"ds_read_b128 {slot(n)}, v14 offset:{8192*fr[n][0]+1024*fr[n][1]}", n)
        for n in range(LA): rd(n)
        for n, (d, s) in enumerate(fr):
            if n == len(fr) - PA and len(ds) < 3: L.op(f"ds_read_b128 v[20:23], v3 offset:{G0}")
            L.wait(n)
            o = (YA, 32, 48, OA)[d]
            e(f"v_mfma_f32_32x32x16_bf16 {vr(o,16)}, {ar(32*d+4*s,4)}, {slot(n)}, " + ("0" if s == 0 and d else vr(o,16)))
            rd(n + LA)
    wait(e, G0, 4, sleep=0)
    blocks([0])
    e(f"""
    s_mov_b32 s79, 0x80000000
    s_cmp_eq_u32 s59, 0
    s_cbranch_scc1 H_NOX
    ds_read_b128 v[24:27], v17
    ds_read_b128 v[28:31], v17 offset:1024
    s_waitcnt lgkmcnt(0)
    buffer_store_dwordx4 v[24:27], v2, s[44:47], s80 offen sc1
    buffer_store_dwordx4 v[28:31], v2, s[44:47], s80 offen offset:1024 sc1
    s_mov_b32 s79, 24
    H_NOX:
    @T 4
    s_mov_b32 s73, 14
    s_branch H_PICK2
    H_PICK:
    ds_read_b128 v[20:23], v3 offset:{G0}
    H_PICK2:
    s_waitcnt lgkmcnt(0)
    v_readfirstlane_b32 s76, v21
    v_readfirstlane_b32 s77, v22
    v_readfirstlane_b32 s78, v23
    s_lshr_b32 s76, s76, 1
    s_lshl_b32 s78, s78, 1
    s_and_b32 s76, s76, 2
    s_and_b32 s77, s77, 4
    s_and_b32 s78, s78, 8
    s_or_b32 s76, s76, s77
    s_or_b32 s76, s76, s78
    s_and_b32 s76, s76, s73
    s_cbranch_scc1 H_GO
    s_sub_u32 s61, s61, 1
    s_cbranch_scc1 BAIL
    s_sub_u32 s79, s79, 1
    s_cmp_lg_u32 s79, 0
    s_cbranch_scc1 H_PICK
    s_waitcnt vmcnt(0)
    """)
    flag_store(e, "v18", "s81")
    e("""
    s_mov_b32 s79, 0x80000000
    s_branch H_PICK
    H_GO:
    s_xor_b32 s73, s73, s76
    """)
    order = [14, 2, 4, 8, 6, 10, 12]
    for m in order[1:]: e(f"s_cmp_eq_u32 s76, {m}\ns_cbranch_scc1 H_B{m}")
    for m in order[:1] + order[:0:-1]:
        e(f"H_B{m}:")
        blocks([d for d in (1, 2, 3) if m >> d & 1])
        if m == 14: e("s_branch H_FIN")
        else:
            e("s_cmp_lg_u32 s73, 0\ns_cbranch_scc1 H_PICK2")
            if m != 2: e("s_branch H_FIN")
    e("""
    H_FIN:
    @T 5
    s_cmp_gt_u32 s79, 24
    s_cbranch_scc1 H_FL
    s_waitcnt vmcnt(0)
    s_mov_b64 exec, 1
    buffer_store_dword v18, v3, s[44:47], s81 offen sc1
    s_mov_b64 exec, -1
    H_FL:
    s_nop 8
    """)
    def pk(op, d, x, y): e(f"v_pk_{op}_f32 {vr(d,2)}, {vr(x,2)}, {vr(y,2)}")
    for i in range(0, 16, 2): pk("add", 32+i, 32+i, 48+i)
    for i in range(0, 16, 2): pk("add", YA+i, YA+i, OA+i)
    for i in range(0, 16, 2): pk("add", YA+i, YA+i, 32+i)
    for i in range(8): e(f"v_cvt_pk_bf16_f32 v{32+i}, v{YA+2*i}, v{YA+2*i+1}")
    e(f"""
    s_cmp_eq_u32 s3, 3
    s_nop 0
    v_permlane32_swap_b32 v32, v34
    v_permlane32_swap_b32 v33, v35
    v_permlane32_swap_b32 v36, v38
    v_permlane32_swap_b32 v37, v39
    buffer_store_dwordx4 v[32:35], v12, s[48:51], s66 offen {OUTP}
    s_cbranch_scc1 H_END
    buffer_store_dwordx4 v[36:39], v12, s[48:51], s66 offen offset:32 {OUTP}
    H_END:
    @E 0
    BAIL:
    s_endpgm
    CODE_END:
    """)

def main(out):
    e = A()
    hdr = f"""; gated mix of MQA attention and an S4 convolution: one launch, workgroups hand data over through d_ws
; @launch grid=(256,1,1) block=(512,1,1) lds={LDS}
.amdgcn_target "amdgcn-amd-amdhsa--gfx950"
.text
"""
    prologue(e); attn_path(e); helper_path(e)
    tail = f""".section .rodata,"a"
.p2align 6
.amdhsa_kernel {NAME}
  .amdhsa_next_free_vgpr 256
  .amdhsa_next_free_sgpr 102
  .amdhsa_accum_offset 128
  .amdhsa_group_segment_fixed_size 0
  .amdhsa_kernarg_size 144
  .amdhsa_user_sgpr_count 2
  .amdhsa_user_sgpr_kernarg_segment_ptr 1
  .amdhsa_system_sgpr_workgroup_id_x 1
.end_amdhsa_kernel
"""
    open(out, "w").write(hdr + e.text() + tail)

if __name__ == "__main__":
    main(sys.argv[1] if len(sys.argv) > 1 else "f2.s")
```
